```python
import torch

def _softmax(x, axis=-1):
    return torch.softmax(x, dim=axis)
def _gelu(x):
    return torch.nn.functional.gelu(x, approximate="tanh")
def _silu(x):
    return torch.nn.functional.silu(x)
def _sigmoid(x):
    return torch.sigmoid(x)
def _layernorm(x, axis=-1, eps=1e-5):
    m = x.mean(dim=axis, keepdim=True)
    v = x.var(dim=axis, keepdim=True, unbiased=False)
    return (x - m) / torch.sqrt(v + eps)
def _scatter_add(tgt, idx, src, axis=0):
    return tgt.clone().index_add_(axis, idx, src)
def _segment_sum(src, seg, n):
    out = torch.zeros((n,) + src.shape[1:], dtype=src.dtype)
    return out.index_add_(0, seg, src)
def _pad(x, pw):
    flat = tuple(v for pair in reversed(pw) for v in pair)
    return torch.nn.functional.pad(x, flat)

kernel_name = 'recurrent_scan__gqa_block_cached__geglu_ffn__decode'

def setup_inputs():

    _w = (lambda a: (lambda t: t.to(torch.bfloat16) if t.is_floating_point() else t)(torch.as_tensor(a)))
    def _A_setup():
        B, Sq, D = 1, 1, 512
        Hq, Hkv, Sk, Dh = 32, 8, 65536, 128
        assert Hq % Hkv == 0, (Hq, Hkv)
        return {
            "x": _w((lambda *s: torch.randn(*s, dtype=torch.bfloat16) * 0.05)(B, Sq, D)),
            "k_cache": _w((lambda *s: torch.randn(*s, dtype=torch.bfloat16) * 1.6)(B, Hkv, Sk, Dh)),
            "v_cache": _w((lambda *s: torch.randn(*s, dtype=torch.bfloat16) * 0.8)(B, Hkv, Sk, Dh)),
            "wq": _w((lambda *s: torch.randn(*s, dtype=torch.bfloat16) * 1.6)(D, Hq * Dh) * (D ** -0.5)),
            "wo": _w((lambda *s: torch.randn(*s, dtype=torch.bfloat16) * 0.8)(Hq * Dh, D) * ((Hq * Dh) ** -0.5)),
        }
    _A_in = _A_setup()

    def _B_setup():
        B, S, D, F = 1, 1, 512, 1792
        return {
            "x": _w((lambda *s: torch.randn(*s, dtype=torch.bfloat16) * 0.05)(B, S, D)),
            "w_gate": _w((lambda *s: torch.randn(*s, dtype=torch.bfloat16) * 0.2)(D, F)),
            "w_up": _w((lambda *s: torch.randn(*s, dtype=torch.bfloat16) * 0.2)(D, F)),
            "w_down": _w((lambda *s: torch.randn(*s, dtype=torch.bfloat16) * 0.2)(F, D)),
        }
    _B_in = _B_setup()

    return {
        "A_x": _A_in["x"],
        "A_k_cache": _A_in["k_cache"],
        "A_v_cache": _A_in["v_cache"],
        "A_wq": _A_in["wq"],
        "A_wo": _A_in["wo"],
        "B_x": _B_in["x"],
        "B_w_gate": _B_in["w_gate"],
        "B_w_up": _B_in["w_up"],
        "B_w_down": _B_in["w_down"],
    }

def reference(A_x, A_k_cache, A_v_cache, A_wq, A_wo, B_x, B_w_gate, B_w_up, B_w_down):
    def _A_ref(x, k_cache, v_cache, wq, wo):
        B, Sq, D = x.shape
        Hq, Dh = 32, 128
        Hkv = k_cache.shape[1]
        rep = Hq // Hkv
        q = (lambda x, *d: x.permute(*d))((x @ wq).reshape(B, Sq, Hq, Dh), 0, 2, 1, 3)
        k = (lambda x, n, axis: torch.repeat_interleave(x, n, dim=axis))(k_cache, rep, axis=1)
        v = (lambda x, n, axis: torch.repeat_interleave(x, n, dim=axis))(v_cache, rep, axis=1)
        scores = torch.einsum("bhqd,bhkd->bhqk", q, k) * (Dh ** -0.5)
        p = _softmax(scores, axis=-1)
        o = torch.einsum("bhqk,bhkd->bhqd", p, v)
        return (lambda x, *d: x.permute(*d))(o, 0, 2, 1, 3).reshape(B, Sq, Hq * Dh) @ wo

    def _B_ref(x, w_gate, w_up, w_down):
        return (_gelu(x @ w_gate) * (x @ w_up)) @ w_down

    x = A_x
    xn = _layernorm(x, axis=-1)
    s = _A_ref(xn, A_k_cache, A_v_cache, A_wq, A_wo)
    g = _silu(_B_ref(xn, B_w_gate, B_w_up, B_w_down))
    return x + s * g
```

```python
import re, sys
TRANS = ("v_exp_f32", "v_log_f32", "v_rcp_f32", "v_rsq_f32", "v_sqrt_f32", "v_sin_f32", "v_cos_f32")
def regs(tok):
    tok = tok.strip()
    tok = tok.lstrip("-")
    m = re.fullmatch(r"abs\((.*)\)", tok) or re.fullmatch(r"\|(.*)\|", tok)
    if m: tok = m.group(1)
    m = re.fullmatch(r"([vsa])(\d+)", tok)
    if m: return {(m.group(1), int(m.group(2)))}
    m = re.fullmatch(r"([vsa])\[(\d+):(\d+)\]", tok)
    if m: return {(m.group(1), i) for i in range(int(m.group(2)), int(m.group(3)) + 1)}
    if tok == "vcc": return {("s", 106), ("s", 107)}
    if tok == "exec": return {("s", 126), ("s", 127)}
    if tok == "m0": return {("s", 124)}
    return set()
class I: pass
def parse(text):
    ins = []; labels = {}
    for ln, line in enumerate(text.split("\n"), 1):
        s = line.split(";")[0].strip()
        if not s or s.startswith("."): continue
        if s.endswith(":"):
            labels[s[:-1]] = len(ins); continue
        parts = s.split(None, 1)
        op = parts[0]; rest = parts[1] if len(parts) > 1 else ""
        toks = [t.strip() for t in rest.split(",")] if rest else []
        mods = ""
        if toks:
            lt = toks[-1].split()
            if len(lt) > 1: toks[-1] = lt[0]; mods = " ".join(lt[1:])
        full = rest
        i = I(); i.op = op; i.ln = ln; i.text = s; i.toks = toks; i.mods = full
        i.valu = op.startswith("v_") and not op.startswith("v_mfma")
        i.mfma = op.startswith("v_mfma")
        i.trans = op.replace("_e32", "").replace("_e64", "") in TRANS
        i.dpp = "_dpp" in op
        i.perm = op.startswith("v_permlane")
        i.rdlane = op.startswith("v_readlane") or op.startswith("v_readfirstlane")
        i.dot = op.startswith("v_dot")
        i.vmem = op.startswith("buffer_") or op.startswith("global_")
        i.ds = op.startswith("ds_")
        i.salu = op.startswith("s_")
        i.ldsdma = i.vmem and (re.search(r"\blds\b", full) is not None or "load_lds" in op)
        optoks = []
        for t in re.split(r",\s*(?![^\[]*\])", rest):
            optoks.append(t.strip().split()[0] if t.strip() else "")
        i.ops = optoks
        d = set(); u = set()
        if i.mfma:
            d = regs(optoks[0]); i.A = regs(optoks[1]); i.B = regs(optoks[2]); i.C = regs(optoks[3]); u = i.A | i.B | i.C
            i.passes = 8 if "32x32" in op else 4
        elif i.valu:
            d = regs(optoks[0])
            for t in optoks[1:]: u |= regs(t)
            if op.startswith("v_permlane"): d |= regs(optoks[1]); u |= regs(optoks[0])
            if op.startswith(("v_fmac", "v_dot2c", "v_pk_fmac")): u |= regs(optoks[0])
            if op.startswith(("v_add_co", "v_addc_co", "v_sub_co")): d |= regs(optoks[1])
            if op.startswith("v_cndmask") and len(optoks) < 4: u |= regs("vcc")
            i.dppsrc = regs(optoks[1]) if i.dpp else set()
        elif i.vmem:
            isload = "load" in op
            isatom = "atomic" in op
            if i.ldsdma:
                for t in optoks: u |= regs(t)
                u |= regs("m0")
            elif isload:
                d = regs(optoks[0])
                for t in optoks[1:]: u |= regs(t)
            elif op in ("buffer_inv", "buffer_wbl2"):
                pass
            else:
                for t in optoks: u |= regs(t)
                if isatom and "sc0" in full:
                    d = regs(optoks[0])
            i.wide_store = ("store_dwordx4" in op or "store_dwordx3" in op)
            if i.wide_store:
                i.sdata = regs(optoks[0]) if op.startswith("buffer") else regs(optoks[1])
        elif i.ds:
            if "read" in op or "permute" in op or "swizzle" in op:
                d = regs(optoks[0])
                for t in optoks[1:]: u |= regs(t)
            else:
                for t in optoks: u |= regs(t)
        elif i.salu:
            if op.startswith(("s_cmp", "s_cbranch", "s_branch", "s_waitcnt", "s_nop", "s_barrier", "s_sleep", "s_endpgm", "s_setprio", "s_bitcmp")):
                for t in optoks: u |= regs(t)
            else:
                d = regs(optoks[0]) if optoks else set()
                for t in optoks[1:]: u |= regs(t)
                if "saveexec" in op: d |= regs("exec")
        i.d = d; i.u = u
        i.ws = (int(optoks[0], 0) + 1) if op == "s_nop" else 1
        ins.append(i)
    return ins, labels
def need(p, c):
    n = 0; why = ""
    def up(k, w):
        nonlocal n, why
        if k > n: n = k; why = w
    pv = {r for r in p.d if r[0] in "va"}; ps = {r for r in p.d if r[0] == "s"}
    if p.valu:
        if c.mfma and pv & c.u: up(2, "VALU->MFMA")
        if p.trans and (c.valu) and pv & c.u: up(1, "trans->VALU")
        if c.valu and c.dpp and pv & c.dppsrc: up(2, "VALU->DPP")
        if c.perm and pv & c.u: up(2, "VALU->permlane")
        if c.rdlane and pv & c.u: up(1, "VALU->readlane")
        if ps:
            if c.valu and ps & c.u: up(4 if c.rdlane else 2, "VALU sgpr->VALU")
            if c.vmem and ps & c.u: up(5, "VALU sgpr->VMEM")
        if p.dot and pv:
            if c.dot and c.op == p.op:
                srcs = set()
                for t in c.ops[1:3]: srcs |= regs(t)
                if pv & srcs: up(3, "dot->dot AB")
            elif (c.valu or c.mfma or c.vmem or c.ds) and pv & (c.u | c.d): up(3, "dot->other")
    if p.mfma:
        k = {4: (6, 8), 8: (10, 12)}[p.passes]
        if c.mfma:
            if p.d & (c.A | c.B): up(k[1], "MFMA->MFMA AB")
            if p.d & c.C and not (p.d == c.C and p.passes == c.passes): up(k[0], "MFMA->MFMA C overlap")
            if p.d & c.d and not (p.d & c.C): up(k[1], "MFMA->MFMA WAW")
        elif c.valu or c.vmem or c.ds:
            if p.d & (c.u | c.d): up(k[1], "MFMA->VALU/mem")
        if c.valu and p.C & c.d: up({4: 3, 8: 7}[p.passes], "MFMA C WAR")
    if p.salu and ("s", 124) in p.d and c.vmem and c.ldsdma: up(1, "M0->LDSDMA")
    if p.vmem and getattr(p, "wide_store", False):
        if (c.valu or c.mfma) and p.sdata & c.d: up(2, "store data WAR")
        elif p.sdata & c.d: up(1, "store data WAR")
    return n, why
def check(text):
    ins, labels = parse(text)
    preds = [[] for _ in ins]
    for k, i in enumerate(ins):
        if k + 1 < len(ins) and i.op not in ("s_branch", "s_endpgm", "s_setpc_b64"): preds[k + 1].append(k)
        if i.op.startswith(("s_cbranch", "s_branch")):
            t = labels.get(i.ops[0])
            if t is not None and t < len(ins): preds[t].append(k)
    bad = 0
    for k, c in enumerate(ins):
        stack = [(p, 0) for p in preds[k]]; seen = set()
        while stack:
            p, dist = stack.pop()
            if (p, dist) in seen or dist >= 13: continue
            seen.add((p, dist))
            n, why = need(ins[p], c)
            if n > dist:
                print("HAZARD %s: need %d have %d\n   L%d: %s\n   L%d: %s" % (why, n, dist, ins[p].ln, ins[p].text, c.ln, c.text)); bad += 1
            for q in preds[p]: stack.append((q, dist + ins[p].ws))
    return bad
if __name__ == "__main__":
    b = check(open(sys.argv[1]).read())
    print("hazards:", b)
```

```python
import sys, struct, math
KNAME = "recurrent_scan__gqa_block_cached__geglu_ffn__decode"

def f2u(x): return struct.unpack("<I", struct.pack("<f", x))[0]
def hx(x): return "0x%x" % (x & 0xffffffff)
def v(n, c=1): return "v%d" % n if c == 1 else "v[%d:%d]" % (n, n + c - 1)
def s(n, c=1): return "s%d" % n if c == 1 else "s[%d:%d]" % (n, n + c - 1)

RING = 0
STAGE = 131072
XN = 147456
QA = XN + 1024
ML = QA + 1024
GA = ML + 128
TAGA = GA + 16
COMB = 151552
LDS_BYTES = 163840
WS_EPOCH = 0
WS_Q = 0x1000
WS_CNT = 0x8000
WS_B1 = 0x100000
WS_B2 = 0x200000
WS_BF = 0x300000
WS_SIZE = 0x400000
STAMP_OFF = 256 << 20

CL2 = math.log2(math.e) / math.sqrt(128.0)

HEADER = """; Kernarg layout for this problem (96 bytes, ptrs only, base s[0:1]):
"""

class G:
    def __init__(self, **o):
        self.L = []
        self.o = dict(stamps=0, T=8, rot=256, split=0, pollsleep=0)
        self.o.update(o)
    def __call__(self, x): self.L.append("    " + x)
    def lab(self, x): self.L.append(x + ":")
    def c(self, x): self.L.append("    ; " + x)
    def nop(self, n):
        while n > 0:
            k = min(n, 16); self("s_nop %d" % (k - 1)); n -= k
    def stamp(self, i):
        if self.o["stamps"]: self("s_memrealtime %s" % s(64 + 2 * i, 2))
    def write_stamps(self, idx):
        if not self.o["stamps"]: return
        self("s_waitcnt lgkmcnt(0)")
        self("s_lshl_b32 s3, s2, 7")
        self("s_add_u32 s3, s3, %d" % STAMP_OFF)
        self("v_mov_b32 v1, s3")
        for i in idx:
            self("v_mov_b32 v2, %s" % s(64 + 2 * i)); self("v_mov_b32 v3, %s" % s(65 + 2 * i))
            self("global_store_dwordx2 v1, v[2:3], s[54:55] offset:%d" % (8 * i))
        if 0 in idx:
            self("s_getreg_b32 s3, hwreg(HW_REG_XCC_ID)")
            self("v_mov_b32 v2, s3"); self("v_mov_b32 v3, 0")
            self("global_store_dwordx2 v1, v[2:3], s[54:55] offset:120")
    def srd(self, d, base, size, add=None):
        if add is None:
            self("s_mov_b32 %s, %s" % (s(d), s(base))); self("s_mov_b32 %s, %s" % (s(d + 1), s(base + 1)))
        else:
            self("s_add_u32 %s, %s, %s" % (s(d), s(base), add)); self("s_addc_u32 %s, %s, 0" % (s(d + 1), s(base + 1)))
        self("s_mov_b32 %s, %s" % (s(d + 2), hx(size))); self("s_mov_b32 %s, 0x20000" % s(d + 3))
    def red_dpp(self, op, rs, ctrls):
        for ct in ctrls:
            self.nop(max(0, 2 - (len(rs) - 1)))
            for r in rs: self("%s_dpp %s, %s, %s %s row_mask:0xf bank_mask:0xf" % (op, v(r), v(r), v(r), ct))
    def red_swap(self, op, rs, ts):
        for sw in ("v_permlane16_swap_b32", "v_permlane32_swap_b32"):
            for r, t in zip(rs, ts): self("v_mov_b32 %s, %s" % (v(t), v(r)))
            self.nop(max(0, 2 - (len(rs) - 1)))
            for r, t in zip(rs, ts): self("%s %s, %s" % (sw, v(t), v(r)))
            for r, t in zip(rs, ts): self("%s %s, %s, %s" % (op, v(r), v(t), v(r)))
    def red_wave(self, op, rs, ts):
        self.red_dpp(op, rs, ["quad_perm:[1,0,3,2]", "quad_perm:[2,3,0,1]", "row_half_mirror", "row_mirror"])
        self.red_swap(op, rs, ts)
    def rbf(self, pairs, t):
        for a, b in pairs:
            self("v_cvt_pk_bf16_f32 %s, %s, %s" % (v(t), v(a), v(b)))
            self("v_lshlrev_b32 %s, 16, %s" % (v(a), v(t)))
            if b != a: self("v_and_b32 %s, 0xffff0000, %s" % (v(b), v(t)))
    def poll(self, name, loads, tagregs, sleep=0):
        self("s_mov_b32 s31, 0x40000")
        self.lab(name)
        for l in loads: self(l)
        self("s_waitcnt vmcnt(0) lgkmcnt(0)")
        self("v_cmp_ne_u32 vcc, s30, %s" % v(tagregs[0]))
        for k, t in enumerate(tagregs[1:]):
            self("v_cmp_ne_u32 %s, s30, %s" % (s(56 + 2 * k, 2), v(t)))
        for k, t in enumerate(tagregs[1:]):
            self("s_or_b64 vcc, vcc, %s" % s(56 + 2 * k, 2))
        self("s_cbranch_vccz %s_done" % name)
        if sleep: self("s_sleep %d" % sleep)
        self("s_sub_u32 s31, s31, 1")
        self("s_cbranch_scc0 %s" % name)
        self.lab(name + "_done")

def gen(**opts):
    g = G(**opts); o = g.o
    g("s_cmp_ge_u32 s2, 256")
    g("s_cbranch_scc1 L_end")
    g("s_load_dwordx16 s[32:47], s[0:1], 0")
    g("s_load_dwordx8 s[48:55], s[0:1], 64")
    g.stamp(0)
    g("v_lshrrev_b32 v1, 6, v0")
    g("v_and_b32 v0, 63, v0")
    g("v_readfirstlane_b32 s24, v1")
    g("s_lshr_b32 s25, s2, 5")
    g("s_and_b32 s26, s2, 31")
    g("s_mov_b32 s92, 4096"); g("s_mov_b32 s93, 8192"); g("s_mov_b32 s94, 12288")
    g("v_lshrrev_b32 v1, 4, v0")
    g("v_and_b32 v2, 15, v0")
    g("s_cmp_eq_u32 s24, 4")
    g("s_cbranch_scc1 L_aux")
    KS, VS, KA, VA = 4, 8, 10, 14
    QF, F, S, P = 24, 40, 72, 80
    M, LS, AL, NM, T0, T1, T2 = 84, 85, 86, 87, 88, 89, 90
    O, WO, WP = 96, 128, 144
    g("v_xor_b32 v3, v1, v2")
    g("v_lshlrev_b32 v3, 4, v3")
    g("v_lshl_or_b32 %s, v1, 8, v3" % v(KS))
    for u in range(1, 4): g("v_xor_b32 %s, %d, %s" % (v(KS + u), 64 * u, v(KS)))
    g("v_lshlrev_b32 v3, 1, v1")
    g("v_xor_b32 v3, v3, v2")
    g("v_lshlrev_b32 v3, 4, v3")
    g("v_lshl_or_b32 %s, v1, 8, v3" % v(VS))
    g("v_xor_b32 %s, 0x80, %s" % (v(VS + 1), v(VS)))
    g("s_lshl_b32 s27, s26, 2")
    g("s_add_u32 s27, s27, s24")
    if o["split"]:
        g("s_lshl_b32 s27, s27, 12")
    else:
        g("s_lshl_b32 s27, s27, 13")
    g("s_mul_i32 s28, s25, %d" % (o["rot"] * 8192))
    g("s_add_u32 s27, s27, s28")
    g("s_lshl_b32 s29, s24, 15")
    g("s_lshl_b32 s3, s25, 24")
    g("s_waitcnt lgkmcnt(0)")
    g.srd(8, 34, 1 << 24, "s3")
    g.srd(12, 36, 1 << 24, "s3")
    HALF = 524288 if o["split"] else 4096
    def issue(tensor, par, throttle=None):
        srd = s(8, 4) if tensor == "K" else s(12, 4)
        for t in range(2):
            g("s_add_u32 m0, s29, %d" % (par * 16384 + (8192 if tensor == "V" else 0) + t * 4096))
            if throttle is not None: g("s_waitcnt vmcnt(%d)" % throttle)
            else: g("s_nop 0")
            for u in range(4):
                src = KS + u if tensor == "K" else VS + (u & 1)
                g("buffer_load_dwordx4 %s, %s, %s offen offset:%d nt lds" % (v(src), srd, s(4 + t), u * 1024))
    def next_tile():
        g("s_and_b32 s4, s27, 0xffffff")
        g("s_add_u32 s5, s4, %d" % HALF)
        if o["split"]: g("s_and_b32 s5, s5, 0xffffff")
        g("s_add_u32 s27, s27, 0x100000")
    T = o["T"]
    for par in range(2):
        next_tile()
        issue("K", par, T - 4 if T else None)
        if par == 0:
            g("v_xor_b32 v3, v1, v2")
            g("v_lshlrev_b32 v3, 4, v3")
            g("v_lshl_or_b32 v3, v2, 8, v3")
            g("v_add_u32 %s, s29, v3" % v(KA))
            for k in range(1, 4): g("v_xor_b32 %s, %d, %s" % (v(KA + k), 64 * k, v(KA)))
            g("v_lshrrev_b32 v3, 2, v0")
            g("v_and_b32 %s, 7, v3" % v(T0))
            g("v_lshlrev_b32 %s, 5, %s" % (v(T0), v(T0)))
            g("v_lshl_or_b32 v3, v3, 8, %s" % v(T0))
            g("v_and_b32 %s, 3, v0" % v(T0))
            g("v_lshl_or_b32 v3, %s, 3, v3" % v(T0))
            g("v_add_u32 v3, s29, v3")
            g("v_add_u32 %s, 8192, v3" % v(VA))
            for n in range(1, 8): g("v_xor_b32 %s, %d, %s" % (v(VA + n), 32 * n, v(VA)))
            for n in range(32): g("v_mov_b32 %s, 0" % v(O + n))
            g("v_mov_b32 %s, 0xff7fffff" % v(M))
            g("v_mov_b32 %s, 0" % v(LS))
        issue("V", par, T - 4 if T else None)
    g("s_lshl_b32 s3, s2, 14")
    g.srd(16, 40, 16384, "s3")
    g("s_lshl_b32 s3, s24, 8")
    g("v_lshl_add_u32 v3, v0, 2, s3")
    for r in range(16):
        so = ("0", "s92", "s93", "s94")[r >> 2]
        g("buffer_load_dword %s, v3, s[16:19], %s offen offset:%d nt" % (v(WO + r), so, (r & 3) * 1024))
    g.srd(20, 54, WS_SIZE)
    g("s_mov_b32 s6, %s" % hx(f2u(CL2)))
    g("v_and_b32 v3, 3, v0")
    g("v_lshlrev_b32 v3, 8, v3")
    g("v_lshl_or_b32 v3, v1, 4, v3")
    g("v_add_u32 v3, %d, v3" % QA)
    g.stamp(1)
    g("s_barrier")
    for k in range(4): g("ds_read_b128 %s, v3 offset:%d" % (v(QF + 4 * k, 4), 64 * k))
    g.stamp(2)

    def tile(par, wk, wv, more):
        base = par * 16384
        g("s_waitcnt vmcnt(%d)" % wk)
        for t in range(2):
            for k in range(4):
                g("ds_read_b128 %s, %s offset:%d" % (v(F + 16 * t + 4 * k, 4), v(KA + k), base + t * 4096))
        if more: next_tile()
        for t in range(2):
            for k in range(4):
                g("s_waitcnt lgkmcnt(%d)" % (7 - 4 * t - k))
                g("v_mfma_f32_16x16x32_bf16 %s, %s, %s, %s" % (v(S + 4 * t, 4), v(F + 16 * t + 4 * k, 4), v(QF + 4 * k, 4), "0" if k == 0 else v(S + 4 * t, 4)))
        if more: issue("K", par)
        else: g.nop(8)
        g("v_max3_f32 %s, %s, %s, %s" % (v(T0), v(S), v(S + 1), v(S + 2)))
        g("v_max3_f32 %s, %s, %s, %s" % (v(T1), v(S + 3), v(S + 4), v(S + 5)))
        g("v_max3_f32 %s, %s, %s, %s" % (v(T0), v(T0), v(S + 6), v(S + 7)))
        g("v_max3_f32 %s, %s, %s, %s" % (v(T0), v(T0), v(T1), v(M)))
        g.red_swap("v_max_f32", [T0], [T1])
        g("v_sub_f32 %s, %s, %s" % (v(AL), v(M), v(T0)))
        g("v_mul_f32 %s, s6, %s" % (v(NM), v(T0)))
        g("v_mul_f32 %s, s6, %s" % (v(AL), v(AL)))
        g("v_mov_b32 %s, %s" % (v(M), v(T0)))
        g("v_exp_f32 %s, %s" % (v(AL), v(AL)))
        for e in range(8): g("v_fma_f32 %s, %s, s6, -%s" % (v(S + e), v(S + e), v(NM)))
        for e in range(8): g("v_exp_f32 %s, %s" % (v(S + e), v(S + e)))
        g("s_waitcnt vmcnt(%d)" % wv)
        for n in range(4):
            for t in range(2):
                g("ds_read_b64_tr_b16 %s, %s offset:%d" % (v(F + 4 * n + 2 * t, 2), v(VA + n), base + t * 4096))
        for e in range(4): g("v_cvt_pk_bf16_f32 %s, %s, %s" % (v(P + e), v(S + 2 * e), v(S + 2 * e + 1)))
        g("v_add_f32 %s, %s, %s" % (v(T0), v(S), v(S + 1)))
        g("v_add_f32 %s, %s, %s" % (v(T1), v(S + 2), v(S + 3)))
        g("v_fma_f32 %s, %s, %s, %s" % (v(LS), v(LS), v(AL), v(S + 4)))
        g("v_add_f32 %s, %s, %s" % (v(T0), v(T0), v(S + 5)))
        g("v_add_f32 %s, %s, %s" % (v(T1), v(T1), v(S + 6)))
        g("v_add_f32 %s, %s, %s" % (v(LS), v(LS), v(S + 7)))
        g("v_add_f32 %s, %s, %s" % (v(T0), v(T0), v(T1)))
        g("v_add_f32 %s, %s, %s" % (v(LS), v(LS), v(T0)))
        for n in range(16): g("v_mul_f32 %s, %s, %s" % (v(O + n), v(AL), v(O + n)))
        g("s_waitcnt lgkmcnt(0)")
        for n in range(4, 8):
            for t in range(2):
                g("ds_read_b64_tr_b16 %s, %s offset:%d" % (v(F + 4 * n + 2 * t, 2), v(VA + n), base + t * 4096))
        for n in range(4):
            g("v_mfma_f32_16x16x32_bf16 %s, %s, %s, %s" % (v(O + 4 * n, 4), v(F + 4 * n, 4), v(P, 4), v(O + 4 * n, 4)))
        for n in range(16, 32): g("v_mul_f32 %s, %s, %s" % (v(O + n), v(AL), v(O + n)))
        g("s_waitcnt lgkmcnt(0)")
        g("s_nop 0")
        for n in range(4, 8):
            g("v_mfma_f32_16x16x32_bf16 %s, %s, %s, %s" % (v(O + 4 * n, 4), v(F + 4 * n, 4), v(P, 4), v(O + 4 * n, 4)))
        if more: issue("V", par)
    g("s_mov_b32 s7, 7")
    g("s_waitcnt lgkmcnt(0)")
    g.lab("L_loop")
    tile(0, 24, 24, True)
    tile(1, 24, 24, True)
    g("s_sub_u32 s7, s7, 1")
    g("s_cmp_lg_u32 s7, 0")
    g("s_cbranch_scc1 L_loop")
    g("s_mov_b32 s3, 0x05040100"); g("s_mov_b32 s7, 0x07060302")
    for k in range(8):
        g("v_perm_b32 %s, %s, %s, s3" % (v(WP + 2 * k), v(WO + 2 * k + 1), v(WO + 2 * k)))
        g("v_perm_b32 %s, %s, %s, s7" % (v(WP + 2 * k + 1), v(WO + 2 * k + 1), v(WO + 2 * k)))
    tile(0, 24, 16, False)
    tile(1, 8, 0, False)
    g.stamp(3)
    g.red_swap("v_add_f32", [LS], [T1])
    g("v_and_b32 v3, 3, v0")
    g("v_lshlrev_b32 %s, 5, v3" % v(T0))
    g("s_lshl_b32 s3, s24, 2")
    g("s_add_u32 s3, s3, %d" % ML)
    g("v_add_u32 %s, s3, %s" % (v(T0), v(T0)))
    g("v_lshlrev_b32 v3, 9, v3")
    g("v_lshl_or_b32 v3, v1, 4, v3")
    g("s_lshl_b32 s3, s24, 11")
    g("s_add_u32 s3, s3, %d" % COMB)
    g("v_add_u32 v3, s3, v3")
    g("s_mov_b32 exec_lo, 0x000f000f"); g("s_mov_b32 exec_hi, 0x000f000f")
    for n in range(8): g("ds_write_b128 v3, %s offset:%d" % (v(O + 4 * n, 4), 64 * n))
    g("ds_write2_b32 %s, %s, %s offset0:0 offset1:4" % (v(T0), v(M), v(LS)))
    g("s_mov_b64 exec, -1")
    g("s_lshl_b32 s3, s24, 9")
    g("s_add_u32 s3, s3, %d" % COMB)
    g("v_lshl_add_u32 v3, v0, 3, s3")
    g("s_lshl_b32 s3, s24, 5")
    g("s_add_u32 s3, s3, %d" % ML)
    g("v_mov_b32 v4, s3")
    g("v_mov_b32 v5, %d" % GA)
    g("s_waitcnt lgkmcnt(0)")
    g("s_barrier")
    g.stamp(4)
    A = 40
    g("ds_read_b128 %s, v4" % v(A, 4))
    g("ds_read_b128 %s, v4 offset:16" % v(A + 4, 4))
    for w in range(4): g("ds_read_b64 %s, v3 offset:%d" % (v(A + 8 + 2 * w, 2), 2048 * w))
    g("ds_read_b32 %s, v5 offset:16" % v(A + 19))
    g("ds_read_b128 %s, v5" % v(A + 20, 4))
    g("s_lshl_b32 s3, s25, 2"); g("s_add_u32 s3, s3, s24"); g("s_lshl_b32 s3, s3, 15")
    g("s_lshl_b32 s7, s26, 7"); g("s_add_u32 s3, s3, s7"); g("s_add_u32 s3, s3, %d" % WS_B1)
    g("v_lshrrev_b32 v6, 3, v0"); g("v_lshlrev_b32 v6, 12, v6")
    g("v_and_b32 v7, 7, v0"); g("v_lshl_or_b32 v6, v7, 4, v6")
    g("v_lshlrev_b32 v8, 4, v0")
    g("s_lshl_b32 s4, s2, 12"); g("s_add_u32 s5, s4, %d" % WS_B2); g("s_add_u32 s4, s4, %d" % WS_B1)
    g("s_waitcnt lgkmcnt(6)")
    g("v_max3_f32 %s, %s, %s, %s" % (v(T0), v(A), v(A + 1), v(A + 2)))
    g("v_max_f32 %s, %s, %s" % (v(T0), v(T0), v(A + 3)))
    for w in range(4): g("v_sub_f32 %s, %s, %s" % (v(A + w), v(A + w), v(T0)))
    for w in range(4): g("v_mul_f32 %s, s6, %s" % (v(A + w), v(A + w)))
    for w in range(4): g("v_exp_f32 %s, %s" % (v(A + w), v(A + w)))
    g("s_waitcnt lgkmcnt(1)")
    g("v_mul_f32 %s, %s, %s" % (v(T1), v(A), v(A + 4)))
    g("v_mul_f32 %s, %s, %s" % (v(A + 16), v(A), v(A + 8)))
    g("v_mul_f32 %s, %s, %s" % (v(A + 17), v(A), v(A + 9)))
    for w in range(1, 4):
        g("v_fmac_f32 %s, %s, %s" % (v(T1), v(A + w), v(A + 4 + w)))
        g("v_fmac_f32 %s, %s, %s" % (v(A + 16), v(A + w), v(A + 8 + 2 * w)))
        g("v_fmac_f32 %s, %s, %s" % (v(A + 17), v(A + w), v(A + 9 + 2 * w)))
    g("v_rcp_f32 %s, %s" % (v(T2), v(T1)))
    g("v_log_f32 %s, %s" % (v(A + 18), v(T1)))
    g("v_readfirstlane_b32 s30, %s" % v(A + 19))
    g("v_mul_f32 %s, %s, %s" % (v(A + 16), v(T2), v(A + 16)))
    g("v_mul_f32 %s, %s, %s" % (v(A + 17), v(T2), v(A + 17)))
    g("v_fmac_f32 %s, s6, %s" % (v(A + 18), v(T0)))
    g("buffer_store_dwordx4 %s, v6, s[20:23], s3 offen sc1" % v(A + 16, 4))
    B = 72
    g.poll("L_p1", ["buffer_load_dwordx4 %s, v8, s[20:23], s4 offen offset:%d sc1" % (v(B + 4 * u, 4), 1024 * u) for u in range(4)],
           [B + 4 * u + 3 for u in range(4)], o["pollsleep"])
    g.stamp(5)
    g("v_max3_f32 %s, %s, %s, %s" % (v(T0), v(B + 2), v(B + 6), v(B + 10)))
    g("v_max_f32 %s, %s, %s" % (v(T0), v(T0), v(B + 14)))
    g.red_dpp("v_max_f32", [T0], ["row_ror:8"])
    g.red_swap("v_max_f32", [T0], [T1])
    for u in range(4): g("v_sub_f32 %s, %s, %s" % (v(B + 4 * u + 2), v(B + 4 * u + 2), v(T0)))
    for u in range(4): g("v_exp_f32 %s, %s" % (v(B + 4 * u + 2), v(B + 4 * u + 2)))
    g("s_lshl_b32 s3, s24, 18"); g("s_lshl_b32 s7, s2, 4"); g("s_add_u32 s3, s3, s7"); g("s_add_u32 s3, s3, %d" % WS_B2)
    g("v_lshlrev_b32 v6, 12, v0")
    R0, R1, R2 = 4, 5, 9
    g("v_mul_f32 %s, %s, %s" % (v(R0), v(B + 2), v(B)))
    g("v_mul_f32 %s, %s, %s" % (v(R1), v(B + 2), v(B + 1)))
    g("v_add_f32 %s, %s, %s" % (v(R2), v(B + 2), v(B + 6)))
    for u in range(1, 4):
        g("v_fmac_f32 %s, %s, %s" % (v(R0), v(B + 4 * u + 2), v(B + 4 * u)))
        g("v_fmac_f32 %s, %s, %s" % (v(R1), v(B + 4 * u + 2), v(B + 4 * u + 1)))
        if u > 1: g("v_add_f32 %s, %s, %s" % (v(R2), v(R2), v(B + 4 * u + 2)))
    g.red_dpp("v_add_f32", [R0, R1, R2], ["row_ror:8"])
    g.red_swap("v_add_f32", [R0, R1, R2], [T0, T1, T2])
    g("v_rcp_f32 %s, %s" % (v(R2), v(R2)))
    g("v_mov_b32 %s, 0" % v(A)); g("v_mov_b32 %s, 0" % v(A + 1))
    g("v_mul_f32 %s, %s, %s" % (v(R0), v(R2), v(R0)))
    g("v_mul_f32 %s, %s, %s" % (v(R1), v(R2), v(R1)))
    g("v_cvt_pk_bf16_f32 %s, %s, %s" % (v(R0), v(R0), v(R1)))
    g("v_mov_b32 %s, 0" % v(A + 2)); g("v_mov_b32 %s, s30" % v(A + 3))
    for k in range(8):
        for e in range(2):
            g("v_dot2c_f32_bf16_dpp %s, %s, %s row_newbcast:%d row_mask:0xf bank_mask:0xf" % (v(A + e), v(R0), v(WP + 2 * k + e), k))
    g.nop(3)
    g("buffer_store_dwordx4 %s, v6, s[20:23], s3 offen sc1" % v(A, 4))
    g("s_cmp_lg_u32 s24, 0")
    g("s_cbranch_scc1 L_end")
    g.srd(16, 50, 1024)
    g.poll("L_p2", ["buffer_load_dwordx4 %s, v8, s[20:23], s5 offen offset:%d sc1" % (v(B + 4 * u, 4), 1024 * u) for u in range(4)],
           [B + 4 * u + 3 for u in range(4)], o["pollsleep"])
    g.stamp(6)
    g("v_add_f32 %s, %s, %s" % (v(R0), v(B), v(B + 4)))
    g("v_add_f32 %s, %s, %s" % (v(R1), v(B + 1), v(B + 5)))
    g("v_add_f32 %s, %s, %s" % (v(T0), v(B + 8), v(B + 12)))
    g("v_add_f32 %s, %s, %s" % (v(T1), v(B + 9), v(B + 13)))
    g("v_add_f32 %s, %s, %s" % (v(R0), v(R0), v(T0)))
    g("v_add_f32 %s, %s, %s" % (v(R1), v(R1), v(T1)))
    g.red_wave("v_add_f32", [R0, R1], [T0, T1])
    g.rbf([(R0, R1)], T0)
    g("v_mul_f32 %s, %s, %s" % (v(R0), v(R0), v(A + 20)))
    g("v_mul_f32 %s, %s, %s" % (v(R1), v(R1), v(A + 21)))
    g.rbf([(R0, R1)], T0)
    g("v_add_f32 %s, %s, %s" % (v(R0), v(R0), v(A + 22)))
    g("v_add_f32 %s, %s, %s" % (v(R1), v(R1), v(A + 23)))
    g("v_cvt_pk_bf16_f32 %s, %s, %s" % (v(R0), v(R0), v(R1)))
    g("s_lshl_b32 s3, s2, 2")
    g("s_mov_b64 exec, 1")
    g("buffer_store_dword %s, off, s[16:19], s3" % v(R0))
    g("s_cmp_lg_u32 s2, 0")
    g("s_cbranch_scc1 L_noep")
    g("buffer_store_dword %s, off, s[20:23], 0 offset:%d sc1" % (v(A + 3), WS_EPOCH))
    g.lab("L_noep")
    g.stamp(7)
    g.write_stamps([0, 1, 2, 3, 4, 5, 6, 7])
    g("s_endpgm")

    g.lab("L_aux")
    X, XF, TT = 4, 8, 16
    g("v_lshlrev_b32 v3, 4, v0")
    g("s_and_b32 s3, s26, 7"); g("s_lshl_b32 s3, s3, 6")
    g("s_lshr_b32 s7, s26, 3"); g("s_lshl_b32 s7, s7, 4"); g("s_add_u32 s27, s3, s7")
    g("s_lshl_b32 s3, s25, 9"); g("s_add_u32 s3, s3, s27"); g("s_lshl_b32 s3, s3, 1")
    g("v_lshrrev_b32 %s, 1, v0" % v(TT)); g("v_lshlrev_b32 %s, 13, %s" % (v(TT), v(TT)))
    g("v_and_b32 %s, 1, v0" % v(TT + 1)); g("v_lshl_or_b32 %s, %s, 4, %s" % (v(TT), v(TT + 1), v(TT)))
    g("v_add_u32 %s, s3, %s" % (v(TT), v(TT)))
    g("s_waitcnt lgkmcnt(0)")
    g.srd(8, 32, 1024)
    g.srd(12, 38, 512 * 8192)
    g.srd(20, 54, WS_SIZE)
    g("buffer_load_dwordx4 %s, v3, s[8:11], 0 offen" % v(X, 4))
    g("buffer_load_dword %s, off, s[20:23], 0 offset:%d sc1" % (v(TT + 1), WS_EPOCH))
    g("s_mov_b32 s4, 0")
    for u in range(16):
        g("s_mov_b32 m0, %d" % (STAGE + u * 1024))
        if u: g("s_add_u32 s4, s4, 0x40000")
        else: g("s_nop 0")
        g("buffer_load_dwordx4 %s, s[12:15], s4 offen nt lds" % v(TT))
    g("s_lshl_b32 s3, s2, 2")
    g("buffer_load_dword %s, off, s[8:11], s3" % v(TT + 2))
    g("s_waitcnt vmcnt(17)")
    g("v_readfirstlane_b32 s30, %s" % v(TT + 1))
    for e in range(4):
        g("v_lshlrev_b32 %s, 16, %s" % (v(XF + 2 * e), v(X + e)))
        g("v_and_b32 %s, 0xffff0000, %s" % (v(XF + 2 * e + 1), v(X + e)))
    g("s_mul_i32 s30, s30, 0x9e3779b1")
    g("s_add_u32 s30, s30, 0x7f4a7c15")
    a, b, c_ = TT + 3, TT + 4, TT + 5
    g("v_add_f32 %s, %s, %s" % (v(a), v(XF), v(XF + 1)))
    for e in range(2, 8): g("v_add_f32 %s, %s, %s" % (v(a), v(a), v(XF + e)))
    g.red_wave("v_add_f32", [a], [b])
    g("v_mul_f32 %s, %s, %s" % (v(a), hx(f2u(1.0 / 512)), v(a)))
    g("v_sub_f32 %s, %s, %s" % (v(c_), v(XF), v(a)))
    g("v_mul_f32 %s, %s, %s" % (v(b), v(c_), v(c_)))
    for e in range(1, 8):
        g("v_sub_f32 %s, %s, %s" % (v(c_), v(XF + e), v(a)))
        g("v_fmac_f32 %s, %s, %s" % (v(b), v(c_), v(c_)))
    g.red_wave("v_add_f32", [b], [c_])
    g("v_mul_f32 %s, %s, %s" % (v(b), hx(f2u(1.0 / 512)), v(b)))
    g.rbf([(a, b)], c_)
    g("v_add_f32 %s, %s, %s" % (v(b), hx(f2u(1e-5)), v(b)))
    g.rbf([(b, b)], c_)
    g("v_sqrt_f32 %s, %s" % (v(b), v(b)))
    for e in range(8): g("v_sub_f32 %s, %s, %s" % (v(XF + e), v(XF + e), v(a)))
    g.rbf([(b, b)], c_)
    g("v_rcp_f32 %s, %s" % (v(a), v(b)))
    g.rbf([(XF + 2 * e, XF + 2 * e + 1) for e in range(4)], c_)
    for e in range(8):
        g("v_mul_f32 %s, %s, %s" % (v(c_), v(XF + e), v(a)))
        g("v_fma_f32 %s, -%s, %s, %s" % (v(XF + e), v(c_), v(b), v(XF + e)))
        g("v_fma_f32 %s, %s, %s, %s" % (v(XF + e), v(XF + e), v(a), v(c_)))
    for e in range(4): g("v_cvt_pk_bf16_f32 %s, %s, %s" % (v(X + e), v(XF + 2 * e), v(XF + 2 * e + 1)))
    g("v_add_u32 %s, %d, v3" % (v(a), XN))
    g("ds_write_b128 %s, %s" % (v(a), v(X, 4)))
    XA, WA, D = 24, 25, 28
    FB = 32
    g("v_lshlrev_b32 %s, 4, v1" % v(XA)); g("v_add_u32 %s, %d, %s" % (v(XA), XN, v(XA)))
    g("v_lshrrev_b32 %s, 2, v2" % v(a))
    g("v_lshl_add_u32 %s, v1, 3, %s" % (v(a), v(a)))
    g("v_and_b32 %s, 3, v0" % v(b))
    g("v_lshlrev_b32 %s, 5, %s" % (v(WA), v(a)))
    g("v_lshl_or_b32 %s, %s, 3, %s" % (v(WA), v(b), v(WA)))
    g("v_add_u32 %s, %d, %s" % (v(WA), STAGE, v(WA)))
    def chain(tstep, estep):
        def rd(grp):
            for k in range(4):
                t = 4 * grp + k; r0 = FB + 32 * (grp & 1) + 8 * k
                g("ds_read_b128 %s, %s offset:%d" % (v(r0, 4), v(XA), 64 * t))
                g("ds_read_b64_tr_b16 %s, %s offset:%d" % (v(r0 + 4, 2), v(WA), tstep * t))
                g("ds_read_b64_tr_b16 %s, %s offset:%d" % (v(r0 + 6, 2), v(WA), tstep * t + estep))
        rd(0)
        for grp in range(4):
            g("s_waitcnt lgkmcnt(0)")
            if grp < 3: rd(grp + 1)
            for k in range(4):
                r0 = FB + 32 * (grp & 1) + 8 * k
                g("v_mfma_f32_16x16x32_bf16 %s, %s, %s, %s" % (v(D, 4), v(r0 + 4, 4), v(r0, 4), "0" if grp == 0 and k == 0 else v(D, 4)))
    g("s_waitcnt vmcnt(0) lgkmcnt(0)")
    g.stamp(8)
    chain(1024, 128)
    g("s_lshl_b32 s3, s25, 11"); g("s_add_u32 s4, s3, %d" % WS_Q)
    g("s_lshl_b32 s3, s27, 2"); g("s_add_u32 s3, s3, s4")
    g("v_lshlrev_b32 %s, 4, v1" % v(a))
    g("v_mov_b32 %s, s30" % v(FB + 1)); g("v_mov_b32 %s, s30" % v(FB + 3))
    g.nop(2)
    g("v_cvt_pk_bf16_f32 %s, %s, %s" % (v(FB), v(D), v(D + 1)))
    g("v_cvt_pk_bf16_f32 %s, %s, %s" % (v(FB + 2), v(D + 2), v(D + 3)))
    g("s_mov_b32 exec_lo, 0x00010001"); g("s_mov_b32 exec_hi, 0x00010001")
    g("buffer_store_dwordx4 %s, %s, s[20:23], s3 offen sc1" % (v(FB, 4), v(a)))
    g("s_mov_b64 exec, -1")
    g.stamp(9)
    QB = 40
    g.poll("L_pq", ["buffer_load_dwordx4 %s, v3, s[20:23], s4 offen offset:%d sc1" % (v(QB + 4 * u, 4), 1024 * u) for u in range(2)],
           [QB + 1, QB + 3, QB + 5, QB + 7])
    g.stamp(10)
    g("v_lshlrev_b32 %s, 3, v0" % v(a)); g("v_add_u32 %s, %d, %s" % (v(a), QA, v(a)))
    g("v_mov_b32 %s, %s" % (v(QB + 1), v(QB + 2))); g("v_mov_b32 %s, %s" % (v(QB + 5), v(QB + 6)))
    g("ds_write_b64 %s, %s" % (v(a), v(QB, 2)))
    g("ds_write_b64 %s, %s offset:512" % (v(a), v(QB + 4, 2)))
    g("s_waitcnt lgkmcnt(0)")
    g("s_barrier")
    GR = 100
    for e in range(4):
        g("v_mov_b32 %s, 0" % v(GR + 4 * e)); g("v_mov_b32 %s, 0" % v(GR + 4 * e + 1))
        g("v_mov_b32 %s, 0" % v(GR + 4 * e + 2)); g("v_mov_b32 %s, s30" % v(GR + 4 * e + 3))
    g("s_and_b32 s3, s2, 7"); g("s_lshr_b32 s7, s2, 6"); g("s_lshl_b32 s7, s7, 3"); g("s_add_u32 s3, s3, s7")
    g("s_cmp_ge_u32 s3, 28")
    g("s_cbranch_scc1 L_fpub")
    g("s_lshl_b32 s3, s3, 6"); g("s_bfe_u32 s7, s2, 0x30003"); g("s_lshl_b32 s7, s7, 3"); g("s_add_u32 s27, s3, s7")
    g.srd(12, 44, 512 * 3584)
    g.srd(16, 46, 512 * 3584)
    g("s_lshl_b32 s3, s27, 10")
    g.srd(8, 48, 8192, "s3")
    g("s_lshl_b32 s3, s27, 1")
    g("v_mul_u32_u24 %s, 3584, v0" % v(TT)); g("v_add_u32 %s, s3, %s" % (v(TT), v(TT)))
    for mtx in range(2):
        g("s_mov_b32 s4, 0")
        for u in range(8):
            g("s_mov_b32 m0, %d" % (STAGE + mtx * 8192 + u * 1024))
            if u: g("s_add_u32 s4, s4, %d" % (64 * 3584))
            else: g("s_nop 0")
            g("buffer_load_dwordx4 %s, %s, s4 offen nt lds" % (v(TT), s(12 + 4 * mtx, 4)))
    WD = 120
    for r in range(8):
        g("buffer_load_dwordx4 %s, v3, s[8:11], %s offen offset:%d nt" % (v(WD + 4 * r, 4), "s92" if r >= 4 else "0", (r & 3) * 1024))
    g("v_lshrrev_b32 %s, 2, v2" % v(a))
    g("v_lshl_add_u32 %s, v1, 3, %s" % (v(a), v(a)))
    g("v_lshlrev_b32 %s, 4, %s" % (v(WA), v(a)))
    g("v_and_b32 %s, 1, v0" % v(b)); g("v_lshl_or_b32 %s, %s, 3, %s" % (v(WA), v(b), v(WA)))
    g("v_bfe_u32 %s, v0, 1, 1" % v(b)); g("v_lshl_or_b32 %s, %s, 13, %s" % (v(WA), v(b), v(WA)))
    g("v_add_u32 %s, %d, %s" % (v(WA), STAGE, v(WA)))
    g("s_waitcnt vmcnt(8)")
    chain(512, 64)
    g.nop(8)
    g.rbf([(D, D + 1), (D + 2, D + 3)], c_)
    U_ = 32
    for r in range(4): g("v_mov_b32 %s, %s" % (v(U_ + r), v(D + r)))
    g.nop(1)
    for r in range(4): g("v_permlane32_swap_b32 %s, %s" % (v(U_ + r), v(D + r)))
    k1 = -2.0 * math.sqrt(2.0 / math.pi) * math.log2(math.e)
    g("s_mov_b32 s3, %s" % hx(f2u(0.044715))); g("s_mov_b32 s7, %s" % hx(f2u(k1)))
    E = 36
    for r in range(4): g("v_mul_f32 %s, %s, %s" % (v(E + r), v(U_ + r), v(U_ + r)))
    for r in range(4): g("v_fma_f32 %s, %s, s3, 1.0" % (v(E + r), v(E + r)))
    for r in range(4): g("v_mul_f32 %s, %s, %s" % (v(E + r), v(E + r), v(U_ + r)))
    for r in range(4): g("v_mul_f32 %s, s7, %s" % (v(E + r), v(E + r)))
    for r in range(4): g("v_exp_f32 %s, %s" % (v(E + r), v(E + r)))
    for r in range(4): g("v_add_f32 %s, 1.0, %s" % (v(E + r), v(E + r)))
    for r in range(4): g("v_rcp_f32 %s, %s" % (v(E + r), v(E + r)))
    for r in range(4): g("v_mul_f32 %s, %s, %s" % (v(E + r), v(E + r), v(U_ + r)))
    g.rbf([(E, E + 1), (E + 2, E + 3)], c_)
    for r in range(4): g("v_mul_f32 %s, %s, %s" % (v(E + r), v(E + r), v(D + r)))
    g.rbf([(E, E + 1), (E + 2, E + 3)], c_)
    g("s_nop 0")
    for r in range(8): g("v_readlane_b32 %s, %s, %d" % (s(32 + r), v(E + (r & 3)), 16 * (r >> 2)))
    g("s_waitcnt vmcnt(0)")
    for r in range(8):
        for e in range(4):
            g("v_lshlrev_b32 %s, 16, %s" % (v(a), v(WD + 4 * r + e)))
            g("v_and_b32 %s, 0xffff0000, %s" % (v(b), v(WD + 4 * r + e)))
            g("v_fmac_f32 %s, %s, %s" % (v(GR + 4 * e), s(32 + r), v(a)))
            g("v_fmac_f32 %s, %s, %s" % (v(GR + 4 * e + 1), s(32 + r), v(b)))
    g.lab("L_fpub")
    g("s_lshl_b32 s3, s2, 4"); g("s_add_u32 s3, s3, %d" % WS_BF)
    g("v_lshlrev_b32 %s, 14, v0" % v(a)); g("v_add_u32 %s, s3, %s" % (v(a), v(a)))
    for e in range(4):
        g("buffer_store_dwordx4 %s, %s, s[20:23], %s offen sc1" % (v(GR + 4 * e, 4), v(a), ("0", "s92", "s93", "s94")[e]))
    g.stamp(11)
    g("s_lshl_b32 s4, s2, 12"); g("s_add_u32 s4, s4, %d" % WS_BF)
    g.poll("L_pf", ["buffer_load_dwordx4 %s, v3, s[20:23], s4 offen offset:%d sc1" % (v(QB + 4 * u, 4), 1024 * u) for u in range(4)],
           [QB + 4 * u + 3 for u in range(4)], 32)
    g.stamp(12)
    g("v_add_f32 %s, %s, %s" % (v(E), v(QB), v(QB + 4)))
    g("v_add_f32 %s, %s, %s" % (v(E + 1), v(QB + 1), v(QB + 5)))
    g("v_add_f32 %s, %s, %s" % (v(a), v(QB + 8), v(QB + 12)))
    g("v_add_f32 %s, %s, %s" % (v(b), v(QB + 9), v(QB + 13)))
    g("v_add_f32 %s, %s, %s" % (v(E), v(E), v(a)))
    g("v_add_f32 %s, %s, %s" % (v(E + 1), v(E + 1), v(b)))
    g.red_wave("v_add_f32", [E, E + 1], [a, b])
    g.rbf([(E, E + 1)], c_)
    g("s_mov_b32 s7, %s" % hx(f2u(-math.log2(math.e))))
    g("v_mul_f32 %s, s7, %s" % (v(a), v(E))); g("v_mul_f32 %s, s7, %s" % (v(b), v(E + 1)))
    g("v_exp_f32 %s, %s" % (v(a), v(a))); g("v_exp_f32 %s, %s" % (v(b), v(b)))
    g("v_lshlrev_b32 %s, 16, %s" % (v(E + 2), v(TT + 2)))
    g("v_add_f32 %s, 1.0, %s" % (v(a), v(a))); g("v_add_f32 %s, 1.0, %s" % (v(b), v(b)))
    g("v_rcp_f32 %s, %s" % (v(a), v(a))); g("v_rcp_f32 %s, %s" % (v(b), v(b)))
    g("v_and_b32 %s, 0xffff0000, %s" % (v(E + 3), v(TT + 2)))
    g("v_mul_f32 %s, %s, %s" % (v(E), v(E), v(a))); g("v_mul_f32 %s, %s, %s" % (v(E + 1), v(E + 1), v(b)))
    g.rbf([(E, E + 1)], c_)
    g("v_mov_b32 %s, %d" % (v(a), GA)); g("v_mov_b32 %s, s30" % v(b))
    g("s_mov_b64 exec, 1")
    g("ds_write_b128 %s, %s" % (v(a), v(E, 4)))
    g("ds_write_b32 %s, %s offset:16" % (v(a), v(b)))
    g("s_mov_b64 exec, -1")
    g.write_stamps([8, 9, 10, 11, 12])
    g("s_waitcnt lgkmcnt(0)")
    g("s_barrier")
    g.lab("L_end")
    g("s_endpgm")

    out = HEADER + "; @launch grid=(256,1,1) block=(320,1,1) lds=%d\n" % LDS_BYTES
    out += '.amdgcn_target "amdgcn-amd-amdhsa--gfx950"\n.text\n.globl %s_kernel\n.p2align 8\n.type %s_kernel,@function\n%s_kernel:\n' % (KNAME, KNAME, KNAME)
    out += "\n".join(g.L) + "\n"
    out += """.section .rodata,"a"
.p2align 6
.amdhsa_kernel %s_kernel
  .amdhsa_next_free_vgpr 160
  .amdhsa_next_free_sgpr 96
  .amdhsa_accum_offset 160
  .amdhsa_group_segment_fixed_size 0
  .amdhsa_kernarg_size 96
  .amdhsa_user_sgpr_count 2
  .amdhsa_user_sgpr_kernarg_segment_ptr 1
  .amdhsa_system_sgpr_workgroup_id_x 1
.end_amdhsa_kernel
""" % KNAME
    return out

if __name__ == "__main__":
    import hazcheck
    names = []
    for spec in sys.argv[1:]:
        parts = spec.split(",")
        fn = parts[0]
        opts = {}
        for p in parts[1:]:
            k, x = p.split("=")
            opts[k] = int(x)
        txt = gen(**opts)
        nb = hazcheck.check(txt)
        assert nb == 0, "hazards found"
        open(fn, "w").write(txt)
        names.append(fn)
    print(" ".join(names))
```

```python
import sys, struct, math
KNAME = "recurrent_scan__gqa_block_cached__geglu_ffn__decode"

def f2u(x): return struct.unpack("<I", struct.pack("<f", x))[0]
def hx(x): return "0x%x" % (x & 0xffffffff)
def v(n, c=1): return "v%d" % n if c == 1 else "v[%d:%d]" % (n, n + c - 1)
def s(n, c=1): return "s%d" % n if c == 1 else "s[%d:%d]" % (n, n + c - 1)

STAGE = 131072
XN = 147456
QA = 148480
ML = 149504
GA = 150016
TAGA = 150144
OA = 150272
HA = 150528
COMB = 151552
LDS_BYTES = 163840
WS_EPOCH = 0
WS_Q = 0x1000
WS_CNT = 0x8000
WS_B1 = 0x100000
WS_B2 = 0x200000
WS_FA = 0x300000
WS_FB = 0x380000
WS_SIZE = 0x400000
STAMP_OFF = 256 << 20
LOG2E = math.log2(math.e)

HEADER = """; Kernarg layout for this problem (96 bytes, ptrs only, base s[0:1]):
"""

class G:
    def __init__(self, **o):
        self.L = []
        self.o = dict(stamps=0, D=8, Dl=0, rot=786432, noffn=0, auxprio=3, reh=1, round=1, wqnt=1, wqrot=1,
                      pad1=128, pad2=128, S=24, nostream=0, fsleep=8, b0=3, qsleep=2, wqmode=0, ffnlate=0, nowo=0, ack=1, P=1, cstride=4096, ts=0, stage=1)
        for k in o: assert k in self.o, k
        self.o.update(o)
    def __call__(self, x): self.L.append("    " + x)
    def lab(self, x): self.L.append(x + ":")
    def c(self, x): self.L.append("    ; " + x)
    def nop(self, n):
        while n > 0:
            k = min(n, 16); self("s_nop %d" % (k - 1)); n -= k
    def stamp(self, i):
        if self.o["stamps"]: self("s_memrealtime %s" % s(64 + 2 * i, 2))
    def write_stamps(self, idx):
        if not self.o["stamps"]: return
        self("s_waitcnt lgkmcnt(0)")
        self("s_lshl_b32 s3, s2, 7")
        self("s_add_u32 s3, s3, %d" % STAMP_OFF)
        self("v_mov_b32 v1, s3")
        for i in idx:
            self("v_mov_b32 v2, %s" % s(64 + 2 * i)); self("v_mov_b32 v3, %s" % s(65 + 2 * i))
            self("global_store_dwordx2 v1, v[2:3], s[54:55] offset:%d" % (8 * i))
        if 0 in idx:
            self("s_getreg_b32 s3, hwreg(HW_REG_XCC_ID)")
            self("v_mov_b32 v2, s3"); self("v_mov_b32 v3, s95")
            self("global_store_dwordx2 v1, v[2:3], s[54:55] offset:120")
    def srd(self, d, base, size, add=None):
        if add is None:
            self("s_mov_b32 %s, %s" % (s(d), s(base))); self("s_mov_b32 %s, %s" % (s(d + 1), s(base + 1)))
        else:
            self("s_add_u32 %s, %s, %s" % (s(d), s(base), add)); self("s_addc_u32 %s, %s, 0" % (s(d + 1), s(base + 1)))
        self("s_mov_b32 %s, %s" % (s(d + 2), size if isinstance(size, str) else hx(size))); self("s_mov_b32 %s, 0x20000" % s(d + 3))
    def red_dpp(self, op, rs, ctrls):
        for ct in ctrls:
            self.nop(max(0, 2 - (len(rs) - 1)))
            for r in rs: self("%s_dpp %s, %s, %s %s row_mask:0xf bank_mask:0xf" % (op, v(r), v(r), v(r), ct))
    def red_swap(self, op, rs, ts):
        for sw in ("v_permlane16_swap_b32", "v_permlane32_swap_b32"):
            for r, t in zip(rs, ts): self("v_mov_b32 %s, %s" % (v(t), v(r)))
            self.nop(max(0, 2 - (len(rs) - 1)))
            for r, t in zip(rs, ts): self("%s %s, %s" % (sw, v(t), v(r)))
            for r, t in zip(rs, ts): self("%s %s, %s, %s" % (op, v(r), v(t), v(r)))
    def red_wave(self, op, rs, ts):
        self.red_dpp(op, rs, ["quad_perm:[1,0,3,2]", "quad_perm:[2,3,0,1]", "row_half_mirror", "row_mirror"])
        self.red_swap(op, rs, ts)
    def tswap(self, sw, pairs):
        self.nop(2)
        for a, b in pairs: self("%s %s, %s" % (sw, v(a), v(b)))
        for a, b in pairs: self("v_add_f32 %s, %s, %s" % (v(a), v(a), v(b)))
    def rbf(self, pairs, t):
        for a, b in pairs:
            self("v_cvt_pk_bf16_f32 %s, %s, %s" % (v(t), v(a), v(b)))
            self("v_lshlrev_b32 %s, 16, %s" % (v(a), v(t)))
            if b != a: self("v_and_b32 %s, 0xffff0000, %s" % (v(b), v(t)))
    def tstamp(self, i):
        if self.o["ts"] == 1: self.stamp(i)
    def poll(self, name, loads, tagregs, sleep=0, st=None):
        self("s_mov_b32 s31, 0x40000")
        if self.o["ack"]: self("s_waitcnt vmcnt(0)")
        if st is not None: self.tstamp(st)
        self.lab(name)
        for l in loads: self(l)
        self("s_waitcnt vmcnt(0)")
        self("v_cmp_ne_u32 vcc, s30, %s" % v(tagregs[0]))
        for k, t in enumerate(tagregs[1:]):
            self("v_cmp_ne_u32 %s, s30, %s" % (s(96 + 2 * (k & 1), 2), v(t)))
            if k & 1 or k == len(tagregs) - 2:
                for kk in range(k & ~1, k + 1): self("s_or_b64 vcc, vcc, %s" % s(96 + 2 * (kk & 1), 2))
        self("s_cbranch_vccz %s_done" % name)
        if sleep: self("s_sleep %d" % sleep)
        self("s_sub_u32 s31, s31, 1")
        self("s_cbranch_scc0 %s" % name)
        self.lab(name + "_done")

def gen(**opts):
    g = G(**opts); o = g.o
    CS1 = 8192 + o["pad1"]; CS2 = 4096 + o["pad2"]; CSA = 8192 + 128; CSB = 2048 + 128
    g("s_cmp_ge_u32 s2, 256")
    g("s_cbranch_scc1 L_end")
    g("s_load_dwordx16 s[32:47], s[0:1], 0")
    g("s_load_dwordx8 s[48:55], s[0:1], 64")
    g.stamp(0)
    g("v_lshrrev_b32 v1, 6, v0")
    g("v_and_b32 v0, 63, v0")
    g("v_readfirstlane_b32 s24, v1")
    g("s_lshr_b32 s25, s2, 5")
    g("s_and_b32 s26, s2, 31")
    g("v_lshrrev_b32 v1, 4, v0")
    g("v_and_b32 v2, 15, v0")
    g("s_lshl_b32 s28, s25, 3"); g("s_add_u32 s28, s28, s26")
    g("s_cmp_eq_u32 s24, 4")
    g("s_cbranch_scc1 L_aux")
    KS, VS, KA, VA, TK = 4, 8, 10, 14, 22
    QF, F, VF, S, P = 24, 40, 56, 72, 76
    M, LS, AL, NM, T0, T1, T2, CA = 78, 79, 80, 81, 82, 83, 84, 85
    SG = 120
    O, WX, WO = 88, 120, 121
    CW, MW, CR, MR, H1A, P1A, OW, OR, H2A, P2A, GR, OUTA = range(185, 197)
    NV = 200
    def tail_addr():
        g("v_and_b32 v3, 3, v0")
        g("s_lshl_b32 s3, s24, 11"); g("s_add_u32 s3, s3, %d" % COMB)
        g("v_lshlrev_b32 %s, 9, v3" % v(CW)); g("v_lshl_or_b32 %s, v1, 4, %s" % (v(CW), v(CW))); g("v_add_u32 %s, s3, %s" % (v(CW), v(CW)))
        g("s_lshl_b32 s3, s24, 2"); g("s_add_u32 s3, s3, %d" % ML)
        g("v_lshl_add_u32 %s, v3, 6, s3" % v(MW))
        g("s_lshl_b32 s3, s24, 9"); g("s_add_u32 s3, s3, %d" % COMB)
        g("v_and_b32 %s, 31, v0" % v(CR)); g("v_lshl_add_u32 %s, %s, 4, s3" % (v(CR), v(CR)))
        g("s_lshl_b32 s3, s24, 6"); g("s_add_u32 s3, s3, %d" % ML); g("v_mov_b32 %s, s3" % v(MR))
        g("s_lshl_b32 s3, s25, 2"); g("s_add_u32 s3, s3, s24"); g("s_mul_i32 s3, s3, %d" % (2 * CS1))
        g("s_lshl_b32 s7, s26, 8"); g("s_add_u32 s3, s3, s7"); g("s_add_u32 s3, s3, %d" % WS_B1)
        g("v_and_b32 %s, 1, v1" % v(H1A)); g("v_mul_u32_u24 %s, %d, %s" % (v(H1A), CS1, v(H1A)))
        g("v_lshl_add_u32 %s, v2, 4, %s" % (v(H1A), v(H1A))); g("v_add_u32 %s, s3, %s" % (v(H1A), v(H1A)))
        g("s_mul_i32 s3, s28, %d" % CS1); g("s_lshl_b32 s7, s24, 6"); g("s_add_u32 s3, s3, s7"); g("s_add_u32 s3, s3, %d" % WS_B1)
        g("v_lshrrev_b32 %s, 2, v0" % v(H2A))
        g("v_lshlrev_b32 %s, 9, %s" % (v(P1A), v(H2A))); g("v_lshl_or_b32 %s, v3, 4, %s" % (v(P1A), v(P1A))); g("v_add_u32 %s, s3, %s" % (v(P1A), v(P1A)))
        g("s_lshl_b32 s3, s24, 5"); g("s_add_u32 s3, s3, %d" % OA)
        g("v_lshl_add_u32 %s, v3, 3, s3" % v(OW))
        g("v_lshlrev_b32 %s, 2, v2" % v(OR)); g("v_add_u32 %s, %d, %s" % (v(OR), OA, v(OR)))
        g("s_mul_i32 s3, s24, %d" % (16 * CS2)); g("s_lshl_b32 s7, s28, 6"); g("s_add_u32 s3, s3, s7"); g("s_add_u32 s3, s3, %d" % WS_B2)
        g("v_mul_u32_u24 %s, %d, %s" % (v(H2A), CS2, v(H2A))); g("v_lshl_add_u32 %s, v3, 4, %s" % (v(H2A), v(H2A))); g("v_add_u32 %s, s3, %s" % (v(H2A), v(H2A)))
        g("s_mul_i32 s3, s28, %d" % CS2); g("s_lshl_b32 s7, s24, 4"); g("s_add_u32 s3, s3, s7"); g("s_add_u32 s3, s3, %d" % WS_B2)
        g("v_lshl_add_u32 %s, v0, 6, s3" % v(P2A))
        g("s_add_u32 s3, s7, %d" % GA); g("v_mov_b32 %s, s3" % v(GR))
        g("s_lshl_b32 s3, s28, 4"); g("s_lshl_b32 s7, s24, 2"); g("s_add_u32 s3, s3, s7"); g("v_mov_b32 %s, s3" % v(OUTA))
        g("s_mov_b32 s6, %s" % hx(f2u(LOG2E)))
    g("v_xor_b32 v3, v1, v2")
    g("v_lshlrev_b32 v3, 4, v3")
    g("v_lshl_or_b32 %s, v1, 8, v3" % v(KS))
    for u in range(1, 4): g("v_xor_b32 %s, %d, %s" % (v(KS + u), 64 * u, v(KS)))
    g("v_lshlrev_b32 v3, 1, v1")
    g("v_xor_b32 v3, v3, v2")
    g("v_lshlrev_b32 v3, 4, v3")
    g("v_lshl_or_b32 %s, v1, 8, v3" % v(VS))
    g("v_xor_b32 %s, 0x80, %s" % (v(VS + 1), v(VS)))
    PP = o["P"]; MEM = 32 // PP; NP = 4 * PP; LM = MEM.bit_length() - 1; LT = (NP * 4096).bit_length() - 1; SS = o["S"]
    g("s_lshr_b32 s61, s26, %d" % LM); g("s_lshl_b32 s61, s61, 2"); g("s_add_u32 s61, s61, s24")
    g("s_and_b32 s62, s26, %d" % (MEM - 1))
    g("s_lshl_b32 s27, s61, 12")
    g("s_mul_i32 s3, s25, %d" % o["rot"])
    g("s_add_u32 s27, s27, s3")
    g("s_lshl_b32 s5, s62, %d" % LT); g("s_add_u32 s5, s5, s27")
    g("s_lshl_b32 s29, s24, 15")
    g("s_lshl_b32 s3, s25, 24")
    g("s_waitcnt lgkmcnt(0)")
    g.srd(8, 34, 1 << 24, "s3")
    g.srd(12, 36, 1 << 24, "s3")
    g.srd(20, 54, WS_SIZE)
    if o["b0"] == 1: g("s_barrier")
    def issue(tensor, base, thr=None):
        srd = s(8, 4) if tensor == "K" else s(12, 4)
        g("s_add_u32 m0, s29, %d" % (base + (4096 if tensor == "V" else 0)))
        for u in range(4):
            if thr is not None and thr(u) is not None: g("s_waitcnt vmcnt(%d)" % thr(u))
            elif u == 0: g("s_nop 0")
            src = KS + u if tensor == "K" else VS + (u & 1)
            g("buffer_load_dwordx4 %s, %s, s4 offen offset:%d nt lds" % (v(src), srd, u * 1024))
    D, Dl = o["D"], o["Dl"]
    cnt = [0]
    def thr(u):
        k = cnt[0]; cnt[0] += 1
        if k < D or k >= 32 - Dl: return None
        return D - 1
    for slot in range(0 if o["nostream"] else 4):
        g("s_and_b32 s4, s5, 0xffffff")
        g("s_add_u32 s5, s5, 0x80000")
        issue("K", slot * 8192, thr)
        if slot == 0:
            g("v_xor_b32 v3, v1, v2")
            g("v_lshlrev_b32 v3, 4, v3")
            g("v_lshl_or_b32 v3, v2, 8, v3")
            g("v_add_u32 %s, s29, v3" % v(KA))
            for k in range(1, 4): g("v_xor_b32 %s, %d, %s" % (v(KA + k), 64 * k, v(KA)))
            g("v_lshrrev_b32 v3, 2, v0")
            g("v_and_b32 %s, 7, v3" % v(T0))
            g("v_lshlrev_b32 %s, 5, %s" % (v(T0), v(T0)))
            g("v_lshl_or_b32 v3, v3, 8, %s" % v(T0))
            g("v_and_b32 %s, 3, v0" % v(T0))
            g("v_lshl_or_b32 v3, %s, 3, v3" % v(T0))
            g("v_add_u32 %s, s29, v3" % v(VA))
            for n in range(1, 8): g("v_xor_b32 %s, %d, %s" % (v(VA + n), 32 * n, v(VA)))
        if slot == 0 and o["b0"] >= 2: g("s_barrier")
        issue("V", slot * 8192, thr)
        if slot == 0:
            for n in range(32): g("v_mov_b32 %s, 0" % v(O + n))
            g("v_mov_b32 %s, 0xff7fffff" % v(M))
            g("v_mov_b32 %s, 0" % v(LS))
            g("v_mov_b32 %s, 0" % v(NM))
            tail_addr()
            g("s_mul_i32 s3, s25, %d" % NP); g("s_add_u32 s3, s3, s61"); g("s_mul_i32 s3, s3, %d" % o["cstride"]); g("s_add_u32 s3, s3, %d" % WS_CNT)
            g("v_mov_b32 v3, s3"); g("v_mov_b32 %s, 0x7ffffff0" % v(CA))
            g("v_cmp_eq_u32 vcc, 0, v0")
            g("s_add_u32 s62, s62, %d" % (4 * MEM))
            g("s_mov_b32 s61, 4")
            g("v_cndmask_b32 %s, %s, v3, vcc" % (v(CA), v(CA)))
    if o["nostream"]:
        tail_addr()
    g("s_cmp_ge_u32 s26, %d" % (0 if o["nowo"] else 8))
    g("s_cbranch_scc1 L_nowo")
    g("s_lshl_b32 s3, s28, 16")
    g.srd(16, 40, 65536, "s3")
    g("s_lshl_b32 s3, s24, 8")
    g("v_lshl_add_u32 v3, v0, 2, s3")
    g("s_mov_b32 s3, 0")
    for r in range(64):
        if r and (r & 3) == 0: g("s_add_u32 s3, s3, 4096")
        if r >= 24 and (r & 7) == 0: g("s_waitcnt vmcnt(24)")
        g("buffer_load_dword %s, v3, s[16:19], s3 offen offset:%d nt" % (v(WO + r), (r & 3) * 1024))
    if o["stage"]:
        assert PP == 1
        g("s_mov_b32 s63, 2")
        g("s_branch L_wo")
    g.lab("L_nowo")
    if o["stage"]:
        g("s_lshl_b32 s3, s26, 1"); g("s_add_u32 s3, s3, %d" % (32 * SS - 16)); g("s_lshl_b32 s3, s3, 14"); g("s_add_u32 s5, s3, s27")
        for t_ in range(2):
            g("s_and_b32 s4, s5, 0xffffff")
            g("s_add_u32 s5, s5, 0x4000")
            for u in range(8):
                g("s_waitcnt vmcnt(%d)" % (D - 1))
                g("buffer_load_dwordx4 %s, %s, %s, s4 offen offset:%d nt" % (v(SG + 32 * t_ + 4 * u, 4), v(KS + u) if u < 4 else v(VS + (u & 1)), "s[8:11]" if u < 4 else "s[12:15]", (u & 3) * 1024))
        g("s_mov_b32 s63, 4")
        g.lab("L_wo")
    else: g("s_mov_b32 s63, 2")
    g.srd(16, 50, 1024)
    g.srd(40, 54, 0)
    g("v_and_b32 v3, 3, v0")
    g("v_lshlrev_b32 v3, 8, v3")
    g("v_lshl_or_b32 v3, v1, 4, v3")
    g("v_add_u32 v3, %d, v3" % QA)
    g("v_mov_b32 %s, %d" % (v(T2), TAGA))
    g("s_mov_b32 s56, %s" % hx(f2u(128.0 ** -0.5))); g("s_mov_b32 s57, s56")
    g("s_mov_b32 s58, 0")
    g("s_mov_b32 s59, 0")
    g("s_mov_b32 s60, 1")
    g("s_mov_b32 s95, 0")
    g.stamp(1)
    g("s_mov_b32 s31, 0x400000")
    g.lab("L_wq")
    g("ds_read_b64 %s, %s" % (v(T0, 2), v(T2)))
    g("s_waitcnt lgkmcnt(0)")
    g("v_readfirstlane_b32 s3, %s" % v(T1))
    g("v_readfirstlane_b32 s30, %s" % v(T0))
    g("s_cmp_lg_u32 s3, 0")
    g("s_cbranch_scc1 L_wq_done")
    if o["qsleep"]: g("s_sleep %d" % o["qsleep"])
    g("s_sub_u32 s31, s31, 1")
    g("s_cbranch_scc0 L_wq")
    g.lab("L_wq_done")
    for k in range(4): g("ds_read_b128 %s, v3 offset:%d" % (v(QF + 4 * k, 4), 64 * k))
    g.stamp(2)
    g("s_waitcnt lgkmcnt(0)")
    if o["nostream"]: g("s_branch L_tail")

    def body(par):
        base = par * 8192
        g("s_cmp_lg_u32 s58, 0")
        g("s_cbranch_scc1 L_k%d" % par)
        g("s_waitcnt vmcnt(13)")
        g.lab("L_k%d" % par)
        for k in range(4): g("ds_read_b128 %s, %s offset:%d" % (v(F + 4 * k, 4), v(KA + k), base))
        g("v_readfirstlane_b32 s3, %s" % v(TK + par))
        g("s_add_u32 s3, s3, %d" % (MEM * SS + (48 if o["stage"] else 0)))
        g("s_cmp_lt_u32 s61, %d" % SS)
        g("s_cselect_b32 s3, s62, s3")
        g("s_cmp_ge_u32 s61, %d" % (SS - 2))
        g("s_cselect_b32 s42, %d, 0" % WS_SIZE)
        g("s_cmp_lt_u32 s3, %d" % (4096 // NP))
        g("s_cselect_b32 s10, 0x1000000, 0")
        g("s_cselect_b32 s5, 0xffffff, 0")
        g("s_mov_b32 s14, s10")
        g("s_lshl_b32 s3, s3, %d" % LT)
        g("s_add_u32 s3, s3, s27")
        g("s_and_b32 s4, s3, s5")
        if o["stamps"]: g("s_add_u32 s95, s95, 1")
        if o["ts"] == 2 and par == 0:
            for i, c in enumerate((7, 11, 15, 19, 23, 27)):
                g("s_cmp_lg_u32 s95, %d" % c); g("s_cbranch_scc1 L_ts%d" % i); g.stamp(8 + i); g("s_waitcnt lgkmcnt(0)"); g.lab("L_ts%d" % i)
        g("s_cmp_lg_u32 s58, 0")
        for k in range(4):
            g("s_waitcnt lgkmcnt(%d)" % (3 - k))
            g("v_mfma_f32_16x16x32_bf16 %s, %s, %s, %s" % (v(S, 4), v(F + 4 * k, 4), v(QF + 4 * k, 4), "0" if k == 0 else v(S, 4)))
        g("s_cbranch_scc1 L_ki%d" % par)
        g("s_add_u32 m0, s29, %d" % base)
        g("s_nop 0")
        for u in range(4): g("buffer_load_dwordx4 %s, s[8:11], s4 offen offset:%d nt lds" % (v(KS + u), u * 1024))
        g.lab("L_ki%d" % par)
        g.nop(7)
        if o["round"]:
            g("v_cvt_pk_bf16_f32 %s, %s, %s" % (v(T0), v(S), v(S + 1)))
            g("v_cvt_pk_bf16_f32 %s, %s, %s" % (v(T1), v(S + 2), v(S + 3)))
            g("v_lshlrev_b32 %s, 16, %s" % (v(S), v(T0))); g("v_and_b32 %s, 0xffff0000, %s" % (v(S + 1), v(T0)))
            g("v_lshlrev_b32 %s, 16, %s" % (v(S + 2), v(T1))); g("v_and_b32 %s, 0xffff0000, %s" % (v(S + 3), v(T1)))
        g("v_pk_mul_f32 %s, %s, s[56:57]" % (v(S, 2), v(S, 2)))
        g("v_pk_mul_f32 %s, %s, s[56:57]" % (v(S + 2, 2), v(S + 2, 2)))
        if o["round"]:
            g("v_cvt_pk_bf16_f32 %s, %s, %s" % (v(T0), v(S), v(S + 1)))
            g("v_cvt_pk_bf16_f32 %s, %s, %s" % (v(T1), v(S + 2), v(S + 3)))
            g("v_lshlrev_b32 %s, 16, %s" % (v(S), v(T0))); g("v_and_b32 %s, 0xffff0000, %s" % (v(S + 1), v(T0)))
            g("v_lshlrev_b32 %s, 16, %s" % (v(S + 2), v(T1))); g("v_and_b32 %s, 0xffff0000, %s" % (v(S + 3), v(T1)))
        g("v_max3_f32 %s, %s, %s, %s" % (v(T0), v(S), v(S + 1), v(S + 2)))
        g("v_max3_f32 %s, %s, %s, %s" % (v(T0), v(T0), v(S + 3), v(M)))
        g("v_cmp_gt_f32 vcc, %s, %s" % (v(T0), v(M)))
        g("s_cbranch_vccz L_ns%d" % par)
        g.red_swap("v_max_f32", [T0], [T1])
        g("v_sub_f32 %s, %s, %s" % (v(AL), v(M), v(T0)))
        g("v_mul_f32 %s, s6, %s" % (v(NM), v(T0)))
        g("v_mul_f32 %s, s6, %s" % (v(AL), v(AL)))
        g("v_exp_f32 %s, %s" % (v(AL), v(AL)))
        g("v_mov_b32 %s, %s" % (v(M), v(T0)))
        g("v_mul_f32 %s, %s, %s" % (v(LS), v(AL), v(LS)))
        for n in range(32): g("v_mul_f32 %s, %s, %s" % (v(O + n), v(AL), v(O + n)))
        g.lab("L_ns%d" % par)
        for e in range(4): g("v_fma_f32 %s, %s, s6, -%s" % (v(S + e), v(S + e), v(NM)))
        for e in range(4): g("v_exp_f32 %s, %s" % (v(S + e), v(S + e)))
        g("s_cmp_lg_u32 s58, 0")
        g("v_cvt_pk_bf16_f32 %s, %s, %s" % (v(P), v(S), v(S + 1)))
        g("v_cvt_pk_bf16_f32 %s, %s, %s" % (v(P + 1), v(S + 2), v(S + 3)))
        g("s_cbranch_scc1 L_v%d" % par)
        g("s_waitcnt vmcnt(13)")
        g.lab("L_v%d" % par)
        for n in range(8): g("ds_read_b64_tr_b16 %s, %s offset:%d" % (v(VF + 2 * n, 2), v(VA + n), base + 4096))
        g("v_add_f32 %s, %s, %s" % (v(T0), v(S), v(S + 1)))
        g("v_add_f32 %s, %s, %s" % (v(T1), v(S + 2), v(S + 3)))
        g("v_add_f32 %s, %s, %s" % (v(LS), v(LS), v(T0)))
        g("v_add_f32 %s, %s, %s" % (v(LS), v(LS), v(T1)))
        for n in range(8):
            g("s_waitcnt lgkmcnt(%d)" % (7 - n))
            g("v_mfma_f32_16x16x16_bf16 %s, %s, %s, %s" % (v(O + 4 * n, 4), v(VF + 2 * n, 2), v(P, 2), v(O + 4 * n, 4)))
        g("s_cbranch_scc1 L_vi%d" % par)
        g("s_cmp_eq_u32 s60, 0")
        g("s_cbranch_scc1 L_tail")
        g("s_mov_b32 s60, s10")
        g("s_add_u32 s61, s61, 1"); g("s_add_u32 s62, s62, %d" % MEM)
        g("v_mov_b32 %s, 1" % v(TK + par))
        g("s_add_u32 m0, s29, %d" % (base + 4096))
        g("buffer_atomic_add %s, %s, s[40:43], 0 offen sc0" % (v(TK + par), v(CA)))
        for u in range(4): g("buffer_load_dwordx4 %s, s[12:15], s4 offen offset:%d nt lds" % (v(VS + (u & 1)), u * 1024))
        g.lab("L_vi%d" % par)
    g.lab("L_loop")
    body(0)
    body(1)
    g("s_cmp_eq_u32 s59, s63")
    g("s_cbranch_scc1 L_loop")
    for r in list(range(KA, KA + 4)) + list(range(VA, VA + 8)): g("v_xor_b32 %s, 0x4000, %s" % (v(r), v(r)))
    g("s_xor_b32 s58, s58, 1")
    g("s_add_u32 s59, s59, 1")
    g("s_cmp_lg_u32 s59, 2")
    g("s_cbranch_scc1 L_loop")
    if o["stage"]:
        g("s_cmp_eq_u32 s63, 2")
        g("s_cbranch_scc1 L_perm")
        g("v_lshl_add_u32 v3, v0, 4, s29")
        for u in range(16): g("ds_write_b128 v3, %s offset:%d" % (v(SG + 4 * u, 4), 16384 + 1024 * u))
        g("s_branch L_loop")
        g.lab("L_perm")
    g("s_mov_b32 s3, 0x05040100"); g("s_mov_b32 s7, 0x07060302")
    def wlo(k): return WX if k == 0 else WO + 2 * k - 2
    def whi(k): return WO + 2 * k + 1
    for k in range(32):
        g("v_perm_b32 %s, %s, %s, s3" % (v(wlo(k)), v(WO + 2 * k + 1), v(WO + 2 * k)))
        g("v_perm_b32 %s, %s, %s, s7" % (v(whi(k)), v(WO + 2 * k + 1), v(WO + 2 * k)))
    g("s_branch L_loop")
    g.lab("L_tail")
    g.stamp(3)
    g.red_swap("v_add_f32", [LS], [T1])
    g("s_mov_b32 exec_lo, 0x000f000f"); g("s_mov_b32 exec_hi, 0x000f000f")
    for n in range(8): g("ds_write_b128 %s, %s offset:%d" % (v(CW), v(O + 4 * n, 4), 64 * n))
    g("ds_write2_b32 %s, %s, %s offset0:0 offset1:8" % (v(MW), v(M), v(LS)))
    g("s_mov_b64 exec, -1")
    g("s_cmp_eq_u32 s24, 4")
    g("s_waitcnt lgkmcnt(0)")
    g("s_cbranch_scc1 L_nb2")
    g("s_barrier")
    g.lab("L_nb2")
    g.stamp(4)
    A = 24
    g("ds_read_b128 %s, %s" % (v(A, 4), v(MR)))
    g("ds_read_b128 %s, %s offset:32" % (v(A + 4, 4), v(MR)))
    for w in range(4): g("ds_read_b128 %s, %s offset:%d" % (v(A + 8 + 4 * w, 4), v(CR), 2048 * w))
    GG = 4
    g("ds_read_b128 %s, %s" % (v(GG, 4), v(GR)))
    R = 48
    g("v_mov_b32 %s, s30" % v(R + 3))
    g("s_waitcnt lgkmcnt(6)")
    g("v_max3_f32 %s, %s, %s, %s" % (v(T0), v(A), v(A + 1), v(A + 2)))
    g("v_max_f32 %s, %s, %s" % (v(T0), v(T0), v(A + 3)))
    for w in range(4): g("v_sub_f32 %s, %s, %s" % (v(A + w), v(A + w), v(T0)))
    for w in range(4): g("v_mul_f32 %s, s6, %s" % (v(A + w), v(A + w)))
    for w in range(4): g("v_exp_f32 %s, %s" % (v(A + w), v(A + w)))
    g("s_waitcnt lgkmcnt(4)")
    g("v_mul_f32 %s, %s, %s" % (v(T1), v(A), v(A + 4)))
    for w in range(1, 4): g("v_fmac_f32 %s, %s, %s" % (v(T1), v(A + w), v(A + 4 + w)))
    for e in range(4): g("v_mul_f32 %s, %s, %s" % (v(A + 8 + e), v(A), v(A + 8 + e)))
    g("v_rcp_f32 %s, %s" % (v(T2), v(T1)))
    g("v_log_f32 %s, %s" % (v(R + 2), v(T1)))
    for w in range(1, 4):
        g("s_waitcnt lgkmcnt(%d)" % (4 - w))
        for e in range(4): g("v_fmac_f32 %s, %s, %s" % (v(A + 8 + e), v(A + w), v(A + 8 + 4 * w + e)))
    g("v_fmac_f32 %s, s6, %s" % (v(R + 2), v(T0)))
    for e in range(4): g("v_mul_f32 %s, %s, %s" % (v(A + 8 + e), v(T2), v(A + 8 + e)))
    g("v_cvt_pk_bf16_f32 %s, %s, %s" % (v(R), v(A + 8), v(A + 9)))
    g("v_cvt_pk_bf16_f32 %s, %s, %s" % (v(R + 1), v(A + 10), v(A + 11)))
    g("s_mov_b32 exec_hi, 0")
    g("buffer_store_dwordx4 %s, %s, s[20:23], 0 offen sc1" % (v(R, 4), v(H1A)))
    g("s_mov_b32 exec_hi, -1")
    g.tstamp(8)
    if o["ts"] == 1:
        for i in (9, 10, 11, 12, 13): g.stamp(i)
    g("s_cmp_ge_u32 s26, 8")
    g("s_cbranch_scc1 L_fin")
    B = 56
    g.poll("L_p1", ["buffer_load_dwordx4 %s, %s, s[20:23], 0 offen offset:%d sc1" % (v(B + 4 * u, 4), v(P1A), 256 * u) for u in range(2)],
           [B + 3, B + 7], st=9)
    g.stamp(5)
    g("v_max_f32 %s, %s, %s" % (v(T0), v(B + 2), v(B + 6)))
    U = 64
    for u in range(2):
        for e in range(2):
            g("v_lshlrev_b32 %s, 16, %s" % (v(U + 4 * u + 2 * e), v(B + 4 * u + e)))
            g("v_and_b32 %s, 0xffff0000, %s" % (v(U + 4 * u + 2 * e + 1), v(B + 4 * u + e)))
    g.red_dpp("v_max_f32", [T0], ["row_ror:4", "row_ror:8"])
    g.red_swap("v_max_f32", [T0], [T1])
    for u in range(2): g("v_sub_f32 %s, %s, %s" % (v(B + 4 * u + 2), v(B + 4 * u + 2), v(T0)))
    for u in range(2): g("v_exp_f32 %s, %s" % (v(B + 4 * u + 2), v(B + 4 * u + 2)))
    g("s_nop 0")
    for e in range(4): g("v_mul_f32 %s, %s, %s" % (v(U + e), v(B + 2), v(U + e)))
    g("v_add_f32 %s, %s, %s" % (v(B), v(B + 2), v(B + 6)))
    for e in range(4): g("v_fmac_f32 %s, %s, %s" % (v(U + e), v(B + 6), v(U + 4 + e)))
    rs = [B, U, U + 1, U + 2, U + 3]
    g.red_dpp("v_add_f32", rs, ["row_ror:4", "row_ror:8"])
    g.red_swap("v_add_f32", rs, [B + 1, U + 4, U + 5, U + 6, U + 7])
    g("v_rcp_f32 %s, %s" % (v(B), v(B)))
    g("s_cmp_eq_u32 s24, 4")
    for e in range(4): g("v_mul_f32 %s, %s, %s" % (v(U + e), v(B), v(U + e)))
    g("v_cvt_pk_bf16_f32 %s, %s, %s" % (v(U), v(U), v(U + 1)))
    g("v_cvt_pk_bf16_f32 %s, %s, %s" % (v(U + 1), v(U + 2), v(U + 3)))
    g("s_mov_b64 exec, 15")
    g("ds_write_b64 %s, %s" % (v(OW), v(U, 2)))
    g("s_mov_b64 exec, -1")
    AC = 48
    for e in range(4): g("v_mov_b32 %s, 0" % v(AC + (0, 1, 4, 5)[e]))
    g("v_mov_b32 %s, 0" % v(AC + 2))
    g("s_waitcnt lgkmcnt(0)")
    g.tstamp(10)
    g("s_cbranch_scc1 L_nb3")
    g("s_barrier")
    g.lab("L_nb3")
    g.tstamp(11)
    g("ds_read2_b32 %s, %s offset0:0 offset1:16" % (v(U, 2), v(OR)))
    g("s_waitcnt lgkmcnt(0)")
    for k in range(16):
        for hh in range(2):
            kk = 16 * hh + k
            g("v_dot2c_f32_bf16_dpp %s, %s, %s row_newbcast:%d row_mask:0xf bank_mask:0xf" % (v(AC + 4 * hh), v(U + hh), v(wlo(kk)), k))
            g("v_dot2c_f32_bf16_dpp %s, %s, %s row_newbcast:%d row_mask:0xf bank_mask:0xf" % (v(AC + 4 * hh + 1), v(U + hh), v(whi(kk)), k))
    g.nop(2)
    g("v_add_f32 %s, %s, %s" % (v(AC), v(AC), v(AC + 4)))
    g("v_add_f32 %s, %s, %s" % (v(AC + 1), v(AC + 1), v(AC + 5)))
    g("buffer_store_dwordx4 %s, %s, s[20:23], 0 offen sc1" % (v(AC, 4), v(H2A)))
    g.tstamp(12)
    g.poll("L_p2", ["buffer_load_dwordx4 %s, %s, s[20:23], 0 offen sc1" % (v(B, 4), v(P2A))], [B + 3], st=13)
    g.stamp(6)
    R0, R1 = B, B + 1
    g.red_wave("v_add_f32", [R0, R1], [T0, T1])
    g.rbf([(R0, R1)], T0)
    g("v_mul_f32 %s, %s, %s" % (v(R0), v(R0), v(GG)))
    g("v_mul_f32 %s, %s, %s" % (v(R1), v(R1), v(GG + 1)))
    g.rbf([(R0, R1)], T0)
    g("v_add_f32 %s, %s, %s" % (v(R0), v(R0), v(GG + 2)))
    g("v_add_f32 %s, %s, %s" % (v(R1), v(R1), v(GG + 3)))
    g("v_cvt_pk_bf16_f32 %s, %s, %s" % (v(R0), v(R0), v(R1)))
    g("s_mov_b64 exec, 1")
    g("buffer_store_dword %s, %s, s[16:19], 0 offen" % (v(R0), v(OUTA)))
    g("s_or_b32 s3, s2, s24")
    g("s_cbranch_scc1 L_noep")
    g("buffer_store_dword %s, off, s[20:23], 0 offset:%d sc1" % (v(AC + 3), WS_EPOCH))
    g.lab("L_noep")
    g("s_mov_b64 exec, -1")
    if o["stamps"]:
        g("s_branch L_fin2")
    g.lab("L_fin")
    if o["stamps"]:
        g.stamp(5); g.stamp(6)
        g.lab("L_fin2")
        g.stamp(7)
        g("s_cmp_lg_u32 s24, 0")
        g("s_cbranch_scc1 L_fin3")
        g.write_stamps([0, 1, 2, 3, 4, 5, 6, 7] + ([8, 9, 10, 11, 12, 13] if o["ts"] else []))
        g.lab("L_fin3")
    g("s_waitcnt vmcnt(0)")
    g("s_endpgm")

    g.lab("L_aux")
    if o["auxprio"]: g("s_setprio %d" % o["auxprio"])
    X, XF, TT = 4, 8, 16
    g("v_lshlrev_b32 v3, 4, v0")
    if o["wqrot"]: g("s_add_u32 s3, s26, s25"); g("s_and_b32 s3, s3, 7")
    else: g("s_and_b32 s3, s26, 7")
    g("s_lshl_b32 s3, s3, 6")
    g("s_lshr_b32 s7, s26, 3"); g("s_lshl_b32 s7, s7, 4"); g("s_add_u32 s27, s3, s7")
    g("s_lshl_b32 s3, s25, 9"); g("s_add_u32 s3, s3, s27"); g("s_lshl_b32 s3, s3, 1")
    g("v_lshrrev_b32 %s, 1, v0" % v(TT)); g("v_lshlrev_b32 %s, 13, %s" % (v(TT), v(TT)))
    g("v_and_b32 %s, 1, v0" % v(TT + 1)); g("v_lshl_or_b32 %s, %s, 4, %s" % (v(TT), v(TT + 1), v(TT)))
    g("v_add_u32 %s, s3, %s" % (v(TT), v(TT)))
    if o["wqmode"] == 1:
        g("s_lshl_b32 s3, s2, 14"); g("v_add_u32 %s, s3, v3" % v(TT))
    if o["wqmode"] == 2:
        g("s_and_b32 s3, s2, 63"); g("s_lshl_b32 s3, s3, 7"); g("s_lshr_b32 s7, s2, 6"); g("s_lshl_b32 s7, s7, 20"); g("s_add_u32 s3, s3, s7")
        g("v_lshrrev_b32 %s, 3, v0" % v(TT)); g("v_lshlrev_b32 %s, 13, %s" % (v(TT), v(TT)))
        g("v_and_b32 %s, 7, v0" % v(TT + 1)); g("v_lshl_or_b32 %s, %s, 4, %s" % (v(TT), v(TT + 1), v(TT)))
        g("v_add_u32 %s, s3, %s" % (v(TT), v(TT)))
    g("v_mov_b32 %s, %d" % (v(TT + 2), TAGA)); g("v_mov_b32 %s, 0" % v(TT + 3))
    g("ds_write_b32 %s, %s offset:4" % (v(TT + 2), v(TT + 3)))
    g("s_waitcnt lgkmcnt(0)")
    if o["b0"] == 3: g("s_barrier")
    g.srd(8, 32, 1024)
    g.srd(12, 38, 512 * 8192)
    g.srd(20, 54, WS_SIZE)
    g("buffer_load_dwordx4 %s, v3, s[8:11], 0 offen" % v(X, 4))
    g("buffer_load_dword %s, off, s[20:23], 0 offset:%d sc1" % (v(TT + 1), WS_EPOCH))
    g("s_mov_b32 s4, 0")
    for u in range(16):
        g("s_mov_b32 m0, %d" % (STAGE + u * 1024))
        if u: g("s_add_u32 s4, s4, %d" % (0x40000, 1024, 0x10000)[o["wqmode"]])
        else: g("s_nop 0")
        g("buffer_load_dwordx4 %s, s[12:15], s4 offen%s lds" % (v(TT), " nt" if o["wqnt"] else ""))
    if o["b0"] != 3: g("s_barrier")
    g("v_and_b32 %s, 3, v0" % v(TT + 2)); g("s_lshl_b32 s3, s28, 4"); g("v_lshl_add_u32 %s, %s, 2, s3" % (v(TT + 2), v(TT + 2)))
    g("buffer_load_dword %s, %s, s[8:11], 0 offen" % (v(TT + 2), v(TT + 2)))
    g("s_mul_i32 s3, s25, %d" % (NP * o["cstride"])); g("s_add_u32 s3, s3, %d" % WS_CNT)
    g("v_mul_u32_u24 %s, %d, v0" % (v(TT + 3), o["cstride"])); g("v_add_u32 %s, s3, %s" % (v(TT + 3), v(TT + 3))); g("v_mov_b32 %s, 0" % v(TT + 4))
    g("s_cmp_eq_u32 s26, 0"); g("s_cselect_b32 vcc_lo, %d, 0" % ((1 << NP) - 1)); g("s_mov_b32 vcc_hi, 0")
    g("v_mov_b32 %s, 0x7ffffff0" % v(TT + 5))
    g("v_cndmask_b32 %s, %s, %s, vcc" % (v(TT + 3), v(TT + 5), v(TT + 3)))
    g("buffer_store_dword %s, %s, s[20:23], 0 offen sc1" % (v(TT + 4), v(TT + 3)))
    g("s_waitcnt vmcnt(18)")
    g.stamp(13)
    g("v_readfirstlane_b32 s30, %s" % v(TT + 1))
    for e in range(4):
        g("v_lshlrev_b32 %s, 16, %s" % (v(XF + 2 * e), v(X + e)))
        g("v_and_b32 %s, 0xffff0000, %s" % (v(XF + 2 * e + 1), v(X + e)))
    g("s_mul_i32 s30, s30, 0x9e3779b1")
    g("s_add_u32 s30, s30, 0x7f4a7c15")
    a, b, c_ = TT + 5, TT + 6, TT + 7
    g("v_add_f32 %s, %s, %s" % (v(a), v(XF), v(XF + 1)))
    for e in range(2, 8): g("v_add_f32 %s, %s, %s" % (v(a), v(a), v(XF + e)))
    g.red_wave("v_add_f32", [a], [b])
    g("v_mul_f32 %s, %s, %s" % (v(a), hx(f2u(1.0 / 512)), v(a)))
    g("v_sub_f32 %s, %s, %s" % (v(c_), v(XF), v(a)))
    g("v_mul_f32 %s, %s, %s" % (v(b), v(c_), v(c_)))
    for e in range(1, 8):
        g("v_sub_f32 %s, %s, %s" % (v(c_), v(XF + e), v(a)))
        g("v_fmac_f32 %s, %s, %s" % (v(b), v(c_), v(c_)))
    g.red_wave("v_add_f32", [b], [c_])
    g("v_mul_f32 %s, %s, %s" % (v(b), hx(f2u(1.0 / 512)), v(b)))
    g.rbf([(a, b)], c_)
    g("v_add_f32 %s, %s, %s" % (v(b), hx(f2u(1e-5)), v(b)))
    g.rbf([(b, b)], c_)
    g("v_sqrt_f32 %s, %s" % (v(b), v(b)))
    for e in range(8): g("v_sub_f32 %s, %s, %s" % (v(XF + e), v(XF + e), v(a)))
    g.rbf([(b, b)], c_)
    g("v_rcp_f32 %s, %s" % (v(a), v(b)))
    g.rbf([(XF + 2 * e, XF + 2 * e + 1) for e in range(4)], c_)
    for e in range(8):
        g("v_mul_f32 %s, %s, %s" % (v(c_), v(XF + e), v(a)))
        g("v_fma_f32 %s, -%s, %s, %s" % (v(XF + e), v(c_), v(b), v(XF + e)))
        g("v_fma_f32 %s, %s, %s, %s" % (v(XF + e), v(XF + e), v(a), v(c_)))
    for e in range(4): g("v_cvt_pk_bf16_f32 %s, %s, %s" % (v(X + e), v(XF + 2 * e), v(XF + 2 * e + 1)))
    g("v_add_u32 %s, %d, v3" % (v(a), XN))
    g("ds_write_b128 %s, %s" % (v(a), v(X, 4)))
    WG_, WU_, WD_ = 96, 128, 160
    NF = 0 if o["noffn"] else 224
    g("s_lshr_b32 s60, s2, 3"); g("s_and_b32 s61, s2, 7")
    g("s_add_u32 s62, s60, s61"); g("s_and_b32 s62, s62, 7")
    def ffn_loads():
        g.srd(8, 44, 512 * 3584)
        g.srd(16, 46, 512 * 3584)
        g.srd(56, 48, 1792 * 1024)
        g("v_lshrrev_b32 %s, 3, v0" % v(a)); g("v_and_b32 %s, 7, v0" % v(b))
        g("s_mul_i32 s3, s61, %d" % (64 * 3584)); g("s_lshl_b32 s7, s60, 7"); g("s_add_u32 s3, s3, s7")
        g("v_mul_u32_u24 %s, 7168, %s" % (v(c_), v(a))); g("v_lshl_add_u32 %s, %s, 4, %s" % (v(c_), v(b), v(c_))); g("v_add_u32 %s, s3, %s" % (v(c_), v(c_)))
        g("s_lshl_b32 s3, s60, 16"); g("s_lshl_b32 s7, s62, 7"); g("s_add_u32 s3, s3, s7")
        g("v_lshlrev_b32 %s, 11, %s" % (v(a), v(a))); g("v_lshl_add_u32 %s, %s, 4, %s" % (v(a), v(b), v(a))); g("v_add_u32 %s, s3, %s" % (v(a), v(a)))
        g("s_mov_b32 s4, 0")
        for k in range(4):
            if k: g("s_add_u32 s4, s4, %d" % (16 * 3584))
            for i in range(2):
                g("buffer_load_dwordx4 %s, %s, s[8:11], s4 offen offset:%d nt" % (v(WG_ + 8 * k + 4 * i, 4), v(c_), 3584 * i))
                g("buffer_load_dwordx4 %s, %s, s[16:19], s4 offen offset:%d nt" % (v(WU_ + 8 * k + 4 * i, 4), v(c_), 3584 * i))
        g("s_mov_b32 s4, 0")
        for k in range(4):
            if k: g("s_add_u32 s4, s4, 16384")
            for i in range(2):
                g("buffer_load_dwordx4 %s, %s, s[56:59], s4 offen offset:%d nt" % (v(WD_ + 8 * k + 4 * i, 4), v(a), 1024 * i))
    if o["ffnlate"]:
        g("s_waitcnt vmcnt(0)")
    else:
        g("s_cmp_ge_u32 s2, %d" % NF)
        g("s_cbranch_scc1 L_nofl")
        ffn_loads()
        g("s_waitcnt vmcnt(24)")
        g("s_branch L_fl")
        g.lab("L_nofl")
        g("s_waitcnt vmcnt(0)")
        g.lab("L_fl")
    XA, WA, Dq = 24, 25, 28
    FB = 32
    g("v_lshlrev_b32 %s, 4, v1" % v(XA)); g("v_add_u32 %s, %d, %s" % (v(XA), XN, v(XA)))
    g("v_lshrrev_b32 %s, 2, v2" % v(a))
    g("v_lshl_add_u32 %s, v1, 3, %s" % (v(a), v(a)))
    g("v_and_b32 %s, 3, v0" % v(b))
    g("v_lshlrev_b32 %s, 5, %s" % (v(WA), v(a)))
    g("v_lshl_or_b32 %s, %s, 3, %s" % (v(WA), v(b), v(WA)))
    g("v_add_u32 %s, %d, %s" % (v(WA), STAGE, v(WA)))
    def rd(grp):
        for k in range(4):
            t = 4 * grp + k; r0 = FB + 32 * (grp & 1) + 8 * k
            g("ds_read_b128 %s, %s offset:%d" % (v(r0, 4), v(XA), 64 * t))
            g("ds_read_b64_tr_b16 %s, %s offset:%d" % (v(r0 + 4, 2), v(WA), 1024 * t))
            g("ds_read_b64_tr_b16 %s, %s offset:%d" % (v(r0 + 6, 2), v(WA), 1024 * t + 128))
    g("s_waitcnt lgkmcnt(0)")
    g.stamp(8)
    rd(0)
    for grp in range(4):
        g("s_waitcnt lgkmcnt(0)")
        if grp < 3: rd(grp + 1)
        for k in range(4):
            r0 = FB + 32 * (grp & 1) + 8 * k
            g("v_mfma_f32_16x16x32_bf16 %s, %s, %s, %s" % (v(Dq, 4), v(r0 + 4, 4), v(r0, 4), "0" if grp == 0 and k == 0 else v(Dq, 4)))
    g("s_lshl_b32 s3, s25, 11"); g("s_add_u32 s4, s3, %d" % WS_Q)
    g("s_lshl_b32 s3, s27, 2"); g("s_add_u32 s3, s3, s4")
    g("v_lshlrev_b32 %s, 4, v1" % v(a))
    g("v_mov_b32 %s, s30" % v(FB + 1)); g("v_mov_b32 %s, s30" % v(FB + 3))
    g.nop(2)
    g("v_cvt_pk_bf16_f32 %s, %s, %s" % (v(FB), v(Dq), v(Dq + 1)))
    g("v_cvt_pk_bf16_f32 %s, %s, %s" % (v(FB + 2), v(Dq + 2), v(Dq + 3)))
    g("s_mov_b32 exec_lo, 0x00010001"); g("s_mov_b32 exec_hi, 0x00010001")
    g("buffer_store_dwordx4 %s, %s, s[20:23], s3 offen sc1" % (v(FB, 4), v(a)))
    g("s_mov_b64 exec, -1")
    g.stamp(9)
    QB = 40
    g.poll("L_pq", ["buffer_load_dwordx4 %s, v3, s[20:23], s4 offen offset:%d sc1" % (v(QB + 4 * u, 4), 1024 * u) for u in range(2)],
           [QB + 1, QB + 3, QB + 5, QB + 7])
    g.stamp(10)
    g("v_lshlrev_b32 %s, 3, v0" % v(a)); g("v_add_u32 %s, %d, %s" % (v(a), QA, v(a)))
    g("v_mov_b32 %s, %s" % (v(QB + 1), v(QB + 2))); g("v_mov_b32 %s, %s" % (v(QB + 5), v(QB + 6)))
    g("v_mov_b32 %s, %d" % (v(b), TAGA))
    g("ds_write_b64 %s, %s" % (v(a), v(QB, 2)))
    g("ds_write_b64 %s, %s offset:512" % (v(a), v(QB + 4, 2)))
    g("v_mov_b32 %s, s30" % v(QB + 2)); g("v_mov_b32 %s, 1" % v(QB + 3))
    g("ds_write_b64 %s, %s" % (v(b), v(QB + 2, 2)))
    g("s_cmp_ge_u32 s2, %d" % NF)
    g("s_cbranch_scc1 L_nofp")
    XP, AG, AU, PT = 24, 32, 40, 48
    if o["ffnlate"]:
        ffn_loads()
        g("s_waitcnt vmcnt(8)")
    g("v_lshrrev_b32 %s, 3, v0" % v(a)); g("v_lshlrev_b32 %s, 2, %s" % (v(a), v(a)))
    g("s_lshl_b32 s3, s61, 7"); g("s_add_u32 s3, s3, %d" % XN)
    g("v_add_u32 %s, s3, %s" % (v(b), v(a)))
    for k in range(4): g("ds_read_b32 %s, %s offset:%d" % (v(XP + k), v(b), 32 * k))
    for e in range(16): g("v_mov_b32 %s, 0" % v(AG + e))
    g("s_mov_b32 s3, 0x05040100"); g("s_mov_b32 s7, 0x07060302")
    def pairs(W, ACC, XPr):
        for k in range(4):
            for e in range(4):
                ra, rb_ = W + 8 * k + e, W + 8 * k + 4 + e
                g("v_perm_b32 %s, %s, %s, s3" % (v(PT + 2 * (e & 1)), v(rb_), v(ra)))
                g("v_perm_b32 %s, %s, %s, s7" % (v(PT + 2 * (e & 1) + 1), v(rb_), v(ra)))
                g("v_dot2_f32_bf16 %s, %s, %s, %s" % (v(ACC + 2 * e), v(PT + 2 * (e & 1)), v(XPr + k), v(ACC + 2 * e)))
                g("v_dot2_f32_bf16 %s, %s, %s, %s" % (v(ACC + 2 * e + 1), v(PT + 2 * (e & 1) + 1), v(XPr + k), v(ACC + 2 * e + 1)))
    g("s_waitcnt lgkmcnt(0)")
    pairs(WG_, AG, XP)
    pairs(WU_, AU, XP)
    g.nop(1)
    g.tswap("v_permlane32_swap_b32", [(AG + c, AG + c + 4) for c in range(4)] + [(AU + c, AU + c + 4) for c in range(4)])
    g.tswap("v_permlane16_swap_b32", [(AG + c, AG + c + 2) for c in range(2)] + [(AU + c, AU + c + 2) for c in range(2)])
    g.red_dpp("v_add_f32", [AG, AG + 1, AU, AU + 1], ["row_ror:8"])
    g("s_mov_b32 vcc_lo, 0xff00ff00"); g("s_mov_b32 vcc_hi, 0xff00ff00")
    g("v_cndmask_b32 %s, %s, %s, vcc" % (v(PT), v(AG), v(AG + 1)))
    g("v_cndmask_b32 %s, %s, %s, vcc" % (v(PT + 1), v(AU), v(AU + 1)))
    g("v_mov_b32 %s, 0" % v(PT + 2)); g("v_mov_b32 %s, s30" % v(PT + 3))
    g("s_mul_i32 s4, s60, %d" % CSA); g("s_add_u32 s4, s4, %d" % WS_FA)
    g("s_lshl_b32 s5, s61, 10"); g("s_add_u32 s5, s5, s4")
    g("buffer_store_dwordx4 %s, v3, s[20:23], s5 offen sc1" % v(PT, 4))
    g("s_add_u32 s5, s4, 4096")
    FA_ = 56
    g.poll("L_pa", ["buffer_load_dwordx4 %s, v3, s[20:23], %s offen offset:%d sc1" % (v(FA_ + 4 * u, 4), "s4" if u < 4 else "s5", 1024 * (u & 3)) for u in range(8)],
           [FA_ + 4 * u + 3 for u in range(8)], o["fsleep"])
    g.stamp(11)
    for e in range(2):
        for st in (4, 8, 16):
            for u0 in range(0, 32, 2 * st): g("v_add_f32 %s, %s, %s" % (v(FA_ + u0 + e), v(FA_ + u0 + e), v(FA_ + u0 + st + e)))
    GT, UP, E = FA_, FA_ + 1, FA_ + 2
    g.rbf([(GT, UP)], c_)
    k1 = -2.0 * math.sqrt(2.0 / math.pi) * LOG2E
    g("v_mul_f32 %s, %s, %s" % (v(E), v(GT), v(GT)))
    g("v_mul_f32 %s, %s, %s" % (v(E), hx(f2u(0.044715)), v(E)))
    g("v_add_f32 %s, 1.0, %s" % (v(E), v(E)))
    g("v_mul_f32 %s, %s, %s" % (v(E), v(E), v(GT)))
    g("v_mul_f32 %s, %s, %s" % (v(E), hx(f2u(k1)), v(E)))
    g("v_exp_f32 %s, %s" % (v(E), v(E)))
    g("v_and_b32 %s, 7, v0" % v(b))
    g("v_add_f32 %s, 1.0, %s" % (v(E), v(E)))
    g("v_rcp_f32 %s, %s" % (v(E), v(E)))
    g("v_lshlrev_b32 %s, 4, %s" % (v(b), v(b)))
    g("v_mul_f32 %s, %s, %s" % (v(E), v(E), v(GT)))
    g.rbf([(E, E)], c_)
    g("v_mul_f32 %s, %s, %s" % (v(E), v(E), v(UP)))
    g("v_cvt_pk_bf16_f32 %s, %s, %s" % (v(E), v(E), v(E)))
    g("v_lshrrev_b32 %s, 1, %s" % (v(c_), v(a)))
    g("v_add3_u32 %s, %s, %s, %s" % (v(c_), v(c_), v(b), v(b)) if False else "v_add_u32 %s, %s, %s" % (v(c_), v(c_), v(b)))
    g("v_add_u32 %s, %d, %s" % (v(c_), HA, v(c_)))
    g("ds_write_b16 %s, %s" % (v(c_), v(E)))
    g("v_add_u32 %s, %d, %s" % (v(b), HA, v(a)))
    for e in range(8): g("v_mov_b32 %s, 0" % v(AG + e))
    g("s_waitcnt lgkmcnt(0)")
    for k in range(4): g("ds_read_b32 %s, %s offset:%d" % (v(XP + k), v(b), 32 * k))
    g("s_waitcnt lgkmcnt(0)")
    pairs(WD_, AG, XP)
    g.nop(1)
    g.tswap("v_permlane32_swap_b32", [(AG + c, AG + c + 4) for c in range(4)])
    g.tswap("v_permlane16_swap_b32", [(AG + c, AG + c + 2) for c in range(2)])
    g.red_dpp("v_add_f32", [AG, AG + 1], ["row_ror:8"])
    g("v_mov_b32 %s, 0" % v(AG + 2)); g("v_mov_b32 %s, s30" % v(AG + 3))
    g("v_and_b32 %s, 7, v0" % v(b)); g("v_mul_u32_u24 %s, %d, %s" % (v(b), CSB, v(b))); g("v_lshl_add_u32 %s, v1, 4, %s" % (v(b), v(b)))
    g("s_mul_i32 s4, s62, %d" % (8 * CSB)); g("s_lshl_b32 s5, s60, 6"); g("s_add_u32 s4, s4, s5"); g("s_add_u32 s4, s4, %d" % WS_FB)
    g("s_mov_b32 exec_lo, 0x00ff00ff"); g("s_mov_b32 exec_hi, 0x00ff00ff")
    g("buffer_store_dwordx4 %s, %s, s[20:23], s4 offen sc1" % (v(AG, 4), v(b)))
    g("s_mov_b64 exec, -1")
    g.lab("L_nofp")
    g("s_cmp_ge_u32 s26, 8")
    g("s_cbranch_scc1 L_nofc")
    E = 56
    g("v_mov_b32 %s, 0" % v(E + 4)); g("v_mov_b32 %s, 0" % v(E + 5)); g("v_mov_b32 %s, s30" % v(E + 7))
    if o["noffn"]:
        g("v_mov_b32 %s, 0" % v(E)); g("v_mov_b32 %s, 0" % v(E + 1))
    else:
        g("s_mul_i32 s4, s28, %d" % CSB); g("s_add_u32 s4, s4, %d" % WS_FB)
        g.poll("L_pb", ["buffer_load_dwordx4 %s, v3, s[20:23], s4 offen sc1" % v(E, 4), "s_mov_b32 exec_hi, 0xffff",
                        "buffer_load_dwordx4 %s, v3, s[20:23], s4 offen offset:1024 sc1" % v(E + 4, 4), "s_mov_b32 exec_hi, -1"],
               [E + 3, E + 7], o["fsleep"])
    g("v_add_f32 %s, %s, %s" % (v(E), v(E), v(E + 4)))
    g("v_add_f32 %s, %s, %s" % (v(E + 1), v(E + 1), v(E + 5)))
    g.red_dpp("v_add_f32", [E, E + 1], ["row_ror:4", "row_ror:8"])
    g.red_swap("v_add_f32", [E, E + 1], [a, b])
    g.rbf([(E, E + 1)], c_)
    g("s_mov_b32 s7, %s" % hx(f2u(-LOG2E)))
    g("v_mul_f32 %s, s7, %s" % (v(a), v(E))); g("v_mul_f32 %s, s7, %s" % (v(b), v(E + 1)))
    g("v_exp_f32 %s, %s" % (v(a), v(a))); g("v_exp_f32 %s, %s" % (v(b), v(b)))
    g("v_lshlrev_b32 %s, 16, %s" % (v(E + 2), v(TT + 2)))
    g("v_add_f32 %s, 1.0, %s" % (v(a), v(a))); g("v_add_f32 %s, 1.0, %s" % (v(b), v(b)))
    g("v_rcp_f32 %s, %s" % (v(a), v(a))); g("v_rcp_f32 %s, %s" % (v(b), v(b)))
    g("v_and_b32 %s, 0xffff0000, %s" % (v(E + 3), v(TT + 2)))
    g("v_mul_f32 %s, %s, %s" % (v(E), v(E), v(a))); g("v_mul_f32 %s, %s, %s" % (v(E + 1), v(E + 1), v(b)))
    g.rbf([(E, E + 1)], c_)
    g("v_add_u32 %s, %d, v3" % (v(a), GA))
    g("s_mov_b64 exec, 15")
    g("ds_write_b128 %s, %s" % (v(a), v(E, 4)))
    g("s_mov_b64 exec, -1")
    g.lab("L_nofc")
    g.stamp(12)
    if not o["ts"]: g.write_stamps([8, 9, 10, 11, 12, 13])
    g("s_waitcnt vmcnt(0) lgkmcnt(0)")
    if o["reh"]:
        g("v_lshrrev_b32 v1, 4, v0"); g("v_and_b32 v2, 15, v0")
        tail_addr()
        g.srd(16, 50, 0)
        g.srd(20, 54, 0)
        g("s_mov_b32 s30, 0")
        g("s_branch L_tail")
    g.lab("L_end")
    g("s_endpgm")

    out = HEADER + "; @launch grid=(256,1,1) block=(320,1,1) lds=%d\n" % LDS_BYTES
    out += '.amdgcn_target "amdgcn-amd-amdhsa--gfx950"\n.text\n.globl %s_kernel\n.p2align 8\n.type %s_kernel,@function\n%s_kernel:\n' % (KNAME, KNAME, KNAME)
    out += "\n".join(g.L) + "\n"
    out += """.section .rodata,"a"
.p2align 6
.amdhsa_kernel %s_kernel
  .amdhsa_next_free_vgpr %d
  .amdhsa_next_free_sgpr 100
  .amdhsa_accum_offset %d
  .amdhsa_group_segment_fixed_size 0
  .amdhsa_kernarg_size 96
  .amdhsa_user_sgpr_count 2
  .amdhsa_user_sgpr_kernarg_segment_ptr 1
  .amdhsa_system_sgpr_workgroup_id_x 1
.end_amdhsa_kernel
""" % (KNAME, NV, NV)
    return out

if __name__ == "__main__":
    import hazcheck
    names = []
    for spec in sys.argv[1:]:
        parts = spec.split(",")
        fn = parts[0]
        opts = {}
        for p in parts[1:]:
            k, x = p.split("=")
            opts[k] = int(x)
        txt = gen(**opts)
        nb = hazcheck.check(txt)
        assert nb == 0, "hazards found"
        open(fn, "w").write(txt)
        names.append(fn)
    print(" ".join(names))
```

```python
import sys, struct, math
KNAME = "recurrent_scan__gqa_block_cached__geglu_ffn__decode"

def f2u(x): return struct.unpack("<I", struct.pack("<f", x))[0]
def hx(x): return "0x%x" % (x & 0xffffffff)
def v(n, c=1): return "v%d" % n if c == 1 else "v[%d:%d]" % (n, n + c - 1)
def s(n, c=1): return "s%d" % n if c == 1 else "s[%d:%d]" % (n, n + c - 1)

STAGE = 131072
XN = 147456
QA = 148480
ML = 149504
GA = 150016
TAGA = 150144
OA = 150272
HA = 150528
COMB = 151552
LDS_BYTES = 163840
WS_EPOCH = 0
WS_Q = 0x1000
WS_CNT = 0x8000
WS_B1 = 0x100000
WS_B2 = 0x200000
WS_FA = 0x300000
WS_FB = 0x380000
WS_SIZE = 0x400000
STAMP_OFF = 256 << 20
LOG2E = math.log2(math.e)

HEADER = """; Kernarg layout for this problem (96 bytes, ptrs only, base s[0:1]):
"""

class G:
    def __init__(self, **o):
        self.L = []
        self.o = dict(stamps=0, D=5, rot=1572864, noffn=0, auxprio=3, reh=1, round=1, wqnt=1, wqrot=1,
                      pad1=128, pad2=128, S=30, fsleep=8, b0=3, qsleep=2, wqmode=0, ffnlate=1, nowo=0, ack=1, cstride=4096, ts=0, thr=5, ffnmode=0, womode=0, dynthr=5, N=28, thk=5557, thv=5557, cpoll=8, sprio=0, fprio=0, sw=0, fthr=0, tailmode=0, stm=0, gsleep=8, dpoll=0, dmod=0, dwho=0, dst=0, doff=0x300000, dstr=1152)
        for k in o: assert k in self.o, k
        self.o.update(o)
    def __call__(self, x): self.L.append("    " + x)
    def lab(self, x): self.L.append(x + ":")
    def c(self, x): self.L.append("    ; " + x)
    def nop(self, n):
        while n > 0:
            k = min(n, 16); self("s_nop %d" % (k - 1)); n -= k
    def stamp(self, i):
        if self.o["stamps"]: self("s_memrealtime %s" % s(64 + 2 * i, 2))
    def write_stamps(self, idx):
        if not self.o["stamps"]: return
        self("s_waitcnt lgkmcnt(0)")
        self("s_lshl_b32 s3, s2, 7")
        self("s_add_u32 s3, s3, %d" % STAMP_OFF)
        self("v_mov_b32 v1, s3")
        for i in idx:
            self("v_mov_b32 v2, %s" % s(64 + 2 * i)); self("v_mov_b32 v3, %s" % s(65 + 2 * i))
            self("global_store_dwordx2 v1, v[2:3], s[54:55] offset:%d" % (8 * i))
        if 0 in idx:
            self("s_getreg_b32 s3, hwreg(HW_REG_XCC_ID)")
            self("v_mov_b32 v2, s3"); self("v_mov_b32 v3, s95")
            self("global_store_dwordx2 v1, v[2:3], s[54:55] offset:120")
    def srd(self, d, base, size, add=None):
        if add is None:
            self("s_mov_b32 %s, %s" % (s(d), s(base))); self("s_mov_b32 %s, %s" % (s(d + 1), s(base + 1)))
        else:
            self("s_add_u32 %s, %s, %s" % (s(d), s(base), add)); self("s_addc_u32 %s, %s, 0" % (s(d + 1), s(base + 1)))
        self("s_mov_b32 %s, %s" % (s(d + 2), size if isinstance(size, str) else hx(size))); self("s_mov_b32 %s, 0x20000" % s(d + 3))
    def red_dpp(self, op, rs, ctrls):
        for ct in ctrls:
            self.nop(max(0, 2 - (len(rs) - 1)))
            for r in rs: self("%s_dpp %s, %s, %s %s row_mask:0xf bank_mask:0xf" % (op, v(r), v(r), v(r), ct))
    def red_swap(self, op, rs, ts):
        for sw in ("v_permlane16_swap_b32", "v_permlane32_swap_b32"):
            for r, t in zip(rs, ts): self("v_mov_b32 %s, %s" % (v(t), v(r)))
            self.nop(max(0, 2 - (len(rs) - 1)))
            for r, t in zip(rs, ts): self("%s %s, %s" % (sw, v(t), v(r)))
            for r, t in zip(rs, ts): self("%s %s, %s, %s" % (op, v(r), v(t), v(r)))
    def red_wave(self, op, rs, ts):
        self.red_dpp(op, rs, ["quad_perm:[1,0,3,2]", "quad_perm:[2,3,0,1]", "row_half_mirror", "row_mirror"])
        self.red_swap(op, rs, ts)
    def tswap(self, sw, pairs):
        self.nop(2)
        for a, b in pairs: self("%s %s, %s" % (sw, v(a), v(b)))
        for a, b in pairs: self("v_add_f32 %s, %s, %s" % (v(a), v(a), v(b)))
    def rbf(self, pairs, t):
        for a, b in pairs:
            self("v_cvt_pk_bf16_f32 %s, %s, %s" % (v(t), v(a), v(b)))
            self("v_lshlrev_b32 %s, 16, %s" % (v(a), v(t)))
            if b != a: self("v_and_b32 %s, 0xffff0000, %s" % (v(b), v(t)))
    def tstamp(self, i):
        if self.o["ts"] == 1: self.stamp(i)
    def poll(self, name, loads, tagregs, sleep=0, st=None, first=None, lim=0x40000):
        if lim < 0: return
        self("s_mov_b32 s31, 0x%x" % lim)
        if self.o["ack"] or first: self("s_waitcnt vmcnt(0)")
        if st is not None: self.tstamp(st)
        if first:
            for l in loads + first: self(l)
            self("s_branch %s_w" % name)
        self.lab(name)
        for l in loads: self(l)
        if first: self.lab(name + "_w")
        self("s_waitcnt vmcnt(0)")
        self("v_cmp_ne_u32 vcc, s30, %s" % v(tagregs[0]))
        for k, t in enumerate(tagregs[1:]):
            self("v_cmp_ne_u32 %s, s30, %s" % (s(96 + 2 * (k & 1), 2), v(t)))
            if k & 1 or k == len(tagregs) - 2:
                for kk in range(k & ~1, k + 1): self("s_or_b64 vcc, vcc, %s" % s(96 + 2 * (kk & 1), 2))
        self("s_cbranch_vccz %s_done" % name)
        if sleep: self("s_sleep %d" % sleep)
        self("s_sub_u32 s31, s31, 1")
        self("s_cbranch_scc0 %s" % name)
        self.lab(name + "_done")

def gen(**opts):
    g = G(**opts); o = g.o
    CS1 = 8192 + o["pad1"]; CS2 = 4096 + o["pad2"]; CSA = 8192 + 128; CSB = 512 + 128
    g("s_cmp_ge_u32 s2, 256")
    g("s_cbranch_scc1 L_end")
    g("s_load_dwordx16 s[32:47], s[0:1], 0")
    g("s_load_dwordx8 s[48:55], s[0:1], 64")
    g.stamp(0)
    g("v_lshrrev_b32 v1, 6, v0")
    g("v_and_b32 v0, 63, v0")
    g("v_readfirstlane_b32 s24, v1")
    g("s_lshr_b32 s25, s2, 5")
    g("s_and_b32 s26, s2, 31")
    g("v_lshrrev_b32 v1, 4, v0")
    g("v_and_b32 v2, 15, v0")
    g("s_lshl_b32 s28, s25, 3"); g("s_add_u32 s28, s28, s26")
    g("s_cmp_eq_u32 s24, 4")
    g("s_cbranch_scc1 L_aux")
    KS, VS, KA, VA, TK = 4, 8, 10, 14, 22
    QF, F, VF, S, P = 24, 40, 56, 72, 76
    M, LS, AL, NM, T0, T1, T2, CA = 78, 79, 80, 81, 82, 83, 84, 85
    SG = 120
    O, WO = 88, 120
    CW, MW, CR, MR, H1A, P1A, OW, OR, H2A, P2A, GR, OUTA, WS_, WR = range(184, 198)
    NV = 224
    def tail_addr():
        g("v_and_b32 v3, 3, v0")
        g("s_lshl_b32 s3, s24, 11"); g("s_add_u32 s3, s3, %d" % COMB)
        g("v_lshlrev_b32 %s, 9, v3" % v(CW)); g("v_lshl_or_b32 %s, v1, 4, %s" % (v(CW), v(CW))); g("v_add_u32 %s, s3, %s" % (v(CW), v(CW)))
        g("s_lshl_b32 s3, s24, 2"); g("s_add_u32 s3, s3, %d" % ML)
        g("v_lshl_add_u32 %s, v3, 6, s3" % v(MW))
        g("s_lshl_b32 s3, s24, 9"); g("s_add_u32 s3, s3, %d" % COMB)
        g("v_and_b32 %s, 31, v0" % v(CR)); g("v_lshl_add_u32 %s, %s, 4, s3" % (v(CR), v(CR)))
        g("s_lshl_b32 s3, s24, 6"); g("s_add_u32 s3, s3, %d" % ML); g("v_mov_b32 %s, s3" % v(MR))
        g("s_lshl_b32 s3, s25, 2"); g("s_add_u32 s3, s3, s24"); g("s_mul_i32 s3, s3, %d" % (2 * CS1))
        g("s_lshl_b32 s7, s26, 8"); g("s_add_u32 s3, s3, s7"); g("s_add_u32 s3, s3, %d" % WS_B1)
        g("v_and_b32 %s, 1, v1" % v(H1A)); g("v_mul_u32_u24 %s, %d, %s" % (v(H1A), CS1, v(H1A)))
        g("v_lshl_add_u32 %s, v2, 4, %s" % (v(H1A), v(H1A))); g("v_add_u32 %s, s3, %s" % (v(H1A), v(H1A)))
        g("s_mul_i32 s3, s28, %d" % CS1); g("s_lshl_b32 s7, s24, 6"); g("s_add_u32 s3, s3, s7"); g("s_add_u32 s3, s3, %d" % WS_B1)
        g("v_lshrrev_b32 %s, 2, v0" % v(H2A))
        g("v_lshlrev_b32 %s, 9, %s" % (v(P1A), v(H2A))); g("v_lshl_or_b32 %s, v3, 4, %s" % (v(P1A), v(P1A))); g("v_add_u32 %s, s3, %s" % (v(P1A), v(P1A)))
        g("s_lshl_b32 s3, s24, 3"); g("s_add_u32 s3, s3, %d" % OA)
        g("v_lshl_add_u32 %s, v3, 5, s3" % v(OW))
        g("v_lshlrev_b32 %s, 5, v1" % v(OR)); g("v_add_u32 %s, %d, %s" % (v(OR), OA, v(OR)))
        g("v_lshrrev_b32 %s, 2, v0" % v(WR)); g("v_and_b32 %s, 3, %s" % (v(WR + 1), v(WR)))
        g("v_lshlrev_b32 %s, 8, %s" % (v(WR), v(WR))); g("v_lshl_or_b32 %s, %s, 6, %s" % (v(WR), v(WR + 1), v(WR)))
        g("v_lshl_or_b32 %s, v3, 4, %s" % (v(WR), v(WR)))
        g("s_lshl_b32 s3, s24, 15"); g("s_add_u32 s3, s3, 0x4000"); g("v_add_u32 %s, s3, %s" % (v(WR), v(WR)))
        for a_ in range(1, 4): g("v_xor_b32 %s, %d, %s" % (v(WR + a_), 64 * a_, v(WR)))
        g("s_mul_i32 s3, s24, %d" % (16 * CS2)); g("s_lshl_b32 s7, s28, 6"); g("s_add_u32 s3, s3, s7"); g("s_add_u32 s3, s3, %d" % WS_B2)
        g("v_mul_u32_u24 %s, %d, %s" % (v(H2A), CS2, v(H2A))); g("v_lshl_add_u32 %s, v3, 4, %s" % (v(H2A), v(H2A))); g("v_add_u32 %s, s3, %s" % (v(H2A), v(H2A)))
        g("s_mul_i32 s3, s28, %d" % CS2); g("s_lshl_b32 s7, s24, 4"); g("s_add_u32 s3, s3, s7"); g("s_add_u32 s3, s3, %d" % WS_B2)
        g("v_lshl_add_u32 %s, v0, 6, s3" % v(P2A))
        g("s_lshr_b32 s3, s24, 1"); g("s_lshl_b32 s3, s3, 4"); g("s_and_b32 s7, s24, 1"); g("s_lshl_b32 s7, s7, 2")
        g("s_add_u32 s3, s3, s7"); g("s_add_u32 s3, s3, %d" % GA); g("v_mov_b32 %s, s3" % v(GR))
        g("s_lshl_b32 s3, s28, 4"); g("s_lshl_b32 s7, s24, 1"); g("s_add_u32 s3, s3, s7"); g("v_mov_b32 %s, s3" % v(OUTA))
        g("s_mov_b32 s6, %s" % hx(f2u(LOG2E)))
    g("v_xor_b32 v3, v1, v2")
    g("v_lshlrev_b32 v3, 4, v3")
    g("v_lshl_or_b32 %s, v1, 8, v3" % v(KS))
    for u in range(1, 4): g("v_xor_b32 %s, %d, %s" % (v(KS + u), 64 * u, v(KS)))
    g("v_lshlrev_b32 v3, 1, v1")
    g("v_xor_b32 v3, v3, v2")
    g("v_lshlrev_b32 v3, 4, v3")
    g("v_lshl_or_b32 %s, v1, 8, v3" % v(VS))
    g("v_xor_b32 %s, 0x80, %s" % (v(VS + 1), v(VS)))
    NP = 4; SS = o["S"]; D = o["D"]; TH = o["thr"]; N = o["N"]
    assert N % 4 == 0 and 12 <= N <= 32 and SS >= N + 2
    PA = 86
    g("s_lshl_b32 s27, s24, 12")
    g("s_mul_i32 s3, s25, %d" % o["rot"])
    g("s_add_u32 s27, s27, s3")
    g("s_lshl_b32 s5, s26, 14"); g("s_add_u32 s5, s5, s27")
    g("s_lshl_b32 s29, s24, 15")
    g("s_lshl_b32 s3, s25, 24")
    g("s_waitcnt lgkmcnt(0)")
    g.srd(8, 34, 1 << 24, "s3")
    g.srd(12, 36, 1 << 24, "s3")
    g.srd(20, 54, WS_SIZE)
    if o["b0"] == 1: g("s_barrier")
    cnt = [0]
    def throttle():
        k = cnt[0]; cnt[0] += 1
        if k >= D: g("s_waitcnt vmcnt(%d)" % (D - 1))
        return k >= D
    g("s_mov_b32 s92, s5")
    def kload(u): g("buffer_load_dwordx4 %s, s[8:11], s4 offen offset:%d nt lds" % (v(KS + u), u * 1024))
    def vload(u): g("buffer_load_dwordx4 %s, s[12:15], s4 offen offset:%d nt lds" % (v(VS + (u & 1)), u * 1024))
    for t_ in range(8):
        g("s_and_b32 s4, s5, 0xffffff")
        g("s_add_u32 m0, s29, %d" % (4096 * (t_ >> 1) + 0x4000 * (t_ & 1)))
        g("s_add_u32 s5, s5, 0x80000")
        for u in range(4):
            if cnt[0] == D:
                for n in range(32): g("v_mov_b32 %s, 0" % v(O + n))
                g("v_mov_b32 %s, 0xff7fffff" % v(M))
                g("v_mov_b32 %s, 0" % v(LS))
                tail_addr()
                g("s_mul_i32 s3, s25, %d" % NP); g("s_add_u32 s3, s3, s24"); g("s_mul_i32 s3, s3, %d" % o["cstride"]); g("s_add_u32 s3, s3, %d" % WS_CNT)
                g("v_mov_b32 v3, s3"); g("v_mov_b32 %s, 0x7ffffff0" % v(CA))
                g("v_cmp_eq_u32 vcc, 0, v0")
                g("s_add_u32 s62, s26, %d" % (32 * (N + 2)))
                g("s_mov_b32 s61, %d" % (N + 2))
                g("v_cndmask_b32 %s, %s, v3, vcc" % (v(CA), v(CA)))
                g("v_lshlrev_b32 v3, 2, v1"); g("v_xor_b32 v3, v3, v2"); g("v_lshlrev_b32 v3, 4, v3")
                g("v_lshl_or_b32 v3, v1, 10, v3"); g("s_lshl_b32 s3, s24, 8"); g("v_add_u32 %s, s3, v3" % v(WS_))
                g("s_and_b32 s3, s28, 63"); g("s_lshl_b32 s3, s3, 16")
                g.srd(44, 40, 65536, "s3")
                g.srd(16, 50, 1024)
                g("v_and_b32 v3, 3, v0"); g("v_lshlrev_b32 v3, 5, v3"); g("v_lshl_or_b32 v3, v1, 3, v3")
                g("s_lshl_b32 s3, s24, 12"); g("s_add_u32 s3, s3, %d" % STAGE); g("v_add_u32 %s, s3, v3" % v(PA))
            throttle()
            kload(u)
        if t_ == 0:
            g("v_xor_b32 v3, v1, v2")
            g("v_lshlrev_b32 v3, 4, v3")
            g("v_lshl_or_b32 v3, v2, 8, v3")
            g("v_add_u32 %s, s29, v3" % v(KA))
            for k in range(1, 4): g("v_xor_b32 %s, %d, %s" % (v(KA + k), 64 * k, v(KA)))
            g("v_lshrrev_b32 v3, 2, v0")
            g("v_and_b32 %s, 7, v3" % v(T0))
            g("v_lshlrev_b32 %s, 5, %s" % (v(T0), v(T0)))
            g("v_lshl_or_b32 v3, v3, 8, %s" % v(T0))
            g("v_and_b32 %s, 3, v0" % v(T0))
            g("v_lshl_or_b32 v3, %s, 3, v3" % v(T0))
            g("v_add_u32 %s, s29, v3" % v(VA))
            for n in range(1, 8): g("v_xor_b32 %s, %d, %s" % (v(VA + n), 32 * n, v(VA)))
            if o["b0"] >= 2: g("s_barrier")
    g("v_and_b32 v3, 3, v0")
    g("v_lshlrev_b32 v3, 8, v3")
    g("v_lshl_or_b32 v3, v1, 4, v3")
    g("v_add_u32 v3, %d, v3" % QA)
    g("v_mov_b32 %s, %d" % (v(T2), TAGA))
    g("s_mov_b32 s56, %s" % hx(f2u(128.0 ** -0.5))); g("s_mov_b32 s57, s56")
    g("s_mov_b32 s58, 0")
    g("s_mov_b32 s59, s29")
    g("s_mov_b32 s60, %d" % N)
    g("s_mov_b32 s63, 4")
    tmask = (((1 << N) - 1) << (N - 8)) | (0b1010 << (2 * N - 8))
    g("s_mov_b32 s40, %s" % hx(tmask)); g("s_mov_b32 s41, %s" % hx(tmask >> 32))
    g("s_mov_b32 s95, %d" % N)
    if o["sprio"]: g("s_setprio %d" % o["sprio"])
    g.stamp(1)
    g("s_mov_b32 s31, 0x400000")
    g.lab("L_wq")
    g("ds_read_b64 %s, %s" % (v(T0, 2), v(T2)))
    g("s_waitcnt lgkmcnt(0)")
    g("v_readfirstlane_b32 s3, %s" % v(T1))
    g("v_readfirstlane_b32 s30, %s" % v(T0))
    g("s_cmp_lg_u32 s3, 0")
    g("s_cbranch_scc1 L_wq_done")
    if o["qsleep"]: g("s_sleep %d" % o["qsleep"])
    g("s_sub_u32 s31, s31, 1")
    g("s_cbranch_scc0 L_wq")
    g.lab("L_wq_done")
    for k in range(4): g("ds_read_b128 %s, v3 offset:%d" % (v(QF + 4 * k, 4), 64 * k))
    g.stamp(2)
    g("s_waitcnt lgkmcnt(0)")
    def refill(nm, th, atomic):
        g("s_bitcmp1_b32 s40, 0")
        g("s_cbranch_scc1 L_%sv" % nm)
        g("s_and_b32 s4, s5, 0xffffff"); g("s_add_u32 s5, s5, 0x80000")
        th = [th] * 4 if th < 10 else [int(c) for c in str(th)]
        for u in range(4): g("s_waitcnt vmcnt(%d)" % (th[u] - 1)); kload(u)
        g("s_branch L_%sd" % nm)
        g.lab("L_%sv" % nm)
        g("s_and_b32 s4, s92, 0xffffff"); g("s_add_u32 s92, s92, 0x80000")
        if atomic:
            g("s_cmp_lg_u64 s[40:41], 1")
            g("s_cbranch_scc1 L_%sn" % nm)
            g("v_mov_b32 %s, 1" % v(TK))
            g("buffer_atomic_add %s, %s, s[20:23], 0 offen sc0" % (v(TK), v(CA)))
            g.lab("L_%sn" % nm)
        for u in range(4): g("s_waitcnt vmcnt(%d)" % (th[u] - 1)); vload(u)
        g.lab("L_%sd" % nm)
        g("s_lshr_b64 s[40:41], s[40:41], 1")
    def unpack(a, b):
        g("v_lshlrev_b32 %s, 16, %s" % (v(S), v(a))); g("v_and_b32 %s, 0xffff0000, %s" % (v(S + 1), v(a)))
        g("v_lshlrev_b32 %s, 16, %s" % (v(S + 2), v(b))); g("v_and_b32 %s, 0xffff0000, %s" % (v(S + 3), v(b)))
    def midstamp(i, c):
        if o["ts"] == 2:
            g("s_cmp_lg_u32 s60, %d" % c); g("s_cbranch_scc1 L_ts%d" % i); g.stamp(i); g("s_waitcnt lgkmcnt(0)"); g.lab("L_ts%d" % i)
    g.lab("L_a")
    g("s_waitcnt vmcnt(12)")
    for k in range(4): g("ds_read_b128 %s, %s" % (v(F + 4 * k, 4), v(KA + k)))
    midstamp(8, N - 12)
    g("s_mov_b32 m0, s59")
    g("s_cmp_lg_u32 s58, 0")
    for k in range(4):
        g("s_waitcnt lgkmcnt(%d)" % (3 - k))
        g("v_mfma_f32_16x16x32_bf16 %s, %s, %s, %s" % (v(S, 4), v(F + 4 * k, 4), v(QF + 4 * k, 4), "0" if k == 0 else v(S, 4)))
    g("s_cbranch_scc1 L_ai")
    refill("a", o["thk"] or TH, False)
    g.lab("L_ai")
    g("s_add_u32 s3, s59, 0x1000"); g("s_xor_b32 s3, s3, s59"); g("s_and_b32 s3, s3, 0x3000")
    g("s_lshl_b32 s7, s58, 14"); g("s_or_b32 s3, s3, s7")
    g("s_cmp_lg_u32 s63, s58")
    g("s_cselect_b32 s7, 1, 0"); g("s_sub_u32 s63, s63, s58"); g("s_andn2_b32 s58, s7, s58")
    g("s_cselect_b32 s3, 0x4000, s3")
    g("v_cvt_pk_bf16_f32 %s, %s, %s" % (v(T0), v(S), v(S + 1)))
    g("v_cvt_pk_bf16_f32 %s, %s, %s" % (v(T1), v(S + 2), v(S + 3)))
    unpack(T0, T1)
    g("v_pk_mul_f32 %s, %s, s[56:57]" % (v(S, 2), v(S, 2)))
    g("v_pk_mul_f32 %s, %s, s[56:57]" % (v(S + 2, 2), v(S + 2, 2)))
    for k in range(4): g("v_xor_b32 %s, s3, %s" % (v(KA + k), v(KA + k)))
    g("v_cvt_pk_bf16_f32 %s, %s, %s" % (v(T0), v(S), v(S + 1)))
    g("v_cvt_pk_bf16_f32 %s, %s, %s" % (v(T1), v(S + 2), v(S + 3)))
    g("v_max3_f32 %s, %s, %s, %s" % (v(M), v(S), v(S + 1), v(M)))
    g("v_max3_f32 %s, %s, %s, %s" % (v(M), v(S + 2), v(S + 3), v(M)))
    g("s_mov_b32 exec_lo, 0x000f000f"); g("s_mov_b32 exec_hi, 0x000f000f")
    g("ds_write_b64 %s, %s" % (v(PA), v(T0, 2)))
    g("s_mov_b64 exec, -1")
    g("s_xor_b32 s59, s59, s3")
    g("v_add_u32 %s, 128, %s" % (v(PA), v(PA)))
    g("s_sub_u32 s60, s60, 1")
    g("s_cmp_lg_u32 s60, 0")
    g("s_cbranch_scc1 L_a")
    if o["ts"] == 2: g.stamp(9)
    g.red_swap("v_max_f32", [M], [T1])
    g("v_add_u32 %s, %d, %s" % (v(PA), -128 * N, v(PA)))
    g("v_cvt_pk_bf16_f32 %s, %s, %s" % (v(M), v(M), v(M)))
    g("s_mov_b32 s60, %d" % N)
    g("v_lshlrev_b32 %s, 16, %s" % (v(M), v(M)))
    g("v_mul_f32 %s, s6, %s" % (v(NM), v(M)))
    g.lab("L_c")
    g("ds_read_b64 %s, %s" % (v(T0, 2), v(PA)))
    g("s_waitcnt vmcnt(12)")
    for n in range(8): g("ds_read_b64_tr_b16 %s, %s" % (v(VF + 2 * n, 2), v(VA + n)))
    midstamp(10, N // 2)
    g("s_mov_b32 m0, s59")
    g("s_add_u32 s3, s59, 0x1000"); g("s_xor_b32 s3, s3, s59"); g("s_and_b32 s3, s3, 0x3000")
    g("s_xor_b32 s59, s59, s3")
    g("v_add_u32 %s, 128, %s" % (v(PA), v(PA)))
    g("s_waitcnt lgkmcnt(8)")
    unpack(T0, T1)
    for e in range(4): g("v_fma_f32 %s, %s, s6, -%s" % (v(S + e), v(S + e), v(NM)))
    for e in range(4): g("v_exp_f32 %s, %s" % (v(S + e), v(S + e)))
    for n in range(8): g("v_xor_b32 %s, s3, %s" % (v(VA + n), v(VA + n)))
    g("v_cvt_pk_bf16_f32 %s, %s, %s" % (v(P), v(S), v(S + 1)))
    g("v_cvt_pk_bf16_f32 %s, %s, %s" % (v(P + 1), v(S + 2), v(S + 3)))
    g("v_add_f32 %s, %s, %s" % (v(T0), v(S), v(S + 1)))
    g("v_add_f32 %s, %s, %s" % (v(T1), v(S + 2), v(S + 3)))
    g("v_add_f32 %s, %s, %s" % (v(LS), v(LS), v(T0)))
    g("v_add_f32 %s, %s, %s" % (v(LS), v(LS), v(T1)))
    for n in range(8):
        g("s_waitcnt lgkmcnt(%d)" % (7 - n))
        g("v_mfma_f32_16x16x16_bf16 %s, %s, %s, %s" % (v(O + 4 * n, 4), v(VF + 2 * n, 2), v(P, 2), v(O + 4 * n, 4)))
    refill("c", o["thv"] or TH, SS == N + 2)
    g("s_sub_u32 s60, s60, 1")
    g("s_cmp_lg_u32 s60, 0")
    g("s_cbranch_scc1 L_c")
    if o["ts"] == 2: g.stamp(11)
    g.lab("L_loop")
    g("s_cmp_lg_u32 s58, 0")
    g("s_cbranch_scc1 L_k")
    g("s_waitcnt vmcnt(12)")
    g.lab("L_k")
    for k in range(4): g("ds_read_b128 %s, %s" % (v(F + 4 * k, 4), v(KA + k)))
    if o["stamps"]: g("s_add_u32 s95, s95, 1")
    g("s_mov_b32 s3, s62")
    g("s_mov_b32 m0, s59")
    g("s_cmp_lg_u32 s58, 0")
    for k in range(4):
        g("s_waitcnt lgkmcnt(%d)" % (3 - k))
        g("v_mfma_f32_16x16x32_bf16 %s, %s, %s, %s" % (v(S, 4), v(F + 4 * k, 4), v(QF + 4 * k, 4), "0" if k == 0 else v(S, 4)))
    g("s_cbranch_scc1 L_ki")
    g("s_cmp_lt_u32 s61, %d" % SS)
    g("s_cbranch_scc1 L_st")
    g("s_waitcnt vmcnt(4)")
    g("v_readfirstlane_b32 s3, %s" % v(TK))
    g("s_add_u32 s3, s3, %d" % (32 * SS))
    g("s_cmp_ge_u32 s3, 1024")
    g("s_cbranch_scc1 L_last")
    if o["dynthr"] != TH:
        g("s_lshl_b32 s3, s3, 14")
        g("s_add_u32 s3, s3, s27")
        g("s_and_b32 s4, s3, 0xffffff")
        for u in range(4):
            if o["dynthr"] and u + 4 > o["dynthr"] - 1: g("s_waitcnt vmcnt(%d)" % (o["dynthr"] - 1))
            g("buffer_load_dwordx4 %s, s[8:11], s4 offen offset:%d nt lds" % (v(KS + u), u * 1024))
        g("s_branch L_ki")
    g.lab("L_st")
    g("s_lshl_b32 s3, s3, 14")
    g("s_add_u32 s3, s3, s27")
    g("s_and_b32 s4, s3, 0xffffff")
    for u in range(4):
        g("s_waitcnt vmcnt(%d)" % (TH - 1))
        g("buffer_load_dwordx4 %s, s[8:11], s4 offen offset:%d nt lds" % (v(KS + u), u * 1024))
    g.lab("L_ki")
    g.nop(7)
    if o["round"]:
        g("v_cvt_pk_bf16_f32 %s, %s, %s" % (v(T0), v(S), v(S + 1)))
        g("v_cvt_pk_bf16_f32 %s, %s, %s" % (v(T1), v(S + 2), v(S + 3)))
        g("v_lshlrev_b32 %s, 16, %s" % (v(S), v(T0))); g("v_and_b32 %s, 0xffff0000, %s" % (v(S + 1), v(T0)))
        g("v_lshlrev_b32 %s, 16, %s" % (v(S + 2), v(T1))); g("v_and_b32 %s, 0xffff0000, %s" % (v(S + 3), v(T1)))
    g("v_pk_mul_f32 %s, %s, s[56:57]" % (v(S, 2), v(S, 2)))
    g("v_pk_mul_f32 %s, %s, s[56:57]" % (v(S + 2, 2), v(S + 2, 2)))
    if o["round"]:
        g("v_cvt_pk_bf16_f32 %s, %s, %s" % (v(T0), v(S), v(S + 1)))
        g("v_cvt_pk_bf16_f32 %s, %s, %s" % (v(T1), v(S + 2), v(S + 3)))
        g("v_lshlrev_b32 %s, 16, %s" % (v(S), v(T0))); g("v_and_b32 %s, 0xffff0000, %s" % (v(S + 1), v(T0)))
        g("v_lshlrev_b32 %s, 16, %s" % (v(S + 2), v(T1))); g("v_and_b32 %s, 0xffff0000, %s" % (v(S + 3), v(T1)))
    g("v_max3_f32 %s, %s, %s, %s" % (v(T0), v(S), v(S + 1), v(S + 2)))
    g("v_max3_f32 %s, %s, %s, %s" % (v(T0), v(T0), v(S + 3), v(M)))
    g("v_cmp_gt_f32 vcc, %s, %s" % (v(T0), v(M)))
    g("s_cbranch_vccz L_ns")
    g.red_swap("v_max_f32", [T0], [T1])
    g("v_sub_f32 %s, %s, %s" % (v(AL), v(M), v(T0)))
    g("v_mul_f32 %s, s6, %s" % (v(NM), v(T0)))
    g("v_mul_f32 %s, s6, %s" % (v(AL), v(AL)))
    g("v_exp_f32 %s, %s" % (v(AL), v(AL)))
    g("v_mov_b32 %s, %s" % (v(M), v(T0)))
    g("v_mul_f32 %s, %s, %s" % (v(LS), v(AL), v(LS)))
    for n in range(32): g("v_mul_f32 %s, %s, %s" % (v(O + n), v(AL), v(O + n)))
    g.lab("L_ns")
    for e in range(4): g("v_fma_f32 %s, %s, s6, -%s" % (v(S + e), v(S + e), v(NM)))
    for e in range(4): g("v_exp_f32 %s, %s" % (v(S + e), v(S + e)))
    g("s_cmp_lg_u32 s58, 0")
    g("v_cvt_pk_bf16_f32 %s, %s, %s" % (v(P), v(S), v(S + 1)))
    g("v_cvt_pk_bf16_f32 %s, %s, %s" % (v(P + 1), v(S + 2), v(S + 3)))
    g("s_cbranch_scc1 L_vw")
    g("s_waitcnt vmcnt(12)")
    g.lab("L_v")
    for n in range(8): g("ds_read_b64_tr_b16 %s, %s offset:4096" % (v(VF + 2 * n, 2), v(VA + n)))
    g("s_add_u32 m0, s59, 4096")
    g("v_add_f32 %s, %s, %s" % (v(T0), v(S), v(S + 1)))
    g("v_add_f32 %s, %s, %s" % (v(T1), v(S + 2), v(S + 3)))
    g("v_add_f32 %s, %s, %s" % (v(LS), v(LS), v(T0)))
    g("v_add_f32 %s, %s, %s" % (v(LS), v(LS), v(T1)))
    g("s_cmp_lg_u32 s58, 0")
    for n in range(8):
        g("s_waitcnt lgkmcnt(%d)" % (7 - n))
        g("v_mfma_f32_16x16x16_bf16 %s, %s, %s, %s" % (v(O + 4 * n, 4), v(VF + 2 * n, 2), v(P, 2), v(O + 4 * n, 4)))
    g("s_cbranch_scc1 L_vs")
    g("s_add_u32 s61, s61, 1"); g("s_add_u32 s62, s62, 32")
    g("s_cmp_lt_u32 s61, %d" % SS)
    g("s_cbranch_scc1 L_na")
    g("v_mov_b32 %s, 1" % v(TK))
    g("buffer_atomic_add %s, %s, s[20:23], 0 offen sc0" % (v(TK), v(CA)))
    if o["dynthr"] != TH:
        for u in range(4):
            if o["dynthr"]: g("s_waitcnt vmcnt(%d)" % o["dynthr"])
            g("buffer_load_dwordx4 %s, s[12:15], s4 offen offset:%d nt lds" % (v(VS + (u & 1)), u * 1024))
        g("s_movk_i32 s3, 0x2000")
        g("s_branch L_sw")
    g.lab("L_na")
    for u in range(4):
        g("s_waitcnt vmcnt(%d)" % (TH - 1))
        g("buffer_load_dwordx4 %s, s[12:15], s4 offen offset:%d nt lds" % (v(VS + (u & 1)), u * 1024))
    g("s_movk_i32 s3, 0x2000")
    g.lab("L_sw")
    for r in list(range(KA, KA + 4)) + list(range(VA, VA + 8)): g("v_xor_b32 %s, s3, %s" % (v(r), v(r)))
    g("s_xor_b32 s59, s59, s3")
    g("s_branch L_loop")
    g.lab("L_last")
    g("s_mov_b32 s58, 1"); g("s_mov_b32 s60, 1")
    g("s_cmp_ge_u32 s26, %d" % (0 if o["nowo"] else 8))
    g("s_cbranch_scc1 L_ki")
    g("s_mov_b32 s4, 0")
    for j in range(16):
        if j & 3 == 0: g("s_add_u32 m0, s29, %d" % (0x4000 + 1024 * j))
        if j and o["womode"] == 1: g("s_add_u32 s4, s4, %d" % (0 if j & 3 else 4096))
        elif j: g("s_add_u32 s4, s4, %d" % (3072 if j & 3 else 3072 + 4096))
        else: g("s_nop 0")
        g("buffer_load_dwordx4 %s, s[44:47], s4 offen offset:%d nt lds" % (v(WS_), (j & 3) * 1024))
    g("s_branch L_ki")
    g.lab("L_vw")
    g("s_cmp_lg_u32 s60, 2")
    g("s_cbranch_scc1 L_v")
    g("s_waitcnt vmcnt(16)")
    g("s_cmp_lt_u32 s26, %d" % (0 if o["nowo"] else 8))
    g("s_cbranch_scc1 L_v")
    g("s_waitcnt vmcnt(0)")
    g("s_branch L_v")
    g.lab("L_vs")
    g("s_movk_i32 s3, 0x2000")
    g("s_cmp_eq_u32 s60, 1")
    g("s_mov_b32 s60, 2")
    g("s_cbranch_scc1 L_sw")
    g.lab("L_tail")
    g.stamp(3)
    g.red_swap("v_add_f32", [LS], [T1])
    g("s_mov_b32 exec_lo, 0x000f000f"); g("s_mov_b32 exec_hi, 0x000f000f")
    for n in range(8): g("ds_write_b128 %s, %s offset:%d" % (v(CW), v(O + 4 * n, 4), 64 * n))
    g("ds_write2_b32 %s, %s, %s offset0:0 offset1:8" % (v(MW), v(M), v(LS)))
    g("s_mov_b64 exec, -1")
    g("s_cmp_eq_u32 s24, 4")
    g("s_waitcnt lgkmcnt(0)")
    g("s_cbranch_scc1 L_nb2")
    g("s_barrier")
    g.lab("L_nb2")
    g.stamp(4)
    A = 24
    g("ds_read_b128 %s, %s" % (v(A, 4), v(MR)))
    g("ds_read_b128 %s, %s offset:32" % (v(A + 4, 4), v(MR)))
    for w in range(4): g("ds_read_b128 %s, %s offset:%d" % (v(A + 8 + 4 * w, 4), v(CR), 2048 * w))
    GG = 4
    g("ds_read2_b32 %s, %s offset0:0 offset1:8" % (v(GG, 2), v(GR)))
    g("ds_read2_b32 %s, %s offset0:2 offset1:10" % (v(GG + 2, 2), v(GR)))
    R = 48
    g("v_mov_b32 %s, s30" % v(R + 3))
    g("s_waitcnt lgkmcnt(7)")
    g("v_max3_f32 %s, %s, %s, %s" % (v(T0), v(A), v(A + 1), v(A + 2)))
    g("v_max_f32 %s, %s, %s" % (v(T0), v(T0), v(A + 3)))
    for w in range(4): g("v_sub_f32 %s, %s, %s" % (v(A + w), v(A + w), v(T0)))
    for w in range(4): g("v_mul_f32 %s, s6, %s" % (v(A + w), v(A + w)))
    for w in range(4): g("v_exp_f32 %s, %s" % (v(A + w), v(A + w)))
    g("s_waitcnt lgkmcnt(5)")
    g("v_mul_f32 %s, %s, %s" % (v(T1), v(A), v(A + 4)))
    for w in range(1, 4): g("v_fmac_f32 %s, %s, %s" % (v(T1), v(A + w), v(A + 4 + w)))
    for e in range(4): g("v_mul_f32 %s, %s, %s" % (v(A + 8 + e), v(A), v(A + 8 + e)))
    g("v_rcp_f32 %s, %s" % (v(T2), v(T1)))
    g("v_log_f32 %s, %s" % (v(R + 2), v(T1)))
    for w in range(1, 4):
        g("s_waitcnt lgkmcnt(%d)" % (5 - w))
        for e in range(4): g("v_fmac_f32 %s, %s, %s" % (v(A + 8 + e), v(A + w), v(A + 8 + 4 * w + e)))
    g("v_fmac_f32 %s, s6, %s" % (v(R + 2), v(T0)))
    for e in range(4): g("v_mul_f32 %s, %s, %s" % (v(A + 8 + e), v(T2), v(A + 8 + e)))
    g("v_cvt_pk_bf16_f32 %s, %s, %s" % (v(R), v(A + 8), v(A + 9)))
    g("v_cvt_pk_bf16_f32 %s, %s, %s" % (v(R + 1), v(A + 10), v(A + 11)))
    g("s_mov_b32 exec_hi, 0")
    if o["tailmode"] == 2: g("s_mov_b32 exec_lo, 0x00ff00ff")
    if o["tailmode"] == 3: g("s_mov_b32 exec_lo, 0x000f000f")
    if o["tailmode"] != 1: g("buffer_store_dwordx4 %s, %s, s[20:23], 0 offen sc1" % (v(R, 4), v(H1A)))
    if o["tailmode"] >= 2: g("s_mov_b32 exec_lo, -1")
    g("s_mov_b32 exec_hi, -1")
    g.tstamp(8)
    if o["ts"] == 1:
        for i in (9, 10, 11, 12, 13): g.stamp(i)
    g("s_cmp_ge_u32 s26, 8")
    g("s_cbranch_scc1 L_fin")
    B = 56
    g.poll("L_p1", ["buffer_load_dwordx4 %s, %s, s[20:23], 0 offen offset:%d sc1" % (v(B + 4 * u, 4), v(P1A), 256 * u) for u in range(2)],
           [B + 3, B + 7], st=9, lim=(0 if o["tailmode"] else 0x40000),
           first=["ds_read_b64_tr_b16 %s, %s offset:%d" % (v(WO + 16 * t + 2 * n, 2), v(WR + (n >> 1)), 4096 * t + 8 * (n & 1)) for t in range(4) for n in range(8)])
    g.stamp(5)
    g("v_max_f32 %s, %s, %s" % (v(T0), v(B + 2), v(B + 6)))
    U = 64
    for u in range(2):
        for e in range(2):
            g("v_lshlrev_b32 %s, 16, %s" % (v(U + 4 * u + 2 * e), v(B + 4 * u + e)))
            g("v_and_b32 %s, 0xffff0000, %s" % (v(U + 4 * u + 2 * e + 1), v(B + 4 * u + e)))
    g.red_dpp("v_max_f32", [T0], ["row_ror:4", "row_ror:8"])
    g.red_swap("v_max_f32", [T0], [T1])
    for u in range(2): g("v_sub_f32 %s, %s, %s" % (v(B + 4 * u + 2), v(B + 4 * u + 2), v(T0)))
    for u in range(2): g("v_exp_f32 %s, %s" % (v(B + 4 * u + 2), v(B + 4 * u + 2)))
    g("s_nop 0")
    for e in range(4): g("v_mul_f32 %s, %s, %s" % (v(U + e), v(B + 2), v(U + e)))
    g("v_add_f32 %s, %s, %s" % (v(B), v(B + 2), v(B + 6)))
    for e in range(4): g("v_fmac_f32 %s, %s, %s" % (v(U + e), v(B + 6), v(U + 4 + e)))
    rs = [B, U, U + 1, U + 2, U + 3]
    g.red_dpp("v_add_f32", rs, ["row_ror:4", "row_ror:8"])
    g.red_swap("v_add_f32", rs, [B + 1, U + 4, U + 5, U + 6, U + 7])
    g("v_rcp_f32 %s, %s" % (v(B), v(B)))
    g("s_cmp_eq_u32 s24, 4")
    for e in range(4): g("v_mul_f32 %s, %s, %s" % (v(U + e), v(B), v(U + e)))
    g("v_cvt_pk_bf16_f32 %s, %s, %s" % (v(U), v(U), v(U + 1)))
    g("v_cvt_pk_bf16_f32 %s, %s, %s" % (v(U + 1), v(U + 2), v(U + 3)))
    g("s_mov_b64 exec, 15")
    g("ds_write_b64 %s, %s" % (v(OW), v(U, 2)))
    g("s_mov_b64 exec, -1")
    AC, AX = 48, 40
    def acc(n): return AC + n if n < 2 else AX + n
    g("v_mov_b32 %s, 0" % v(AC + 2))
    g("s_waitcnt lgkmcnt(0)")
    g.tstamp(10)
    g("s_cbranch_scc1 L_nb3")
    g("s_barrier")
    g.lab("L_nb3")
    g.tstamp(11)
    g("ds_read_b128 %s, %s" % (v(U, 4), v(OR)))
    g("ds_read_b128 %s, %s offset:16" % (v(U + 4, 4), v(OR)))
    for t in range(4):
        if t % 2 == 0: g("s_waitcnt lgkmcnt(%d)" % (1 - t // 2))
        for hh in range(2):
            for n in range(8):
                g("v_dot2_f32_bf16 %s, %s, %s, %s" % (v(acc(n)), v(WO + 16 * t + 2 * n + hh), v(U + 2 * t + hh), "0" if t == 0 and hh == 0 else v(acc(n))))
    g.tswap("v_permlane32_swap_b32", [(acc(n), acc(n + 4)) for n in range(4)])
    g.tswap("v_permlane16_swap_b32", [(acc(n), acc(n + 2)) for n in range(2)])
    g("buffer_store_dwordx4 %s, %s, s[20:23], 0 offen sc1" % (v(AC, 4), v(H2A)))
    g.tstamp(12)
    g.poll("L_p2", ["buffer_load_dwordx4 %s, %s, s[20:23], 0 offen sc1" % (v(B, 4), v(P2A))], [B + 3], st=13, lim=(0 if o["tailmode"] else 0x40000))
    g.stamp(6)
    R0, R1 = B, B + 1
    g.red_wave("v_add_f32", [R0, R1], [T0, T1])
    g.rbf([(R0, R1)], T0)
    g("v_mul_f32 %s, %s, %s" % (v(R0), v(R0), v(GG)))
    g("v_mul_f32 %s, %s, %s" % (v(R1), v(R1), v(GG + 1)))
    g.rbf([(R0, R1)], T0)
    g("v_add_f32 %s, %s, %s" % (v(R0), v(R0), v(GG + 2)))
    g("v_add_f32 %s, %s, %s" % (v(R1), v(R1), v(GG + 3)))
    g("v_cvt_pk_bf16_f32 %s, %s, %s" % (v(R0), v(R0), v(R1)))
    g("s_mov_b64 exec, 1")
    g("buffer_store_short %s, %s, s[16:19], 0 offen" % (v(R0), v(OUTA)))
    g("buffer_store_short_d16_hi %s, %s, s[16:19], 0 offen offset:8" % (v(R0), v(OUTA)))
    g("s_or_b32 s3, s2, s24")
    g("s_cbranch_scc1 L_noep")
    g("buffer_store_dword %s, off, s[20:23], 0 offset:%d sc1" % (v(AC + 3), WS_EPOCH))
    g.lab("L_noep")
    g("s_mov_b64 exec, -1")
    if o["stamps"]:
        g("s_branch L_fin2")
    g.lab("L_fin")
    if o["stamps"]:
        g.stamp(5); g.stamp(6)
        g.lab("L_fin2")
        g.stamp(7)
        g("s_cmp_lg_u32 s24, %d" % o["sw"])
        g("s_cbranch_scc1 L_fin3")
        g.write_stamps([0, 1, 2, 3, 4, 5, 6, 7] + ([8, 9, 10, 11, 12, 13] if o["ts"] in (1, 2) else []))
        g.lab("L_fin3")
    g("s_waitcnt vmcnt(0)")
    g("s_endpgm")

    g.lab("L_aux")
    if o["auxprio"]: g("s_setprio %d" % o["auxprio"])
    X, XF, TT = 4, 8, 16
    g("v_lshlrev_b32 v3, 4, v0")
    if o["wqrot"]: g("s_add_u32 s3, s26, s25"); g("s_and_b32 s3, s3, 7")
    else: g("s_and_b32 s3, s26, 7")
    g("s_lshl_b32 s3, s3, 6")
    g("s_lshr_b32 s7, s26, 3"); g("s_lshl_b32 s7, s7, 4"); g("s_add_u32 s27, s3, s7")
    g("s_lshl_b32 s3, s25, 9"); g("s_add_u32 s3, s3, s27"); g("s_lshl_b32 s3, s3, 1")
    g("v_lshrrev_b32 %s, 1, v0" % v(TT)); g("v_lshlrev_b32 %s, 13, %s" % (v(TT), v(TT)))
    g("v_and_b32 %s, 1, v0" % v(TT + 1)); g("v_lshl_or_b32 %s, %s, 4, %s" % (v(TT), v(TT + 1), v(TT)))
    g("v_add_u32 %s, s3, %s" % (v(TT), v(TT)))
    if o["wqmode"] == 1:
        g("s_lshl_b32 s3, s2, 14"); g("v_add_u32 %s, s3, v3" % v(TT))
    if o["wqmode"] == 2:
        g("s_and_b32 s3, s2, 63"); g("s_lshl_b32 s3, s3, 7"); g("s_lshr_b32 s7, s2, 6"); g("s_lshl_b32 s7, s7, 20"); g("s_add_u32 s3, s3, s7")
        g("v_lshrrev_b32 %s, 3, v0" % v(TT)); g("v_lshlrev_b32 %s, 13, %s" % (v(TT), v(TT)))
        g("v_and_b32 %s, 7, v0" % v(TT + 1)); g("v_lshl_or_b32 %s, %s, 4, %s" % (v(TT), v(TT + 1), v(TT)))
        g("v_add_u32 %s, s3, %s" % (v(TT), v(TT)))
    g("v_mov_b32 %s, %d" % (v(TT + 2), TAGA)); g("v_mov_b32 %s, 0" % v(TT + 3))
    g("ds_write_b32 %s, %s offset:4" % (v(TT + 2), v(TT + 3)))
    g("s_waitcnt lgkmcnt(0)")
    if o["ts"] == 3: g.stamp(11)
    if o["b0"] == 3: g("s_barrier")
    g.srd(8, 32, 1024)
    g.srd(12, 38, 512 * 8192)
    g.srd(20, 54, WS_SIZE)
    g("buffer_load_dwordx4 %s, v3, s[8:11], 0 offen" % v(X, 4))
    g("buffer_load_dword %s, off, s[20:23], 0 offset:%d sc1" % (v(TT + 1), WS_EPOCH))
    g("s_mov_b32 s4, 0")
    for u in range(16):
        g("s_mov_b32 m0, %d" % (STAGE + u * 1024))
        if u: g("s_add_u32 s4, s4, %d" % (0x40000, 1024, 0x10000)[o["wqmode"]])
        else: g("s_nop 0")
        g("buffer_load_dwordx4 %s, s[12:15], s4 offen%s lds" % (v(TT), " nt" if o["wqnt"] else ""))
    if o["b0"] != 3: g("s_barrier")
    g("v_and_b32 %s, 3, v0" % v(TT + 2)); g("s_lshl_b32 s3, s28, 4"); g("v_lshl_add_u32 %s, %s, 2, s3" % (v(TT + 2), v(TT + 2)))
    g("buffer_load_dword %s, %s, s[8:11], 0 offen" % (v(TT + 2), v(TT + 2)))
    g("s_mul_i32 s3, s25, %d" % (NP * o["cstride"])); g("s_add_u32 s3, s3, %d" % WS_CNT)
    g("v_mul_u32_u24 %s, %d, v0" % (v(TT + 3), o["cstride"])); g("v_add_u32 %s, s3, %s" % (v(TT + 3), v(TT + 3))); g("v_mov_b32 %s, 0" % v(TT + 4))
    g("s_cmp_eq_u32 s26, 0"); g("s_cselect_b32 vcc_lo, %d, 0" % ((1 << NP) - 1)); g("s_mov_b32 vcc_hi, 0")
    g("v_mov_b32 %s, 0x7ffffff0" % v(TT + 5))
    g("v_cndmask_b32 %s, %s, %s, vcc" % (v(TT + 3), v(TT + 5), v(TT + 3)))
    g("buffer_store_dword %s, %s, s[20:23], 0 offen sc1" % (v(TT + 4), v(TT + 3)))
    g("s_waitcnt vmcnt(18)")
    g.stamp(13)
    g("v_readfirstlane_b32 s30, %s" % v(TT + 1))
    for e in range(4):
        g("v_lshlrev_b32 %s, 16, %s" % (v(XF + 2 * e), v(X + e)))
        g("v_and_b32 %s, 0xffff0000, %s" % (v(XF + 2 * e + 1), v(X + e)))
    g("s_mul_i32 s30, s30, 0x9e3779b1")
    g("s_add_u32 s30, s30, 0x7f4a7c15")
    a, b, c_ = TT + 5, TT + 6, TT + 7
    g("v_add_f32 %s, %s, %s" % (v(a), v(XF), v(XF + 1)))
    for e in range(2, 8): g("v_add_f32 %s, %s, %s" % (v(a), v(a), v(XF + e)))
    g.red_wave("v_add_f32", [a], [b])
    g("v_mul_f32 %s, %s, %s" % (v(a), hx(f2u(1.0 / 512)), v(a)))
    g("v_sub_f32 %s, %s, %s" % (v(c_), v(XF), v(a)))
    g("v_mul_f32 %s, %s, %s" % (v(b), v(c_), v(c_)))
    for e in range(1, 8):
        g("v_sub_f32 %s, %s, %s" % (v(c_), v(XF + e), v(a)))
        g("v_fmac_f32 %s, %s, %s" % (v(b), v(c_), v(c_)))
    g.red_wave("v_add_f32", [b], [c_])
    g("v_mul_f32 %s, %s, %s" % (v(b), hx(f2u(1.0 / 512)), v(b)))
    g.rbf([(a, b)], c_)
    g("v_add_f32 %s, %s, %s" % (v(b), hx(f2u(1e-5)), v(b)))
    g.rbf([(b, b)], c_)
    g("v_sqrt_f32 %s, %s" % (v(b), v(b)))
    for e in range(8): g("v_sub_f32 %s, %s, %s" % (v(XF + e), v(XF + e), v(a)))
    g.rbf([(b, b)], c_)
    g("v_rcp_f32 %s, %s" % (v(a), v(b)))
    g.rbf([(XF + 2 * e, XF + 2 * e + 1) for e in range(4)], c_)
    for e in range(8):
        g("v_mul_f32 %s, %s, %s" % (v(c_), v(XF + e), v(a)))
        g("v_fma_f32 %s, -%s, %s, %s" % (v(XF + e), v(c_), v(b), v(XF + e)))
        g("v_fma_f32 %s, %s, %s, %s" % (v(XF + e), v(XF + e), v(a), v(c_)))
    for e in range(4): g("v_cvt_pk_bf16_f32 %s, %s, %s" % (v(X + e), v(XF + 2 * e), v(XF + 2 * e + 1)))
    g("v_add_u32 %s, %d, v3" % (v(a), XN))
    g("ds_write_b128 %s, %s" % (v(a), v(X, 4)))
    W1, W2 = 96, 160
    fm = o["ffnmode"]
    def ffn_loads():
        g("v_lshrrev_b32 %s, 3, v0" % v(a)); g("v_and_b32 %s, 7, v0" % v(b))
        g("s_cmp_eq_u32 s60, 2")
        g("s_cbranch_scc1 L_rb")
        g.srd(8, 44, 512 * 3584)
        g.srd(16, 46, 512 * 3584)
        g("s_mul_i32 s3, s62, %d" % (128 * 3584)); g("s_lshl_b32 s7, s61, 7"); g("s_add_u32 s3, s3, s7")
        g("s_movk_i32 s7, 3584")
        g("s_branch L_rj")
        g.lab("L_rb")
        g.srd(8, 48, 1792 * 1024)
        g.srd(16, 48, 1792 * 1024 - 128 * 1024, "0x20000")
        g("s_lshl_b32 s3, s61, 18"); g("s_lshl_b32 s7, s25, 7"); g("s_add_u32 s3, s3, s7")
        g("s_movk_i32 s7, 1024")
        g.lab("L_rj")
        g("v_lshlrev_b32 %s, 1, %s" % (v(a), v(a))); g("v_mul_u32_u24 %s, s7, %s" % (v(c_), v(a)))
        g("v_lshl_add_u32 %s, %s, 4, %s" % (v(c_), v(b), v(c_))); g("v_add_u32 %s, s3, %s" % (v(c_), v(c_)))
        g("v_add_u32 %s, s7, %s" % (v(a), v(c_)))
        g("s_lshl_b32 s7, s7, 4")
        g("s_mov_b32 s4, 0")
        for k in range(8):
            if k: g("s_add_u32 s4, s4, s7")
            for i in range(2):
                g("buffer_load_dwordx4 %s, %s, s[8:11], s4 offen nt" % (v(W1 + 8 * k + 4 * i, 4), v(a if i else c_)))
                g("buffer_load_dwordx4 %s, %s, s[16:19], s4 offen nt" % (v(W2 + 8 * k + 4 * i, 4), v(a if i else c_)))
    g("s_mov_b32 s60, 0")
    if not o["noffn"]:
        g("s_sub_u32 s61, s26, 22"); g("s_cmp_lt_u32 s61, 7"); g("s_cselect_b32 s60, 2, 0")
        g("s_sub_u32 s3, s26, 8"); g("s_cmp_lt_u32 s3, 14")
        g("s_cbranch_scc0 L_nra")
        g("s_mul_i32 s7, s25, 14"); g("s_add_u32 s3, s3, s7")
        g("s_mov_b32 s60, 1"); g("s_lshr_b32 s61, s3, 2"); g("s_and_b32 s62, s3, 3")
        g.lab("L_nra")
    if o["ffnlate"]:
        g("s_waitcnt vmcnt(0)")
    else:
        g("s_cmp_eq_u32 s60, 0")
        g("s_cbranch_scc1 L_nofl")
        ffn_loads()
        g("s_waitcnt vmcnt(32)")
        g("s_branch L_fl")
        g.lab("L_nofl")
        g("s_waitcnt vmcnt(0)")
        g.lab("L_fl")
    XA, WA, Dq = 24, 25, 28
    FB = 32
    g("v_lshlrev_b32 %s, 4, v1" % v(XA)); g("v_add_u32 %s, %d, %s" % (v(XA), XN, v(XA)))
    g("v_lshrrev_b32 %s, 2, v2" % v(a))
    g("v_lshl_add_u32 %s, v1, 3, %s" % (v(a), v(a)))
    g("v_and_b32 %s, 3, v0" % v(b))
    g("v_lshlrev_b32 %s, 5, %s" % (v(WA), v(a)))
    g("v_lshl_or_b32 %s, %s, 3, %s" % (v(WA), v(b), v(WA)))
    g("v_add_u32 %s, %d, %s" % (v(WA), STAGE, v(WA)))
    def rd(grp):
        for k in range(4):
            t = 4 * grp + k; r0 = FB + 32 * (grp & 1) + 8 * k
            g("ds_read_b128 %s, %s offset:%d" % (v(r0, 4), v(XA), 64 * t))
            g("ds_read_b64_tr_b16 %s, %s offset:%d" % (v(r0 + 4, 2), v(WA), 1024 * t))
            g("ds_read_b64_tr_b16 %s, %s offset:%d" % (v(r0 + 6, 2), v(WA), 1024 * t + 128))
    g("s_waitcnt lgkmcnt(0)")
    g.stamp(8)
    rd(0)
    for grp in range(4):
        g("s_waitcnt lgkmcnt(0)")
        if grp < 3: rd(grp + 1)
        for k in range(4):
            r0 = FB + 32 * (grp & 1) + 8 * k
            g("v_mfma_f32_16x16x32_bf16 %s, %s, %s, %s" % (v(Dq, 4), v(r0 + 4, 4), v(r0, 4), "0" if grp == 0 and k == 0 else v(Dq, 4)))
    g("s_lshl_b32 s3, s25, 11"); g("s_add_u32 s4, s3, %d" % WS_Q)
    g("s_lshl_b32 s3, s27, 2"); g("s_add_u32 s3, s3, s4")
    g("v_lshlrev_b32 %s, 4, v1" % v(a))
    g("v_mov_b32 %s, s30" % v(FB + 1)); g("v_mov_b32 %s, s30" % v(FB + 3))
    g.nop(2)
    g("v_cvt_pk_bf16_f32 %s, %s, %s" % (v(FB), v(Dq), v(Dq + 1)))
    g("v_cvt_pk_bf16_f32 %s, %s, %s" % (v(FB + 2), v(Dq + 2), v(Dq + 3)))
    g("s_mov_b32 exec_lo, 0x00010001"); g("s_mov_b32 exec_hi, 0x00010001")
    g("buffer_store_dwordx4 %s, %s, s[20:23], s3 offen sc1" % (v(FB, 4), v(a)))
    g("s_mov_b64 exec, -1")
    g.stamp(9)
    QB = 40
    g.poll("L_pq", ["buffer_load_dwordx4 %s, v3, s[20:23], s4 offen offset:%d sc1" % (v(QB + 4 * u, 4), 1024 * u) for u in range(2)],
           [QB + 1, QB + 3, QB + 5, QB + 7])
    g.stamp(10)
    g("v_lshlrev_b32 %s, 3, v0" % v(a)); g("v_add_u32 %s, %d, %s" % (v(a), QA, v(a)))
    g("v_mov_b32 %s, %s" % (v(QB + 1), v(QB + 2))); g("v_mov_b32 %s, %s" % (v(QB + 5), v(QB + 6)))
    g("v_mov_b32 %s, %d" % (v(b), TAGA))
    g("ds_write_b64 %s, %s" % (v(a), v(QB, 2)))
    g("ds_write_b64 %s, %s offset:512" % (v(a), v(QB + 4, 2)))
    g("v_mov_b32 %s, s30" % v(QB + 2)); g("v_mov_b32 %s, 1" % v(QB + 3))
    g("ds_write_b64 %s, %s" % (v(b), v(QB + 2, 2)))
    if o["fprio"] >= 0: g("s_setprio %d" % o["fprio"])
    g("s_cmp_eq_u32 s60, 0")
    g("s_cbranch_scc1 L_nofp")
    if fm == 2: g("s_branch L_nofp")
    XP, XQ, AG, AU, PT = 24, 32, 40, 48, 56
    if o["ffnlate"]: ffn_loads()
    g("v_lshrrev_b32 %s, 3, v0" % v(a)); g("v_lshlrev_b32 %s, 2, %s" % (v(a), v(a)))
    g("s_lshl_b32 s3, s62, 8"); g("s_add_u32 s3, s3, %d" % XN); g("s_mov_b32 s7, s3")
    g("s_cmp_eq_u32 s60, 1")
    g("s_cbranch_scc1 L_fc")
    g("s_mul_i32 s4, s61, %d" % CSA); g("s_add_u32 s4, s4, %d" % WS_FA)
    g("s_add_u32 s5, s4, 4096")
    FA_ = 56
    plim = {4: -1, 5: 2, 6: -1, 7: -1, 8: -1, 10: -1}.get(fm, 0x40000)
    if o["cpoll"]:
        g("v_lshlrev_b32 %s, 9, v0" % v(b))
        g("s_mov_b64 exec, 0xffff")
        g.poll("L_pc", ["buffer_load_dwordx4 %s, %s, s[20:23], s4 offen offset:496 sc1" % (v(FA_, 4), v(b))], [FA_ + 3], o["cpoll"], lim=plim)
        g("s_mov_b64 exec, -1")
    g.poll("L_pa", ["buffer_load_dwordx4 %s, v3, s[20:23], %s offen offset:%d sc1" % (v(FA_ + 4 * u, 4), "s4" if u < 4 else "s5", 1024 * (u & 3)) for u in range(8)],
           [FA_ + 4 * u + 3 for u in range(8)], o["fsleep"], lim=plim)
    if o["ts"] != 3: g.stamp(11)
    g("s_mov_b32 s3, 0x04000c0c"); g("s_mov_b32 s7, 0x0706000c")
    for u in range(8):
        r = FA_ + 4 * u
        g("v_perm_b32 %s, %s, %s, s3" % (v(r + 3), v(r), v(r + 1)))
        g("v_perm_b32 %s, %s, %s, s7" % (v(r + 3), v(r + 3), v(r + 2)))
    for cb in range(4):
        for e in range(4): g("v_add_f32 %s, %s, %s" % (v(FA_ + 8 * cb + e), v(FA_ + 8 * cb + e), v(FA_ + 8 * cb + 4 + e)))
    g.tswap("v_permlane32_swap_b32", [(FA_ + 8 * cb + e, FA_ + 8 * cb + 16 + e) for cb in range(2) for e in range(4)])
    GT = [FA_, FA_ + 2, FA_ + 8, FA_ + 10]; UP = [x + 1 for x in GT]; E = [FA_ + 4, FA_ + 5, FA_ + 6, FA_ + 7]
    g.rbf(list(zip(GT, UP)), c_)
    k1 = -2.0 * math.sqrt(2.0 / math.pi) * LOG2E
    for j in range(4): g("v_mul_f32 %s, %s, %s" % (v(E[j]), v(GT[j]), v(GT[j])))
    for j in range(4): g("v_mul_f32 %s, %s, %s" % (v(E[j]), hx(f2u(0.044715)), v(E[j])))
    for j in range(4): g("v_add_f32 %s, 1.0, %s" % (v(E[j]), v(E[j])))
    for j in range(4): g("v_mul_f32 %s, %s, %s" % (v(E[j]), v(E[j]), v(GT[j])))
    for j in range(4): g("v_mul_f32 %s, %s, %s" % (v(E[j]), hx(f2u(k1)), v(E[j])))
    for j in range(4): g("v_exp_f32 %s, %s" % (v(E[j]), v(E[j])))
    for j in range(4): g("v_add_f32 %s, 1.0, %s" % (v(E[j]), v(E[j])))
    for j in range(4): g("v_rcp_f32 %s, %s" % (v(E[j]), v(E[j])))
    for j in range(4): g("v_mul_f32 %s, %s, %s" % (v(E[j]), v(E[j]), v(GT[j])))
    g.rbf([(E[0], E[1]), (E[2], E[3])], c_)
    for j in range(4): g("v_mul_f32 %s, %s, %s" % (v(E[j]), v(E[j]), v(UP[j])))
    g("v_cvt_pk_bf16_f32 %s, %s, %s" % (v(E[0]), v(E[0]), v(E[1])))
    g("v_cvt_pk_bf16_f32 %s, %s, %s" % (v(E[2]), v(E[2]), v(E[3])))
    g("v_lshrrev_b32 %s, 5, v0" % v(c_)); g("v_and_b32 %s, 31, v0" % v(b)); g("v_lshlrev_b32 %s, 2, %s" % (v(b), v(b)))
    g("v_lshl_add_u32 %s, %s, 8, %s" % (v(c_), v(c_), v(b))); g("v_add_u32 %s, %d, %s" % (v(c_), HA, v(c_)))
    g("ds_write2_b32 %s, %s, %s offset0:0 offset1:32" % (v(c_), v(E[0]), v(E[2])))
    g("s_mov_b32 s3, %d" % HA); g("s_mov_b32 s7, %d" % (HA + 256))
    g.lab("L_fc")
    g("v_add_u32 %s, s3, %s" % (v(b), v(a))); g("v_add_u32 %s, s7, %s" % (v(c_), v(a)))
    for k in range(8): g("ds_read_b32 %s, %s offset:%d" % (v(XP + k), v(b), 32 * k))
    for k in range(8): g("ds_read_b32 %s, %s offset:%d" % (v(XQ + k), v(c_), 32 * k))
    for e in range(16): g("v_mov_b32 %s, 0" % v(AG + e))
    g("s_mov_b32 s3, 0x05040100"); g("s_mov_b32 s7, 0x07060302")
    def pairs(W, ACC, XPr):
        for k in range(8):
            for e in range(4):
                ra, rb_ = W + 8 * k + e, W + 8 * k + 4 + e
                g("v_perm_b32 %s, %s, %s, s3" % (v(PT + 2 * (e & 1)), v(rb_), v(ra)))
                g("v_perm_b32 %s, %s, %s, s7" % (v(PT + 2 * (e & 1) + 1), v(rb_), v(ra)))
                g("v_dot2_f32_bf16 %s, %s, %s, %s" % (v(ACC + 2 * e), v(PT + 2 * (e & 1)), v(XPr + k), v(ACC + 2 * e)))
                g("v_dot2_f32_bf16 %s, %s, %s, %s" % (v(ACC + 2 * e + 1), v(PT + 2 * (e & 1) + 1), v(XPr + k), v(ACC + 2 * e + 1)))
    g("s_waitcnt vmcnt(0) lgkmcnt(0)")
    pairs(W1, AG, XP)
    pairs(W2, AU, XQ)
    g.nop(1)
    g.tswap("v_permlane32_swap_b32", [(AG + c, AG + c + 4) for c in range(4)] + [(AU + c, AU + c + 4) for c in range(4)])
    g.tswap("v_permlane16_swap_b32", [(AG + c, AG + c + 2) for c in range(2)] + [(AU + c, AU + c + 2) for c in range(2)])
    g.red_dpp("v_add_f32", [AG, AG + 1, AU, AU + 1], ["row_ror:8"])
    g("v_and_b32 %s, 7, v0" % v(b))
    g("v_mov_b32 %s, s30" % v(AG + 3))
    g("s_cmp_eq_u32 s60, 2")
    g("s_cbranch_scc1 L_fb")
    g("s_mov_b32 s3, 0x07060503"); g("s_mov_b32 s4, 0x07060502"); g("s_mov_b32 s7, 0x07060501")
    g("v_perm_b32 %s, %s, %s, s7" % (v(AG + 2), v(AG + 1), v(AU + 1)))
    g("v_perm_b32 %s, %s, %s, s4" % (v(AG + 1), v(AU), v(AU + 1)))
    g("v_perm_b32 %s, %s, %s, s3" % (v(AG), v(AG), v(AU + 1)))
    g("v_lshlrev_b32 %s, 6, %s" % (v(b), v(b)))
    g("s_lshr_b32 s4, s61, 2"); g("s_mul_i32 s4, s4, %d" % CSA); g("s_and_b32 s5, s61, 3"); g("s_lshl_b32 s5, s5, 11"); g("s_add_u32 s4, s4, s5")
    g("s_lshl_b32 s5, s62, 9"); g("s_add_u32 s4, s4, s5"); g("s_add_u32 s4, s4, %d" % WS_FA)
    if fm in (5, 6, 8): g("s_branch L_nofp")
    g("s_branch L_fs")
    g.lab("L_fb")
    g("v_add_f32 %s, %s, %s" % (v(AG), v(AG), v(AU))); g("v_add_f32 %s, %s, %s" % (v(AG + 1), v(AG + 1), v(AU + 1)))
    g("v_mov_b32 %s, 0" % v(AG + 2))
    g("v_mul_u32_u24 %s, %d, %s" % (v(b), CSB, v(b)))
    g("s_mul_i32 s4, s25, %d" % (8 * CSB)); g("s_lshl_b32 s5, s61, 6"); g("s_add_u32 s4, s4, s5"); g("s_add_u32 s4, s4, %d" % WS_FB)
    if fm in (5, 6, 7): g("s_branch L_nofp")
    g.lab("L_fs")
    g("v_lshl_add_u32 %s, v1, 4, %s" % (v(b), v(b)))
    g("s_mov_b32 exec_lo, 0x00ff00ff"); g("s_mov_b32 exec_hi, 0x00ff00ff")
    g("buffer_store_dwordx4 %s, %s, s[20:23], s4 offen sc1" % (v(AG, 4), v(b)))
    g("s_mov_b64 exec, -1")
    g.lab("L_nofp")
    if o["dpoll"]:
        if not o["dwho"]: g("s_cmp_ge_u32 s26, 8"); g("s_cbranch_scc1 L_dp")
        g("s_mul_i32 s4, s2, %d" % o["dstr"]); g("s_add_u32 s4, s4, %d" % o["doff"])
        if o["dst"]:
            g("v_mov_b32 v59, 0")
            g("buffer_store_dwordx4 v[56:59], v3, s[20:23], s4 offen sc1")
        g.poll("L_dq", ["buffer_load_dwordx4 v[56:59], v3, s[20:23], s4 offen %s" % ["sc1", "", "sc0 sc1", "sc1 nt", "sc0"][o["dmod"]]], [59], o["gsleep"], lim=o["dpoll"] - 1)
        g.lab("L_dp")
    g("s_cmp_ge_u32 s26, 8")
    g("s_cbranch_scc1 L_nofc")
    E = 56
    g("v_mov_b32 %s, 0" % v(E)); g("v_mov_b32 %s, 0" % v(E + 1)); g("v_mov_b32 %s, s30" % v(E + 3))
    if not (o["noffn"] or fm == 2):
        g("s_mul_i32 s4, s28, %d" % CSB); g("s_add_u32 s4, s4, %d" % WS_FB)
        g("s_mov_b64 exec, 0x0fffffff")
        g.poll("L_pb", ["buffer_load_dwordx4 %s, v3, s[20:23], s4 offen sc1" % v(E, 4)], [E + 3], o["gsleep"], lim={9: -1, 10: 0x40000}.get(fm, plim))
        g("s_mov_b64 exec, -1")
    g.red_dpp("v_add_f32", [E, E + 1], ["row_ror:4", "row_ror:8"])
    g.red_swap("v_add_f32", [E, E + 1], [a, b])
    g.rbf([(E, E + 1)], c_)
    g("s_mov_b32 s7, %s" % hx(f2u(-LOG2E)))
    g("v_mul_f32 %s, s7, %s" % (v(a), v(E))); g("v_mul_f32 %s, s7, %s" % (v(b), v(E + 1)))
    g("v_exp_f32 %s, %s" % (v(a), v(a))); g("v_exp_f32 %s, %s" % (v(b), v(b)))
    g("v_lshlrev_b32 %s, 16, %s" % (v(E + 2), v(TT + 2)))
    g("v_add_f32 %s, 1.0, %s" % (v(a), v(a))); g("v_add_f32 %s, 1.0, %s" % (v(b), v(b)))
    g("v_rcp_f32 %s, %s" % (v(a), v(a))); g("v_rcp_f32 %s, %s" % (v(b), v(b)))
    g("v_and_b32 %s, 0xffff0000, %s" % (v(E + 3), v(TT + 2)))
    g("v_mul_f32 %s, %s, %s" % (v(E), v(E), v(a))); g("v_mul_f32 %s, %s, %s" % (v(E + 1), v(E + 1), v(b)))
    g.rbf([(E, E + 1)], c_)
    g("v_add_u32 %s, %d, v3" % (v(a), GA))
    g("s_mov_b64 exec, 15")
    g("ds_write_b128 %s, %s" % (v(a), v(E, 4)))
    g("s_mov_b64 exec, -1")
    g.lab("L_nofc")
    g.stamp(12)
    if o["ts"] in (0, 3): g.write_stamps([8, 9, 10, 11, 12, 13])
    g("s_waitcnt vmcnt(0) lgkmcnt(0)")
    if o["reh"]:
        g("v_lshrrev_b32 v1, 4, v0"); g("v_and_b32 v2, 15, v0")
        tail_addr()
        g.srd(16, 50, 0)
        g.srd(20, 54, 0)
        g("s_mov_b32 s30, 0")
        g("s_branch L_tail")
    g.lab("L_end")
    g("s_endpgm")

    out = HEADER + "; @launch grid=(256,1,1) block=(320,1,1) lds=%d\n" % LDS_BYTES
    out += '.amdgcn_target "amdgcn-amd-amdhsa--gfx950"\n.text\n.globl %s_kernel\n.p2align 8\n.type %s_kernel,@function\n%s_kernel:\n' % (KNAME, KNAME, KNAME)
    out += "\n".join(g.L) + "\n"
    out += """.section .rodata,"a"
.p2align 6
.amdhsa_kernel %s_kernel
  .amdhsa_next_free_vgpr %d
  .amdhsa_next_free_sgpr 100
  .amdhsa_accum_offset %d
  .amdhsa_group_segment_fixed_size 0
  .amdhsa_kernarg_size 96
  .amdhsa_user_sgpr_count 2
  .amdhsa_user_sgpr_kernarg_segment_ptr 1
  .amdhsa_system_sgpr_workgroup_id_x 1
.end_amdhsa_kernel
""" % (KNAME, NV, NV)
    return out

if __name__ == "__main__":
    import hazcheck
    names = []
    for spec in sys.argv[1:]:
        parts = spec.split(",")
        fn = parts[0]
        opts = {}
        for p in parts[1:]:
            k, x = p.split("=")
            opts[k] = int(x)
        txt = gen(**opts)
        nb = hazcheck.check(txt)
        assert nb == 0, "hazards found"
        open(fn, "w").write(txt)
        names.append(fn)
    print(" ".join(names))
```

```python
import sys, struct, math
KNAME = "recurrent_scan__gqa_block_cached__geglu_ffn__decode"

def f2u(x): return struct.unpack("<I", struct.pack("<f", x))[0]
def hx(x): return "0x%x" % (x & 0xffffffff)
def v(n, c=1): return "v%d" % n if c == 1 else "v[%d:%d]" % (n, n + c - 1)
def s(n, c=1): return "s%d" % n if c == 1 else "s[%d:%d]" % (n, n + c - 1)

STAGE = 131072
XN = 147456
QA = 148480
ML = 149504
GA = 150016
TAGA = 150144
OA = 150272
HA = 150528
COMB = 151552
LDS_BYTES = 163840
WS_EPOCH = 0
WS_Q = 0x30000
WS_CNT = 0x8000
WS_B1 = 0x100000
WS_B2 = 0x200000
WS_FA = 0x300000
WS_FB = 0x380000
WS_SIZE = 0x400000
STAMP_OFF = 256 << 20
LOG2E = math.log2(math.e)

HEADER = """; Kernarg layout for this problem (96 bytes, ptrs only, base s[0:1]):
"""

class G:
    def __init__(self, **o):
        self.L = []
        self.o = dict(stamps=0, D=5, rot=1572864, noffn=0, auxprio=3, reh=1, round=1, wqnt=1, wqrot=0,
                      pad1=128, pad2=128, S=30, fsleep=8, b0=3, qsleep=2, wqmode=0, ffnlate=1, nowo=0, ack=1, cstride=4096, ts=0, thr=5, ffnmode=0, womode=3, dynthr=6, N=28, thk=5556, thv=5556, cpoll=8, sprio=0, fprio=0, sw=0, fthr=0, tailmode=0, stm=0, gsleep=8, dpoll=0, dmod=0, dwho=0, dst=0, doff=0x300000, dstr=1152, dn=0, dbase=8, smod=0, fmod=0, womod=0, dN=0, thw=5556, wopos=0, RS=4, pqs=8)
        for k in o: assert k in self.o, k
        self.o.update(o)
    def __call__(self, x): self.L.append("    " + x)
    def lab(self, x): self.L.append(x + ":")
    def c(self, x): self.L.append("    ; " + x)
    def nop(self, n):
        while n > 0:
            k = min(n, 16); self("s_nop %d" % (k - 1)); n -= k
    def stamp(self, i):
        if self.o["stamps"]: self("s_memrealtime %s" % s(64 + 2 * i, 2))
    def write_stamps(self, idx):
        if not self.o["stamps"]: return
        self("s_waitcnt lgkmcnt(0)")
        self("s_lshl_b32 s3, s2, 7")
        self("s_add_u32 s3, s3, %d" % STAMP_OFF)
        self("v_mov_b32 v1, s3")
        for i in idx:
            self("v_mov_b32 v2, %s" % s(64 + 2 * i)); self("v_mov_b32 v3, %s" % s(65 + 2 * i))
            self("global_store_dwordx2 v1, v[2:3], s[54:55] offset:%d" % (8 * i))
        if 0 in idx:
            self("s_getreg_b32 s3, hwreg(HW_REG_XCC_ID)")
            self("v_mov_b32 v2, s3"); self("v_mov_b32 v3, s95")
            self("global_store_dwordx2 v1, v[2:3], s[54:55] offset:120")
    def srd(self, d, base, size, add=None):
        if add is None:
            self("s_mov_b32 %s, %s" % (s(d), s(base))); self("s_mov_b32 %s, %s" % (s(d + 1), s(base + 1)))
        else:
            self("s_add_u32 %s, %s, %s" % (s(d), s(base), add)); self("s_addc_u32 %s, %s, 0" % (s(d + 1), s(base + 1)))
        self("s_mov_b32 %s, %s" % (s(d + 2), size if isinstance(size, str) else hx(size))); self("s_mov_b32 %s, 0x20000" % s(d + 3))
    def red_dpp(self, op, rs, ctrls):
        for ct in ctrls:
            self.nop(max(0, 2 - (len(rs) - 1)))
            for r in rs: self("%s_dpp %s, %s, %s %s row_mask:0xf bank_mask:0xf" % (op, v(r), v(r), v(r), ct))
    def red_swap(self, op, rs, ts):
        for sw in ("v_permlane16_swap_b32", "v_permlane32_swap_b32"):
            for r, t in zip(rs, ts): self("v_mov_b32 %s, %s" % (v(t), v(r)))
            self.nop(max(0, 2 - (len(rs) - 1)))
            for r, t in zip(rs, ts): self("%s %s, %s" % (sw, v(t), v(r)))
            for r, t in zip(rs, ts): self("%s %s, %s, %s" % (op, v(r), v(t), v(r)))
    def red_wave(self, op, rs, ts):
        self.red_dpp(op, rs, ["quad_perm:[1,0,3,2]", "quad_perm:[2,3,0,1]", "row_half_mirror", "row_mirror"])
        self.red_swap(op, rs, ts)
    def tswap(self, sw, pairs):
        self.nop(2)
        for a, b in pairs: self("%s %s, %s" % (sw, v(a), v(b)))
        for a, b in pairs: self("v_add_f32 %s, %s, %s" % (v(a), v(a), v(b)))
    def rbf(self, pairs, t):
        for a, b in pairs:
            self("v_cvt_pk_bf16_f32 %s, %s, %s" % (v(t), v(a), v(b)))
            self("v_lshlrev_b32 %s, 16, %s" % (v(a), v(t)))
            if b != a: self("v_and_b32 %s, 0xffff0000, %s" % (v(b), v(t)))
    def tstamp(self, i):
        if self.o["ts"] == 1: self.stamp(i)
    def poll(self, name, loads, tagregs, sleep=0, st=None, first=None, lim=0x40000):
        if lim < 0: return
        self("s_mov_b32 s31, 0x%x" % lim)
        if self.o["ack"] or first: self("s_waitcnt vmcnt(0)")
        if st is not None: self.tstamp(st)
        if first:
            for l in loads + first: self(l)
            self("s_branch %s_w" % name)
        self.lab(name)
        for l in loads: self(l)
        if first: self.lab(name + "_w")
        self("s_waitcnt vmcnt(0)")
        self("v_cmp_ne_u32 vcc, s30, %s" % v(tagregs[0]))
        for k, t in enumerate(tagregs[1:]):
            self("v_cmp_ne_u32 %s, s30, %s" % (s(96 + 2 * (k & 1), 2), v(t)))
            if k & 1 or k == len(tagregs) - 2:
                for kk in range(k & ~1, k + 1): self("s_or_b64 vcc, vcc, %s" % s(96 + 2 * (kk & 1), 2))
        self("s_cbranch_vccz %s_done" % name)
        if sleep: self("s_sleep %d" % sleep)
        self("s_sub_u32 s31, s31, 1")
        self("s_cbranch_scc0 %s" % name)
        self.lab(name + "_done")

def gen(**opts):
    g = G(**opts); o = g.o
    CS1 = 8192 + o["pad1"]; CS2 = 4096 + o["pad2"]; CSA = 8192 + 128; CSB = 512 + 128
    g("s_cmp_ge_u32 s2, 256")
    g("s_cbranch_scc1 L_end")
    g("s_load_dwordx16 s[32:47], s[0:1], 0")
    g("s_load_dwordx8 s[48:55], s[0:1], 64")
    g.stamp(0)
    g("v_lshrrev_b32 v1, 6, v0")
    g("v_and_b32 v0, 63, v0")
    g("v_readfirstlane_b32 s24, v1")
    g("s_lshr_b32 s25, s2, 5")
    g("s_and_b32 s26, s2, 31")
    g("v_lshrrev_b32 v1, 4, v0")
    g("v_and_b32 v2, 15, v0")
    g("s_lshl_b32 s28, s25, 3"); g("s_add_u32 s28, s28, s26")
    g("s_cmp_eq_u32 s24, 4")
    g("s_cbranch_scc1 L_aux")
    KS, VS, KA, VA, TK = 4, 8, 10, 14, 22
    QF, F, VF, S, P = 24, 40, 56, 72, 76
    M, LS, AL, NM, T0, T1, T2, CA = 78, 79, 80, 81, 82, 83, 84, 85
    SG = 120
    O, WO = 88, 120
    CW, MW, CR, MR, H1A, P1A, OW, OR, H2A, P2A, GR, OUTA, WS_, WR = range(184, 198)
    NV = 224
    def tail_addr():
        g("v_and_b32 v3, 3, v0")
        g("s_lshl_b32 s3, s24, 11"); g("s_add_u32 s3, s3, %d" % COMB)
        g("v_lshlrev_b32 %s, 9, v3" % v(CW)); g("v_lshl_or_b32 %s, v1, 4, %s" % (v(CW), v(CW))); g("v_add_u32 %s, s3, %s" % (v(CW), v(CW)))
        g("s_lshl_b32 s3, s24, 2"); g("s_add_u32 s3, s3, %d" % ML)
        g("v_lshl_add_u32 %s, v3, 6, s3" % v(MW))
        g("s_lshl_b32 s3, s24, 9"); g("s_add_u32 s3, s3, %d" % COMB)
        g("v_and_b32 %s, 31, v0" % v(CR)); g("v_lshl_add_u32 %s, %s, 4, s3" % (v(CR), v(CR)))
        g("s_lshl_b32 s3, s24, 6"); g("s_add_u32 s3, s3, %d" % ML); g("v_mov_b32 %s, s3" % v(MR))
        g("s_lshl_b32 s3, s25, 2"); g("s_add_u32 s3, s3, s24"); g("s_mul_i32 s3, s3, %d" % (2 * CS1))
        g("s_lshl_b32 s7, s26, 8"); g("s_add_u32 s3, s3, s7"); g("s_add_u32 s3, s3, %d" % WS_B1)
        g("v_and_b32 %s, 1, v1" % v(H1A)); g("v_mul_u32_u24 %s, %d, %s" % (v(H1A), CS1, v(H1A)))
        g("v_lshl_add_u32 %s, v2, 4, %s" % (v(H1A), v(H1A))); g("v_add_u32 %s, s3, %s" % (v(H1A), v(H1A)))
        g("s_mul_i32 s3, s28, %d" % CS1); g("s_lshl_b32 s7, s24, 6"); g("s_add_u32 s3, s3, s7"); g("s_add_u32 s3, s3, %d" % WS_B1)
        g("v_lshrrev_b32 %s, 2, v0" % v(H2A))
        g("v_lshlrev_b32 %s, 9, %s" % (v(P1A), v(H2A))); g("v_lshl_or_b32 %s, v3, 4, %s" % (v(P1A), v(P1A))); g("v_add_u32 %s, s3, %s" % (v(P1A), v(P1A)))
        g("s_lshl_b32 s3, s24, 3"); g("s_add_u32 s3, s3, %d" % OA)
        g("v_lshl_add_u32 %s, v3, 5, s3" % v(OW))
        g("v_lshlrev_b32 %s, 5, v1" % v(OR)); g("v_add_u32 %s, %d, %s" % (v(OR), OA, v(OR)))
        g("v_lshrrev_b32 %s, 2, v0" % v(WR)); g("v_and_b32 %s, 3, %s" % (v(WR + 1), v(WR)))
        g("v_lshlrev_b32 %s, 8, %s" % (v(WR), v(WR))); g("v_lshl_or_b32 %s, %s, 6, %s" % (v(WR), v(WR + 1), v(WR)))
        g("v_lshl_or_b32 %s, v3, 4, %s" % (v(WR), v(WR)))
        g("s_lshl_b32 s3, s24, 15"); g("s_add_u32 s3, s3, 0x4000"); g("v_add_u32 %s, s3, %s" % (v(WR), v(WR)))
        for a_ in range(1, 4): g("v_xor_b32 %s, %d, %s" % (v(WR + a_), 64 * a_, v(WR)))
        g("s_mul_i32 s3, s24, %d" % (16 * CS2)); g("s_lshl_b32 s7, s28, 6"); g("s_add_u32 s3, s3, s7"); g("s_add_u32 s3, s3, %d" % WS_B2)
        g("v_mul_u32_u24 %s, %d, %s" % (v(H2A), CS2, v(H2A))); g("v_lshl_add_u32 %s, v3, 4, %s" % (v(H2A), v(H2A))); g("v_add_u32 %s, s3, %s" % (v(H2A), v(H2A)))
        g("s_mul_i32 s3, s28, %d" % CS2); g("s_lshl_b32 s7, s24, 4"); g("s_add_u32 s3, s3, s7"); g("s_add_u32 s3, s3, %d" % WS_B2)
        g("v_lshl_add_u32 %s, v0, 6, s3" % v(P2A))
        g("s_lshr_b32 s3, s24, 1"); g("s_lshl_b32 s3, s3, 4"); g("s_and_b32 s7, s24, 1"); g("s_lshl_b32 s7, s7, 2")
        g("s_add_u32 s3, s3, s7"); g("s_add_u32 s3, s3, %d" % GA); g("v_mov_b32 %s, s3" % v(GR))
        g("s_lshl_b32 s3, s28, 4"); g("s_lshl_b32 s7, s24, 1"); g("s_add_u32 s3, s3, s7"); g("v_mov_b32 %s, s3" % v(OUTA))
        g("s_mov_b32 s6, %s" % hx(f2u(LOG2E)))
    g("v_xor_b32 v3, v1, v2")
    g("v_lshlrev_b32 v3, 4, v3")
    g("v_lshl_or_b32 %s, v1, 8, v3" % v(KS))
    for u in range(1, 4): g("v_xor_b32 %s, %d, %s" % (v(KS + u), 64 * u, v(KS)))
    g("v_lshlrev_b32 v3, 1, v1")
    g("v_xor_b32 v3, v3, v2")
    g("v_lshlrev_b32 v3, 4, v3")
    g("v_lshl_or_b32 %s, v1, 8, v3" % v(VS))
    g("v_xor_b32 %s, 0x80, %s" % (v(VS + 1), v(VS)))
    NP = 4; SS = o["S"]; D = o["D"]; TH = o["thr"]; N = o["N"]
    dN = o["dN"]; NC = N - dN
    assert N % 4 == 0 and 12 <= N <= 30 and SS == N + 2 and dN in (0, 2, 4)
    PA = 86
    g("s_lshl_b32 s27, s24, 12")
    g("s_mul_i32 s3, s25, %d" % o["rot"])
    g("s_add_u32 s27, s27, s3")
    g("s_lshl_b32 s5, s26, 14"); g("s_add_u32 s5, s5, s27")
    g("s_lshl_b32 s29, s24, 15")
    g("s_lshl_b32 s3, s25, 24")
    g("s_waitcnt lgkmcnt(0)")
    g.srd(8, 34, 1 << 24, "s3")
    g.srd(12, 36, 1 << 24, "s3")
    g.srd(20, 54, WS_SIZE)
    if o["b0"] == 1: g("s_barrier")
    cnt = [0]
    def throttle():
        k = cnt[0]; cnt[0] += 1
        if k >= D: g("s_waitcnt vmcnt(%d)" % (D - 1))
        return k >= D
    g("s_mov_b32 s92, s5")
    def kload(u): g("buffer_load_dwordx4 %s, s[8:11], s4 offen offset:%d nt lds" % (v(KS + u), u * 1024))
    def vload(u): g("buffer_load_dwordx4 %s, s[12:15], s4 offen offset:%d nt lds" % (v(VS + (u & 1)), u * 1024))
    for t_ in range(8):
        g("s_and_b32 s4, s5, 0xffffff")
        g("s_add_u32 m0, s29, %d" % (4096 * (t_ >> 1) + 0x4000 * (t_ & 1)))
        g("s_add_u32 s5, s5, 0x80000")
        for u in range(4):
            if cnt[0] == D:
                for n in range(32): g("v_mov_b32 %s, 0" % v(O + n))
                g("v_mov_b32 %s, 0xff7fffff" % v(M))
                g("v_mov_b32 %s, 0" % v(LS))
                tail_addr()
                g("s_mul_i32 s3, s25, %d" % NP); g("s_add_u32 s3, s3, s24"); g("s_mul_i32 s3, s3, %d" % o["cstride"]); g("s_add_u32 s3, s3, %d" % WS_CNT)
                g("v_mov_b32 v3, s3"); g("v_mov_b32 %s, 0x7ffffff0" % v(CA))
                g("v_cmp_eq_u32 vcc, 0, v0")
                g("s_and_b32 s3, s28, 63"); g("s_lshl_b32 s7, s3, 16")
                g("v_cndmask_b32 %s, %s, v3, vcc" % (v(CA), v(CA)))
                g("v_lshlrev_b32 v3, 2, v1"); g("v_xor_b32 v3, v3, v2"); g("v_lshlrev_b32 v3, 4, v3")
                g("v_lshl_or_b32 v3, v1, 10, v3"); g("s_lshl_b32 s3, s24, 8"); g("v_add_u32 %s, s3, v3" % v(WS_))
                g.srd(44, 40, 65536, "s7")
                g.srd(16, 50, 1024)
                g("v_and_b32 v3, 3, v0"); g("v_lshlrev_b32 v3, 5, v3"); g("v_lshl_or_b32 v3, v1, 3, v3")
                g("s_lshl_b32 s3, s24, 12"); g("s_add_u32 s3, s3, %d" % STAGE); g("v_add_u32 %s, s3, v3" % v(PA))
            throttle()
            kload(u)
        if t_ == 0:
            g("v_xor_b32 v3, v1, v2")
            g("v_lshlrev_b32 v3, 4, v3")
            g("v_lshl_or_b32 v3, v2, 8, v3")
            g("v_add_u32 %s, s29, v3" % v(KA))
            for k in range(1, 4): g("v_xor_b32 %s, %d, %s" % (v(KA + k), 64 * k, v(KA)))
            g("v_lshrrev_b32 v3, 2, v0")
            g("v_and_b32 %s, 7, v3" % v(T0))
            g("v_lshlrev_b32 %s, 5, %s" % (v(T0), v(T0)))
            g("v_lshl_or_b32 v3, v3, 8, %s" % v(T0))
            g("v_and_b32 %s, 3, v0" % v(T0))
            g("v_lshl_or_b32 v3, %s, 3, v3" % v(T0))
            g("v_add_u32 %s, s29, v3" % v(VA))
            for n in range(1, 8): g("v_xor_b32 %s, %d, %s" % (v(VA + n), 32 * n, v(VA)))
            if o["b0"] >= 2: g("s_barrier")
    g("v_and_b32 v3, 3, v0")
    g("v_lshlrev_b32 v3, 8, v3")
    g("v_lshl_or_b32 v3, v1, 4, v3")
    g("v_add_u32 v3, %d, v3" % QA)
    g("v_mov_b32 %s, %d" % (v(T2), TAGA))
    g("s_mov_b32 s56, %s" % hx(f2u(128.0 ** -0.5))); g("s_mov_b32 s57, s56")
    g("s_mov_b32 s58, 0")
    g("s_mov_b32 s59, s29")
    g("s_mov_b32 s63, 4")
    def tm(n): return (((1 << n) - 1) << (n - 8)) | (0b1010 << (2 * n - 8))
    g("s_mov_b32 s40, %s" % hx(tm(N))); g("s_mov_b32 s41, %s" % hx(tm(N) >> 32))
    g("s_cmp_lt_u32 s26, 8")
    g("s_cselect_b32 s61, %d, %d" % (NC, N))
    g("s_cselect_b32 s40, %s, s40" % hx(tm(NC))); g("s_cselect_b32 s41, %s, s41" % hx(tm(NC) >> 32))
    g("s_mov_b32 s60, s61")
    g("s_and_b32 s62, s61, 2"); g("s_lshl_b32 s62, s62, 12")
    if dN & 2:
        for n in range(8): g("v_xor_b32 %s, s62, %s" % (v(VA + n), v(VA + n)))
    g("s_mov_b32 s95, s61")
    if o["sprio"]: g("s_setprio %d" % o["sprio"])
    g.stamp(1)
    g("s_mov_b32 s31, 0x400000")
    g.lab("L_wq")
    g("ds_read_b64 %s, %s" % (v(T0, 2), v(T2)))
    g("s_waitcnt lgkmcnt(0)")
    g("v_readfirstlane_b32 s3, %s" % v(T1))
    g("v_readfirstlane_b32 s30, %s" % v(T0))
    g("s_cmp_lg_u32 s3, 0")
    g("s_cbranch_scc1 L_wq_done")
    if o["qsleep"]: g("s_sleep %d" % o["qsleep"])
    g("s_sub_u32 s31, s31, 1")
    g("s_cbranch_scc0 L_wq")
    g.lab("L_wq_done")
    for k in range(4): g("ds_read_b128 %s, v3 offset:%d" % (v(QF + 4 * k, 4), 64 * k))
    g.stamp(2)
    g("s_waitcnt lgkmcnt(0)")
    def refill(nm, th, atomic):
        g("s_bitcmp1_b32 s40, 0")
        g("s_cbranch_scc1 L_%sv" % nm)
        g("s_and_b32 s4, s5, 0xffffff"); g("s_add_u32 s5, s5, 0x80000")
        th = [th] * 4 if th < 10 else [int(c) for c in str(th)]
        for u in range(4): g("s_waitcnt vmcnt(%d)" % (th[u] - 1)); kload(u)
        g("s_branch L_%sd" % nm)
        g.lab("L_%sv" % nm)
        g("s_and_b32 s4, s92, 0xffffff"); g("s_add_u32 s92, s92, 0x80000")
        if atomic:
            g("s_cmp_lg_u64 s[40:41], 1")
            g("s_cbranch_scc1 L_%sn" % nm)
            g("v_mov_b32 %s, 1" % v(TK))
            g("buffer_atomic_add %s, %s, s[20:23], 0 offen sc0" % (v(TK), v(CA)))
            g.lab("L_%sn" % nm)
        for u in range(4): g("s_waitcnt vmcnt(%d)" % (th[u] - 1)); vload(u)
        g.lab("L_%sd" % nm)
        g("s_lshr_b64 s[40:41], s[40:41], 1")
    def unpack(a, b):
        g("v_lshlrev_b32 %s, 16, %s" % (v(S), v(a))); g("v_and_b32 %s, 0xffff0000, %s" % (v(S + 1), v(a)))
        g("v_lshlrev_b32 %s, 16, %s" % (v(S + 2), v(b))); g("v_and_b32 %s, 0xffff0000, %s" % (v(S + 3), v(b)))
    def midstamp(i, c):
        if o["ts"] == 2:
            g("s_cmp_lg_u32 s60, %d" % c); g("s_cbranch_scc1 L_ts%d" % i); g.stamp(i); g("s_waitcnt lgkmcnt(0)"); g.lab("L_ts%d" % i)
    g.lab("L_a")
    g("s_waitcnt vmcnt(12)")
    for k in range(4): g("ds_read_b128 %s, %s" % (v(F + 4 * k, 4), v(KA + k)))
    midstamp(8, N - 12)
    g("s_mov_b32 m0, s59")
    g("s_cmp_lg_u32 s58, 0")
    for k in range(4):
        g("s_waitcnt lgkmcnt(%d)" % (3 - k))
        g("v_mfma_f32_16x16x32_bf16 %s, %s, %s, %s" % (v(S, 4), v(F + 4 * k, 4), v(QF + 4 * k, 4), "0" if k == 0 else v(S, 4)))
    g("s_cbranch_scc1 L_aw")
    refill("a", o["thk"] or TH, False)
    g.lab("L_ai")
    g("s_add_u32 s3, s59, 0x1000"); g("s_xor_b32 s3, s3, s59"); g("s_and_b32 s3, s3, 0x3000")
    g("s_lshl_b32 s7, s58, 14"); g("s_or_b32 s3, s3, s7")
    g("s_cmp_lg_u32 s63, s58")
    g("s_cselect_b32 s7, 1, 0"); g("s_sub_u32 s63, s63, s58"); g("s_andn2_b32 s58, s7, s58")
    g("s_cselect_b32 s3, 0x4000, s3")
    g("v_cvt_pk_bf16_f32 %s, %s, %s" % (v(T0), v(S), v(S + 1)))
    g("v_cvt_pk_bf16_f32 %s, %s, %s" % (v(T1), v(S + 2), v(S + 3)))
    unpack(T0, T1)
    g("v_pk_mul_f32 %s, %s, s[56:57]" % (v(S, 2), v(S, 2)))
    g("v_pk_mul_f32 %s, %s, s[56:57]" % (v(S + 2, 2), v(S + 2, 2)))
    for k in range(4): g("v_xor_b32 %s, s3, %s" % (v(KA + k), v(KA + k)))
    g("v_cvt_pk_bf16_f32 %s, %s, %s" % (v(T0), v(S), v(S + 1)))
    g("v_cvt_pk_bf16_f32 %s, %s, %s" % (v(T1), v(S + 2), v(S + 3)))
    g("v_max3_f32 %s, %s, %s, %s" % (v(M), v(S), v(S + 1), v(M)))
    g("v_max3_f32 %s, %s, %s, %s" % (v(M), v(S + 2), v(S + 3), v(M)))
    g("s_mov_b32 exec_lo, 0x000f000f"); g("s_mov_b32 exec_hi, 0x000f000f")
    g("ds_write_b64 %s, %s" % (v(PA), v(T0, 2)))
    g("s_mov_b64 exec, -1")
    g("s_xor_b32 s59, s59, s3")
    g("v_add_u32 %s, 128, %s" % (v(PA), v(PA)))
    g("s_sub_u32 s60, s60, 1")
    g("s_cmp_lg_u32 s60, 0")
    g("s_cbranch_scc1 L_a")
    if o["ts"] == 2: g.stamp(9)
    g.red_swap("v_max_f32", [M], [T1])
    g("s_lshl_b32 s3, s61, 7")
    g("v_subrev_u32 %s, s3, %s" % (v(PA), v(PA)))
    g("v_cvt_pk_bf16_f32 %s, %s, %s" % (v(M), v(M), v(M)))
    g("s_mov_b32 s60, s61")
    if dN & 2:
        for k in range(4): g("v_xor_b32 %s, s62, %s" % (v(KA + k), v(KA + k)))
    g("v_lshlrev_b32 %s, 16, %s" % (v(M), v(M)))
    g("v_mul_f32 %s, s6, %s" % (v(NM), v(M)))
    g.lab("L_c")
    g("ds_read_b64 %s, %s" % (v(T0, 2), v(PA)))
    g("s_waitcnt vmcnt(12)")
    for n in range(8): g("ds_read_b64_tr_b16 %s, %s" % (v(VF + 2 * n, 2), v(VA + n)))
    midstamp(10, N // 2)
    g("s_mov_b32 m0, s59")
    g("s_add_u32 s3, s59, 0x1000"); g("s_xor_b32 s3, s3, s59"); g("s_and_b32 s3, s3, 0x3000")
    g("s_xor_b32 s59, s59, s3")
    g("v_add_u32 %s, 128, %s" % (v(PA), v(PA)))
    g("s_waitcnt lgkmcnt(8)")
    unpack(T0, T1)
    for e in range(4): g("v_fma_f32 %s, %s, s6, -%s" % (v(S + e), v(S + e), v(NM)))
    for e in range(4): g("v_exp_f32 %s, %s" % (v(S + e), v(S + e)))
    for n in range(8): g("v_xor_b32 %s, s3, %s" % (v(VA + n), v(VA + n)))
    g("v_cvt_pk_bf16_f32 %s, %s, %s" % (v(P), v(S), v(S + 1)))
    g("v_cvt_pk_bf16_f32 %s, %s, %s" % (v(P + 1), v(S + 2), v(S + 3)))
    g("v_add_f32 %s, %s, %s" % (v(T0), v(S), v(S + 1)))
    g("v_add_f32 %s, %s, %s" % (v(T1), v(S + 2), v(S + 3)))
    g("v_add_f32 %s, %s, %s" % (v(LS), v(LS), v(T0)))
    g("v_add_f32 %s, %s, %s" % (v(LS), v(LS), v(T1)))
    for n in range(8):
        g("s_waitcnt lgkmcnt(%d)" % (7 - n))
        g("v_mfma_f32_16x16x16_bf16 %s, %s, %s, %s" % (v(O + 4 * n, 4), v(VF + 2 * n, 2), v(P, 2), v(O + 4 * n, 4)))
    refill("c", o["thv"] or TH, True)
    g("s_sub_u32 s60, s60, 1")
    g("s_cmp_lg_u32 s60, 0")
    g("s_cbranch_scc1 L_c")
    if o["ts"] == 2: g.stamp(11)
    g.lab("L_loop")
    g("s_cmp_lg_u32 s58, 0")
    g("s_cbranch_scc1 L_k")
    g("s_waitcnt vmcnt(12)")
    g.lab("L_k")
    for k in range(4): g("ds_read_b128 %s, %s" % (v(F + 4 * k, 4), v(KA + k)))
    if o["stamps"]: g("s_add_u32 s95, s95, 1")
    g("s_mov_b32 m0, s59")
    g("s_cmp_lg_u32 s58, 0")
    for k in range(4):
        g("s_waitcnt lgkmcnt(%d)" % (3 - k))
        g("v_mfma_f32_16x16x32_bf16 %s, %s, %s, %s" % (v(S, 4), v(F + 4 * k, 4), v(QF + 4 * k, 4), "0" if k == 0 else v(S, 4)))
    g("s_cbranch_scc1 L_ki")
    g("s_waitcnt vmcnt(4)")
    g("v_readfirstlane_b32 s3, %s" % v(TK))
    if dN:
        g("s_and_b32 s7, s3, 7"); g("s_lshr_b32 s4, s3, 3"); g("s_lshl_b32 s4, s4, 5"); g("s_add_u32 s7, s7, s4"); g("s_add_u32 s7, s7, %d" % (32 * (SS - dN)))
        g("s_add_u32 s4, s3, %d" % (32 * SS - 8 * dN))
        g("s_cmp_lt_u32 s3, %d" % (8 * dN))
        g("s_cselect_b32 s3, s7, s4")
    else:
        g("s_add_u32 s3, s3, %d" % (32 * SS))
    g("s_cmp_ge_u32 s3, 1024")
    g("s_cbranch_scc1 L_last")
    g("s_lshl_b32 s3, s3, 14")
    g("s_add_u32 s3, s3, s27")
    g("s_and_b32 s4, s3, 0xffffff")
    DT = o["dynthr"]
    for u in range(4):
        if u + 4 > DT - 1: g("s_waitcnt vmcnt(%d)" % (DT - 1))
        kload(u)
    g.lab("L_ki")
    g.nop(7)
    if o["round"]:
        g("v_cvt_pk_bf16_f32 %s, %s, %s" % (v(T0), v(S), v(S + 1)))
        g("v_cvt_pk_bf16_f32 %s, %s, %s" % (v(T1), v(S + 2), v(S + 3)))
        g("v_lshlrev_b32 %s, 16, %s" % (v(S), v(T0))); g("v_and_b32 %s, 0xffff0000, %s" % (v(S + 1), v(T0)))
        g("v_lshlrev_b32 %s, 16, %s" % (v(S + 2), v(T1))); g("v_and_b32 %s, 0xffff0000, %s" % (v(S + 3), v(T1)))
    g("v_pk_mul_f32 %s, %s, s[56:57]" % (v(S, 2), v(S, 2)))
    g("v_pk_mul_f32 %s, %s, s[56:57]" % (v(S + 2, 2), v(S + 2, 2)))
    if o["round"]:
        g("v_cvt_pk_bf16_f32 %s, %s, %s" % (v(T0), v(S), v(S + 1)))
        g("v_cvt_pk_bf16_f32 %s, %s, %s" % (v(T1), v(S + 2), v(S + 3)))
        g("v_lshlrev_b32 %s, 16, %s" % (v(S), v(T0))); g("v_and_b32 %s, 0xffff0000, %s" % (v(S + 1), v(T0)))
        g("v_lshlrev_b32 %s, 16, %s" % (v(S + 2), v(T1))); g("v_and_b32 %s, 0xffff0000, %s" % (v(S + 3), v(T1)))
    g("v_max3_f32 %s, %s, %s, %s" % (v(T0), v(S), v(S + 1), v(S + 2)))
    g("v_max3_f32 %s, %s, %s, %s" % (v(T0), v(T0), v(S + 3), v(M)))
    g("v_cmp_gt_f32 vcc, %s, %s" % (v(T0), v(M)))
    g("s_cbranch_vccz L_ns")
    g.red_swap("v_max_f32", [T0], [T1])
    g("v_sub_f32 %s, %s, %s" % (v(AL), v(M), v(T0)))
    g("v_mul_f32 %s, s6, %s" % (v(NM), v(T0)))
    g("v_mul_f32 %s, s6, %s" % (v(AL), v(AL)))
    g("v_exp_f32 %s, %s" % (v(AL), v(AL)))
    g("v_mov_b32 %s, %s" % (v(M), v(T0)))
    g("v_mul_f32 %s, %s, %s" % (v(LS), v(AL), v(LS)))
    for n in range(32): g("v_mul_f32 %s, %s, %s" % (v(O + n), v(AL), v(O + n)))
    g.lab("L_ns")
    for e in range(4): g("v_fma_f32 %s, %s, s6, -%s" % (v(S + e), v(S + e), v(NM)))
    for e in range(4): g("v_exp_f32 %s, %s" % (v(S + e), v(S + e)))
    g("s_cmp_lg_u32 s58, 0")
    g("v_cvt_pk_bf16_f32 %s, %s, %s" % (v(P), v(S), v(S + 1)))
    g("v_cvt_pk_bf16_f32 %s, %s, %s" % (v(P + 1), v(S + 2), v(S + 3)))
    g("s_cbranch_scc1 L_vw")
    g("s_waitcnt vmcnt(12)")
    g.lab("L_v")
    for n in range(8): g("ds_read_b64_tr_b16 %s, %s offset:4096" % (v(VF + 2 * n, 2), v(VA + n)))
    g("s_add_u32 m0, s59, 4096")
    g("v_add_f32 %s, %s, %s" % (v(T0), v(S), v(S + 1)))
    g("v_add_f32 %s, %s, %s" % (v(T1), v(S + 2), v(S + 3)))
    g("v_add_f32 %s, %s, %s" % (v(LS), v(LS), v(T0)))
    g("v_add_f32 %s, %s, %s" % (v(LS), v(LS), v(T1)))
    g("s_cmp_lg_u32 s58, 0")
    for n in range(8):
        g("s_waitcnt lgkmcnt(%d)" % (7 - n))
        g("v_mfma_f32_16x16x16_bf16 %s, %s, %s, %s" % (v(O + 4 * n, 4), v(VF + 2 * n, 2), v(P, 2), v(O + 4 * n, 4)))
    g("s_cbranch_scc1 L_vs")
    g("v_mov_b32 %s, 1" % v(TK))
    g("buffer_atomic_add %s, %s, s[20:23], 0 offen sc0" % (v(TK), v(CA)))
    for u in range(4):
        g("s_waitcnt vmcnt(%d)" % DT)
        vload(u)
    g("s_movk_i32 s3, 0x2000")
    g.lab("L_sw")
    for r in list(range(KA, KA + 4)) + list(range(VA, VA + 8)): g("v_xor_b32 %s, s3, %s" % (v(r), v(r)))
    g("s_xor_b32 s59, s59, s3")
    g("s_branch L_loop")
    g.lab("L_aw")
    g("s_cmp_ge_u32 s26, %d" % (0 if o["nowo"] or o["womode"] == 4 else 8))
    g("s_cbranch_scc1 L_ai")
    g("s_bfe_u32 s4, s59, 0x2000c")
    if o["womode"]:
        g("s_cmp_ge_u32 s4, %d" % (4 - o["womode"])); g("s_cbranch_scc1 L_ai")
    g("s_lshl_b32 s4, s4, 14")
    for u in range(4):
        if u: g("s_add_u32 s4, s4, 3072")
        g("s_waitcnt vmcnt(%d)" % (int(str(o["thw"])[u]) - 1))
        g("buffer_load_dwordx4 %s, s[44:47], s4 offen offset:%d nt lds" % (v(WS_), u * 1024))
    g("s_branch L_ai")
    g.lab("L_last")
    g("s_mov_b32 s58, 1"); g("s_mov_b32 s60, 1")
    g("s_branch L_ki")
    g.lab("L_vw")
    g("s_cmp_lg_u32 s60, 2")
    g("s_cbranch_scc1 L_v")
    g("s_waitcnt vmcnt(0)")
    g("s_branch L_v")
    g.lab("L_vs")
    g("s_movk_i32 s3, 0x2000")
    g("s_cmp_eq_u32 s60, 1")
    g("s_mov_b32 s60, 2")
    g("s_cbranch_scc1 L_sw")
    def wo_late(lab):
        g("s_cmp_ge_u32 s26, 8")
        g("s_cbranch_scc1 %s" % lab)
        for p in range(4 - o["womode"], 4):
            g("s_add_u32 m0, s29, %d" % (0x4000 + 4096 * p))
            for u in range(4):
                g("s_mov_b32 s4, %d" % (16384 * p + 3072 * u))
                g("buffer_load_dwordx4 %s, s[44:47], s4 offen offset:%d nt lds" % (v(WS_), u * 1024))
    if o["womode"] and o["wopos"] == 0: wo_late("L_tail")
    g.lab("L_tail")
    g.stamp(3)
    g.red_swap("v_add_f32", [LS], [T1])
    g("s_mov_b32 exec_lo, 0x000f000f"); g("s_mov_b32 exec_hi, 0x000f000f")
    for n in range(8): g("ds_write_b128 %s, %s offset:%d" % (v(CW), v(O + 4 * n, 4), 64 * n))
    g("ds_write2_b32 %s, %s, %s offset0:0 offset1:8" % (v(MW), v(M), v(LS)))
    g("s_mov_b64 exec, -1")
    g("s_cmp_eq_u32 s24, 4")
    g("s_waitcnt lgkmcnt(0)")
    g("s_cbranch_scc1 L_nb2")
    g("s_barrier")
    if o["womode"] and o["wopos"] == 1: wo_late("L_nb2")
    g.lab("L_nb2")
    g.stamp(4)
    A = 24
    g("ds_read_b128 %s, %s" % (v(A, 4), v(MR)))
    g("ds_read_b128 %s, %s offset:32" % (v(A + 4, 4), v(MR)))
    for w in range(4): g("ds_read_b128 %s, %s offset:%d" % (v(A + 8 + 4 * w, 4), v(CR), 2048 * w))
    GG = 4
    g("ds_read2_b32 %s, %s offset0:0 offset1:8" % (v(GG, 2), v(GR)))
    g("ds_read2_b32 %s, %s offset0:2 offset1:10" % (v(GG + 2, 2), v(GR)))
    R = 48
    g("v_mov_b32 %s, s30" % v(R + 3))
    g("s_waitcnt lgkmcnt(7)")
    g("v_max3_f32 %s, %s, %s, %s" % (v(T0), v(A), v(A + 1), v(A + 2)))
    g("v_max_f32 %s, %s, %s" % (v(T0), v(T0), v(A + 3)))
    for w in range(4): g("v_sub_f32 %s, %s, %s" % (v(A + w), v(A + w), v(T0)))
    for w in range(4): g("v_mul_f32 %s, s6, %s" % (v(A + w), v(A + w)))
    for w in range(4): g("v_exp_f32 %s, %s" % (v(A + w), v(A + w)))
    g("s_waitcnt lgkmcnt(5)")
    g("v_mul_f32 %s, %s, %s" % (v(T1), v(A), v(A + 4)))
    for w in range(1, 4): g("v_fmac_f32 %s, %s, %s" % (v(T1), v(A + w), v(A + 4 + w)))
    for e in range(4): g("v_mul_f32 %s, %s, %s" % (v(A + 8 + e), v(A), v(A + 8 + e)))
    g("v_rcp_f32 %s, %s" % (v(T2), v(T1)))
    g("v_log_f32 %s, %s" % (v(R + 2), v(T1)))
    for w in range(1, 4):
        g("s_waitcnt lgkmcnt(%d)" % (5 - w))
        for e in range(4): g("v_fmac_f32 %s, %s, %s" % (v(A + 8 + e), v(A + w), v(A + 8 + 4 * w + e)))
    g("v_fmac_f32 %s, s6, %s" % (v(R + 2), v(T0)))
    for e in range(4): g("v_mul_f32 %s, %s, %s" % (v(A + 8 + e), v(T2), v(A + 8 + e)))
    g("v_cvt_pk_bf16_f32 %s, %s, %s" % (v(R), v(A + 8), v(A + 9)))
    g("v_cvt_pk_bf16_f32 %s, %s, %s" % (v(R + 1), v(A + 10), v(A + 11)))
    g("s_mov_b32 exec_hi, 0")
    if o["tailmode"] == 2: g("s_mov_b32 exec_lo, 0x00ff00ff")
    if o["tailmode"] == 3: g("s_mov_b32 exec_lo, 0x000f000f")
    if o["tailmode"] != 1: g("buffer_store_dwordx4 %s, %s, s[20:23], 0 offen sc1" % (v(R, 4), v(H1A)))
    if o["tailmode"] >= 2: g("s_mov_b32 exec_lo, -1")
    g("s_mov_b32 exec_hi, -1")
    g.tstamp(8)
    if o["ts"] == 1:
        for i in (9, 10, 11, 12, 13): g.stamp(i)
    g("s_cmp_ge_u32 s26, 8")
    g("s_cbranch_scc1 L_fin")
    B = 56
    g.poll("L_p1", ["buffer_load_dwordx4 %s, %s, s[20:23], 0 offen offset:%d sc1" % (v(B + 4 * u, 4), v(P1A), 256 * u) for u in range(2)],
           [B + 3, B + 7], st=9, lim=(0 if o["tailmode"] else 0x40000),
           first=["ds_read_b64_tr_b16 %s, %s offset:%d" % (v(WO + 16 * t + 2 * n, 2), v(WR + (n >> 1)), 4096 * t + 8 * (n & 1)) for t in range(4) for n in range(8)])
    g.stamp(5)
    g("v_max_f32 %s, %s, %s" % (v(T0), v(B + 2), v(B + 6)))
    U = 64
    for u in range(2):
        for e in range(2):
            g("v_lshlrev_b32 %s, 16, %s" % (v(U + 4 * u + 2 * e), v(B + 4 * u + e)))
            g("v_and_b32 %s, 0xffff0000, %s" % (v(U + 4 * u + 2 * e + 1), v(B + 4 * u + e)))
    g.red_dpp("v_max_f32", [T0], ["row_ror:4", "row_ror:8"])
    g.red_swap("v_max_f32", [T0], [T1])
    for u in range(2): g("v_sub_f32 %s, %s, %s" % (v(B + 4 * u + 2), v(B + 4 * u + 2), v(T0)))
    for u in range(2): g("v_exp_f32 %s, %s" % (v(B + 4 * u + 2), v(B + 4 * u + 2)))
    g("s_nop 0")
    for e in range(4): g("v_mul_f32 %s, %s, %s" % (v(U + e), v(B + 2), v(U + e)))
    g("v_add_f32 %s, %s, %s" % (v(B), v(B + 2), v(B + 6)))
    for e in range(4): g("v_fmac_f32 %s, %s, %s" % (v(U + e), v(B + 6), v(U + 4 + e)))
    rs = [B, U, U + 1, U + 2, U + 3]
    g.red_dpp("v_add_f32", rs, ["row_ror:4", "row_ror:8"])
    g.red_swap("v_add_f32", rs, [B + 1, U + 4, U + 5, U + 6, U + 7])
    g("v_rcp_f32 %s, %s" % (v(B), v(B)))
    g("s_cmp_eq_u32 s24, 4")
    for e in range(4): g("v_mul_f32 %s, %s, %s" % (v(U + e), v(B), v(U + e)))
    g("v_cvt_pk_bf16_f32 %s, %s, %s" % (v(U), v(U), v(U + 1)))
    g("v_cvt_pk_bf16_f32 %s, %s, %s" % (v(U + 1), v(U + 2), v(U + 3)))
    g("s_mov_b64 exec, 15")
    g("ds_write_b64 %s, %s" % (v(OW), v(U, 2)))
    g("s_mov_b64 exec, -1")
    AC, AX = 48, 40
    def acc(n): return AC + n if n < 2 else AX + n
    g("v_mov_b32 %s, 0" % v(AC + 2))
    g("s_waitcnt lgkmcnt(0)")
    g.tstamp(10)
    g("s_cbranch_scc1 L_nb3")
    g("s_barrier")
    g.lab("L_nb3")
    g.tstamp(11)
    g("ds_read_b128 %s, %s" % (v(U, 4), v(OR)))
    g("ds_read_b128 %s, %s offset:16" % (v(U + 4, 4), v(OR)))
    for t in range(4):
        if t % 2 == 0: g("s_waitcnt lgkmcnt(%d)" % (1 - t // 2))
        for hh in range(2):
            for n in range(8):
                g("v_dot2_f32_bf16 %s, %s, %s, %s" % (v(acc(n)), v(WO + 16 * t + 2 * n + hh), v(U + 2 * t + hh), "0" if t == 0 and hh == 0 else v(acc(n))))
    g.tswap("v_permlane32_swap_b32", [(acc(n), acc(n + 4)) for n in range(4)])
    g.tswap("v_permlane16_swap_b32", [(acc(n), acc(n + 2)) for n in range(2)])
    g("buffer_store_dwordx4 %s, %s, s[20:23], 0 offen sc1" % (v(AC, 4), v(H2A)))
    g.tstamp(12)
    g.poll("L_p2", ["buffer_load_dwordx4 %s, %s, s[20:23], 0 offen sc1" % (v(B, 4), v(P2A))], [B + 3], st=13, lim=(0 if o["tailmode"] else 0x40000))
    g.stamp(6)
    R0, R1 = B, B + 1
    g.red_wave("v_add_f32", [R0, R1], [T0, T1])
    g.rbf([(R0, R1)], T0)
    g("v_mul_f32 %s, %s, %s" % (v(R0), v(R0), v(GG)))
    g("v_mul_f32 %s, %s, %s" % (v(R1), v(R1), v(GG + 1)))
    g.rbf([(R0, R1)], T0)
    g("v_add_f32 %s, %s, %s" % (v(R0), v(R0), v(GG + 2)))
    g("v_add_f32 %s, %s, %s" % (v(R1), v(R1), v(GG + 3)))
    g("v_cvt_pk_bf16_f32 %s, %s, %s" % (v(R0), v(R0), v(R1)))
    g("s_mov_b64 exec, 1")
    g("buffer_store_short %s, %s, s[16:19], 0 offen" % (v(R0), v(OUTA)))
    g("buffer_store_short_d16_hi %s, %s, s[16:19], 0 offen offset:8" % (v(R0), v(OUTA)))
    g("s_or_b32 s3, s2, s24")
    g("s_cbranch_scc1 L_noep")
    g("buffer_store_dword %s, off, s[20:23], 0 offset:%d sc1" % (v(AC + 3), WS_EPOCH))
    g.lab("L_noep")
    g("s_mov_b64 exec, -1")
    if o["stamps"]:
        g("s_branch L_fin2")
    g.lab("L_fin")
    if o["stamps"]:
        g.stamp(5); g.stamp(6)
        g.lab("L_fin2")
        g.stamp(7)
        g("s_cmp_lg_u32 s24, %d" % o["sw"])
        g("s_cbranch_scc1 L_fin3")
        g.write_stamps([0, 1, 2, 3, 4, 5, 6, 7] + ([8, 9, 10, 11, 12, 13] if o["ts"] in (1, 2) else []))
        g.lab("L_fin3")
    g("s_waitcnt vmcnt(0)")
    g("s_endpgm")

    g.lab("L_aux")
    if o["auxprio"]: g("s_setprio %d" % o["auxprio"])
    X, XF, TT = 4, 8, 16
    g("v_lshlrev_b32 v3, 4, v0")
    if o["wqrot"]: g("s_add_u32 s3, s26, s25"); g("s_and_b32 s3, s3, 7")
    else: g("s_and_b32 s3, s26, 7")
    g("s_lshl_b32 s3, s3, 6")
    g("s_lshr_b32 s7, s26, 3"); g("s_lshl_b32 s7, s7, 4"); g("s_add_u32 s27, s3, s7")
    g("s_lshl_b32 s3, s25, 9"); g("s_add_u32 s3, s3, s27"); g("s_lshl_b32 s3, s3, 1")
    g("v_lshrrev_b32 %s, 1, v0" % v(TT)); g("v_lshlrev_b32 %s, 13, %s" % (v(TT), v(TT)))
    g("v_and_b32 %s, 1, v0" % v(TT + 1)); g("v_lshl_or_b32 %s, %s, 4, %s" % (v(TT), v(TT + 1), v(TT)))
    g("v_add_u32 %s, s3, %s" % (v(TT), v(TT)))
    RS = o["RS"]
    if RS > 1:
        assert o["ffnlate"] and o["wqmode"] == 0
        lg = RS.bit_length() - 1
        g("s_and_b32 s3, s26, 7"); g("s_lshl_b32 s27, s3, 6")
        g("s_lshr_b32 s63, s26, 3")
        if RS == 2:
            g("s_and_b32 s7, s63, 1"); g("s_lshl_b32 s7, s7, 5"); g("s_add_u32 s27, s27, s7"); g("s_lshr_b32 s63, s63, 1")
        g("s_lshl_b32 s3, s25, 9"); g("s_add_u32 s3, s3, s27"); g("s_lshl_b32 s3, s3, 1")
        g("s_lshl_b32 s7, s63, %d" % (22 - lg)); g("s_add_u32 s3, s3, s7")
        g("v_lshrrev_b32 %s, %d, v0" % (v(TT), 1 + lg)); g("v_lshlrev_b32 %s, 13, %s" % (v(TT), v(TT)))
        g("v_and_b32 %s, %d, v0" % (v(TT + 1), 2 * RS - 1))
        if RS == 2: g("v_lshrrev_b32 %s, 4, v0" % v(TT + 8)); g("v_and_b32 %s, 2, %s" % (v(TT + 8), v(TT + 8)))
        else: g("v_lshrrev_b32 %s, 3, v0" % v(TT + 8)); g("v_and_b32 %s, 2, %s" % (v(TT + 8), v(TT + 8)))
        g("v_xor_b32 %s, %s, %s" % (v(TT + 1), v(TT + 1), v(TT + 8)))
        g("v_lshl_or_b32 %s, %s, 4, %s" % (v(TT), v(TT + 1), v(TT)))
        g("v_add_u32 %s, s3, %s" % (v(TT), v(TT)))
        if RS == 4: g("v_xor_b32 %s, 64, %s" % (v(TT + 8), v(TT)))
    if o["wqmode"] == 1:
        g("s_lshl_b32 s3, s2, 14"); g("v_add_u32 %s, s3, v3" % v(TT))
    if o["wqmode"] == 2:
        g("s_and_b32 s3, s2, 63"); g("s_lshl_b32 s3, s3, 7"); g("s_lshr_b32 s7, s2, 6"); g("s_lshl_b32 s7, s7, 20"); g("s_add_u32 s3, s3, s7")
        g("v_lshrrev_b32 %s, 3, v0" % v(TT)); g("v_lshlrev_b32 %s, 13, %s" % (v(TT), v(TT)))
        g("v_and_b32 %s, 7, v0" % v(TT + 1)); g("v_lshl_or_b32 %s, %s, 4, %s" % (v(TT), v(TT + 1), v(TT)))
        g("v_add_u32 %s, s3, %s" % (v(TT), v(TT)))
    if o["wqmode"] == 3:
        g("s_and_b32 s3, s2, 127"); g("s_and_b32 s7, s3, 7"); g("s_lshr_b32 s3, s3, 4"); g("s_lshl_b32 s3, s3, 3"); g("s_add_u32 s3, s3, s7"); g("s_lshl_b32 s3, s3, 7")
        g("s_bfe_u32 s7, s2, 0x10003"); g("s_lshl_b32 s7, s7, 6"); g("s_add_u32 s3, s3, s7")
        g("s_lshr_b32 s7, s2, 7"); g("s_lshl_b32 s7, s7, 21"); g("s_add_u32 s3, s3, s7")
        g("v_lshrrev_b32 %s, 2, v0" % v(TT)); g("v_lshlrev_b32 %s, 13, %s" % (v(TT), v(TT)))
        g("v_and_b32 %s, 3, v0" % v(TT + 1)); g("v_lshl_or_b32 %s, %s, 4, %s" % (v(TT), v(TT + 1), v(TT)))
        g("v_add_u32 %s, s3, %s" % (v(TT), v(TT)))
    g("v_mov_b32 %s, %d" % (v(TT + 2), TAGA)); g("v_mov_b32 %s, 0" % v(TT + 3))
    g("ds_write_b32 %s, %s offset:4" % (v(TT + 2), v(TT + 3)))
    g("s_waitcnt lgkmcnt(0)")
    if o["ts"] == 3: g.stamp(11)
    if o["b0"] == 3: g("s_barrier")
    g.srd(8, 32, 1024)
    g.srd(12, 38, 512 * 8192)
    g.srd(20, 54, WS_SIZE)
    g("buffer_load_dwordx4 %s, v3, s[8:11], 0 offen" % v(X, 4))
    g("buffer_load_dword %s, off, s[20:23], 0 offset:%d sc1" % (v(TT + 1), WS_EPOCH))
    g("s_mov_b32 s4, 0")
    for u in range(16):
        g("s_mov_b32 m0, %d" % (STAGE + u * 1024))
        if u: g("s_add_u32 s4, s4, %d" % ((0x40000 // RS, 1024, 0x10000, 0x20000)[o["wqmode"]]))
        else: g("s_nop 0")
        g("buffer_load_dwordx4 %s, s[12:15], s4 offen%s lds" % (v(TT + 8 if RS == 4 and u & 1 else TT), " nt" if o["wqnt"] else ""))
    if o["b0"] != 3: g("s_barrier")
    g("v_and_b32 %s, 3, v0" % v(TT + 2)); g("s_lshl_b32 s3, s28, 4"); g("v_lshl_add_u32 %s, %s, 2, s3" % (v(TT + 2), v(TT + 2)))
    g("buffer_load_dword %s, %s, s[8:11], 0 offen" % (v(TT + 2), v(TT + 2)))
    g("s_mul_i32 s3, s25, %d" % (NP * o["cstride"])); g("s_add_u32 s3, s3, %d" % WS_CNT)
    g("v_mul_u32_u24 %s, %d, v0" % (v(TT + 3), o["cstride"])); g("v_add_u32 %s, s3, %s" % (v(TT + 3), v(TT + 3))); g("v_mov_b32 %s, 0" % v(TT + 4))
    g("s_cmp_eq_u32 s26, 0"); g("s_cselect_b32 vcc_lo, %d, 0" % ((1 << NP) - 1)); g("s_mov_b32 vcc_hi, 0")
    g("v_mov_b32 %s, 0x7ffffff0" % v(TT + 5))
    g("v_cndmask_b32 %s, %s, %s, vcc" % (v(TT + 3), v(TT + 5), v(TT + 3)))
    g("buffer_store_dword %s, %s, s[20:23], 0 offen sc1" % (v(TT + 4), v(TT + 3)))
    g("s_waitcnt vmcnt(18)")
    g.stamp(13)
    g("v_readfirstlane_b32 s30, %s" % v(TT + 1))
    for e in range(4):
        g("v_lshlrev_b32 %s, 16, %s" % (v(XF + 2 * e), v(X + e)))
        g("v_and_b32 %s, 0xffff0000, %s" % (v(XF + 2 * e + 1), v(X + e)))
    g("s_mul_i32 s30, s30, 0x9e3779b1")
    g("s_add_u32 s30, s30, 0x7f4a7c15")
    a, b, c_ = TT + 5, TT + 6, TT + 7
    g("v_add_f32 %s, %s, %s" % (v(a), v(XF), v(XF + 1)))
    for e in range(2, 8): g("v_add_f32 %s, %s, %s" % (v(a), v(a), v(XF + e)))
    g.red_wave("v_add_f32", [a], [b])
    g("v_mul_f32 %s, %s, %s" % (v(a), hx(f2u(1.0 / 512)), v(a)))
    g("v_sub_f32 %s, %s, %s" % (v(c_), v(XF), v(a)))
    g("v_mul_f32 %s, %s, %s" % (v(b), v(c_), v(c_)))
    for e in range(1, 8):
        g("v_sub_f32 %s, %s, %s" % (v(c_), v(XF + e), v(a)))
        g("v_fmac_f32 %s, %s, %s" % (v(b), v(c_), v(c_)))
    g.red_wave("v_add_f32", [b], [c_])
    g("v_mul_f32 %s, %s, %s" % (v(b), hx(f2u(1.0 / 512)), v(b)))
    g.rbf([(a, b)], c_)
    g("v_add_f32 %s, %s, %s" % (v(b), hx(f2u(1e-5)), v(b)))
    g.rbf([(b, b)], c_)
    g("v_sqrt_f32 %s, %s" % (v(b), v(b)))
    for e in range(8): g("v_sub_f32 %s, %s, %s" % (v(XF + e), v(XF + e), v(a)))
    g.rbf([(b, b)], c_)
    g("v_rcp_f32 %s, %s" % (v(a), v(b)))
    g.rbf([(XF + 2 * e, XF + 2 * e + 1) for e in range(4)], c_)
    for e in range(8):
        g("v_mul_f32 %s, %s, %s" % (v(c_), v(XF + e), v(a)))
        g("v_fma_f32 %s, -%s, %s, %s" % (v(XF + e), v(c_), v(b), v(XF + e)))
        g("v_fma_f32 %s, %s, %s, %s" % (v(XF + e), v(XF + e), v(a), v(c_)))
    for e in range(4): g("v_cvt_pk_bf16_f32 %s, %s, %s" % (v(X + e), v(XF + 2 * e), v(XF + 2 * e + 1)))
    g("v_add_u32 %s, %d, v3" % (v(a), XN))
    g("ds_write_b128 %s, %s" % (v(a), v(X, 4)))
    W1, W2 = 96, 160
    fm = o["ffnmode"]
    def ffn_loads():
        g("v_lshrrev_b32 %s, 3, v0" % v(a)); g("v_and_b32 %s, 7, v0" % v(b))
        g("s_cmp_eq_u32 s60, 2")
        g("s_cbranch_scc1 L_rb")
        g.srd(8, 44, 512 * 3584)
        g.srd(16, 46, 512 * 3584)
        g("s_mul_i32 s3, s62, %d" % (128 * 3584)); g("s_lshl_b32 s7, s61, 7"); g("s_add_u32 s3, s3, s7")
        g("s_movk_i32 s7, 3584")
        g("s_branch L_rj")
        g.lab("L_rb")
        g.srd(8, 48, 1792 * 1024)
        g.srd(16, 48, 1792 * 1024 - 128 * 1024, "0x20000")
        g("s_lshl_b32 s3, s61, 18"); g("s_lshl_b32 s7, s25, 7"); g("s_add_u32 s3, s3, s7")
        g("s_movk_i32 s7, 1024")
        g.lab("L_rj")
        g("v_lshlrev_b32 %s, 1, %s" % (v(a), v(a))); g("v_mul_u32_u24 %s, s7, %s" % (v(c_), v(a)))
        g("v_lshl_add_u32 %s, %s, 4, %s" % (v(c_), v(b), v(c_))); g("v_add_u32 %s, s3, %s" % (v(c_), v(c_)))
        g("v_add_u32 %s, s7, %s" % (v(a), v(c_)))
        g("s_lshl_b32 s7, s7, 4")
        g("s_mov_b32 s4, 0")
        for k in range(8):
            if k: g("s_add_u32 s4, s4, s7")
            for i in range(2):
                g("buffer_load_dwordx4 %s, %s, s[8:11], s4 offen nt" % (v(W1 + 8 * k + 4 * i, 4), v(a if i else c_)))
                g("buffer_load_dwordx4 %s, %s, s[16:19], s4 offen nt" % (v(W2 + 8 * k + 4 * i, 4), v(a if i else c_)))
    g("s_mov_b32 s60, 0")
    if not o["noffn"]:
        g("s_sub_u32 s61, s26, 22"); g("s_cmp_lt_u32 s61, 7"); g("s_cselect_b32 s60, 2, 0")
        g("s_sub_u32 s3, s26, 8"); g("s_cmp_lt_u32 s3, 14")
        g("s_cbranch_scc0 L_nra")
        g("s_mul_i32 s7, s25, 14"); g("s_add_u32 s3, s3, s7")
        g("s_mov_b32 s60, 1"); g("s_lshr_b32 s61, s3, 2"); g("s_and_b32 s62, s3, 3")
        g.lab("L_nra")
    if o["ffnlate"]:
        if RS == 1: g("s_waitcnt vmcnt(0)")
    else:
        g("s_cmp_eq_u32 s60, 0")
        g("s_cbranch_scc1 L_nofl")
        ffn_loads()
        g("s_waitcnt vmcnt(32)")
        g("s_branch L_fl")
        g.lab("L_nofl")
        g("s_waitcnt vmcnt(0)")
        g.lab("L_fl")
    if RS == 1:
        XA, WA, Dq = 24, 25, 28
        FB = 32
        g("v_lshlrev_b32 %s, 4, v1" % v(XA)); g("v_add_u32 %s, %d, %s" % (v(XA), XN, v(XA)))
        g("v_lshrrev_b32 %s, 2, v2" % v(a))
        g("v_lshl_add_u32 %s, v1, 3, %s" % (v(a), v(a)))
        g("v_and_b32 %s, 3, v0" % v(b))
        g("v_lshlrev_b32 %s, 5, %s" % (v(WA), v(a)))
        g("v_lshl_or_b32 %s, %s, 3, %s" % (v(WA), v(b), v(WA)))
        g("v_add_u32 %s, %d, %s" % (v(WA), STAGE, v(WA)))
        def rd(grp):
            for k in range(4):
                t = 4 * grp + k; r0 = FB + 32 * (grp & 1) + 8 * k
                g("ds_read_b128 %s, %s offset:%d" % (v(r0, 4), v(XA), 64 * t))
                g("ds_read_b64_tr_b16 %s, %s offset:%d" % (v(r0 + 4, 2), v(WA), 1024 * t))
                g("ds_read_b64_tr_b16 %s, %s offset:%d" % (v(r0 + 6, 2), v(WA), 1024 * t + 128))
        g("s_waitcnt lgkmcnt(0)")
        g.stamp(8)
        rd(0)
        for grp in range(4):
            g("s_waitcnt lgkmcnt(0)")
            if grp < 3: rd(grp + 1)
            for k in range(4):
                r0 = FB + 32 * (grp & 1) + 8 * k
                g("v_mfma_f32_16x16x32_bf16 %s, %s, %s, %s" % (v(Dq, 4), v(r0 + 4, 4), v(r0, 4), "0" if grp == 0 and k == 0 else v(Dq, 4)))
        g("s_lshl_b32 s3, s25, 11"); g("s_add_u32 s4, s3, %d" % WS_Q)
        g("s_lshl_b32 s3, s27, 2"); g("s_add_u32 s3, s3, s4")
        g("v_lshlrev_b32 %s, 4, v1" % v(a))
        g("v_mov_b32 %s, s30" % v(FB + 1)); g("v_mov_b32 %s, s30" % v(FB + 3))
        g.nop(2)
        g("v_cvt_pk_bf16_f32 %s, %s, %s" % (v(FB), v(Dq), v(Dq + 1)))
        g("v_cvt_pk_bf16_f32 %s, %s, %s" % (v(FB + 2), v(Dq + 2), v(Dq + 3)))
        g("s_mov_b32 exec_lo, 0x00010001"); g("s_mov_b32 exec_hi, 0x00010001")
        g("buffer_store_dwordx4 %s, %s, s[20:23], s3 offen sc1" % (v(FB, 4), v(a)))
        g("s_mov_b64 exec, -1")
        g.stamp(9)
        QB = 40
        g.poll("L_pq", ["buffer_load_dwordx4 %s, v3, s[20:23], s4 offen offset:%d sc1" % (v(QB + 4 * u, 4), 1024 * u) for u in range(2)],
               [QB + 1, QB + 3, QB + 5, QB + 7])
        g.stamp(10)
        g("v_lshlrev_b32 %s, 3, v0" % v(a)); g("v_add_u32 %s, %d, %s" % (v(a), QA, v(a)))
        g("v_mov_b32 %s, %s" % (v(QB + 1), v(QB + 2))); g("v_mov_b32 %s, %s" % (v(QB + 5), v(QB + 6)))
        g("v_mov_b32 %s, %d" % (v(b), TAGA))
        g("ds_write_b64 %s, %s" % (v(a), v(QB, 2)))
        g("ds_write_b64 %s, %s offset:512" % (v(a), v(QB + 4, 2)))
        g("v_mov_b32 %s, s30" % v(QB + 2)); g("v_mov_b32 %s, 1" % v(QB + 3))
        g("ds_write_b64 %s, %s" % (v(b), v(QB + 2, 2)))
    else:
        XA, WA, Dq, XF_, WF = 24, 25, 32, 48, 96
        KS_ = 16 // RS; pitch = 32 * RS
        g("s_lshl_b32 s3, s63, %d" % (10 - lg)); g("s_add_u32 s3, s3, %d" % XN)
        g("v_lshl_add_u32 %s, v1, 4, s3" % v(XA))
        g("v_lshrrev_b32 %s, 2, v2" % v(a))
        g("v_lshl_add_u32 %s, v1, 3, %s" % (v(c_), v(a)))
        g("v_and_b32 %s, 3, v0" % v(b))
        g("v_lshlrev_b32 %s, %d, %s" % (v(WA), 5 + lg, v(c_)))
        g("v_lshl_or_b32 %s, %s, 3, %s" % (v(WA), v(b), v(WA)))
        g("v_and_b32 %s, 1, v1" % v(b))
        if RS == 4: g("v_lshrrev_b32 %s, 1, %s" % (v(a), v(a))); g("v_lshl_or_b32 %s, %s, 1, %s" % (v(b), v(b), v(a)))
        g("v_lshl_or_b32 %s, %s, 5, %s" % (v(WA), v(b), v(WA)))
        g("v_add_u32 %s, %d, %s" % (v(WA), STAGE, v(WA)))
        for ct in range(1, RS): g("v_xor_b32 %s, %d, %s" % (v(WA + ct), 32 * ct, v(WA)))
        g("s_waitcnt lgkmcnt(0)")
        for k in range(KS_): g("ds_read_b128 %s, %s offset:%d" % (v(XF_ + 4 * k, 4), v(XA), 64 * k))
        g("s_mul_i32 s4, s25, %d" % (2048 * RS)); g("s_add_u32 s4, s4, %d" % WS_Q)
        g("s_lshl_b32 s3, s63, 11"); g("s_add_u32 s3, s3, s4"); g("s_lshl_b32 s7, s27, 2"); g("s_add_u32 s3, s3, s7")
        g("v_lshlrev_b32 %s, 4, v1" % v(a)); g("v_lshl_or_b32 %s, v2, 6, %s" % (v(a), v(a)))
        g("s_mov_b32 s56, 0x07060503"); g("s_mov_b32 s57, 0x07060502"); g("s_mov_b32 s58, 0x07060501")
        MK = [0, 34, 36, 42]
        for ct in range(1, RS): g("v_cmp_eq_u32 %s, %d, v2" % (s(MK[ct], 2), ct))
        g("s_waitcnt vmcnt(0) lgkmcnt(0)")
        g.stamp(8)
        seq = [(k, ct) for k in range(KS_) for ct in range(RS)]
        def rd2(j):
            k, ct = seq[j]
            g("ds_read_b64_tr_b16 %s, %s offset:%d" % (v(WF + 4 * j, 2), v(WA + ct), 32 * pitch * k))
            g("ds_read_b64_tr_b16 %s, %s offset:%d" % (v(WF + 4 * j + 2, 2), v(WA + ct), 32 * pitch * k + 4 * pitch))
        AH = 6
        for j in range(AH): rd2(j)
        for j in range(16):
            if j + AH < 16: rd2(j + AH)
            g("s_waitcnt lgkmcnt(%d)" % (2 * min(AH, 15 - j)))
            k, ct = seq[j]
            g("v_mfma_f32_16x16x32_bf16 %s, %s, %s, %s" % (v(Dq + 4 * ct, 4), v(WF + 4 * j, 4), v(XF_ + 4 * k, 4), "0" if k == 0 else v(Dq + 4 * ct, 4)))
        g.nop(8 if RS == 2 else 5)
        for ct in range(1, RS):
            for e in range(4): g("v_cndmask_b32 %s, %s, %s, %s" % (v(Dq + e), v(Dq + e), v(Dq + 4 * ct + e), s(MK[ct], 2)))
        for e in range(3): g("v_perm_b32 %s, %s, %s, %s" % (v(Dq + e), v(Dq + e), v(Dq + 3), s(56 + e)))
        g("v_mov_b32 %s, s30" % v(Dq + 3))
        m16 = (1 << RS) - 1
        g("s_mov_b32 exec_lo, %s" % hx(m16 | m16 << 16)); g("s_mov_b32 exec_hi, %s" % hx(m16 | m16 << 16))
        g("buffer_store_dwordx4 %s, %s, s[20:23], s3 offen sc1" % (v(Dq, 4), v(a)))
        g("s_mov_b64 exec, -1")
        g.stamp(9)
        QB = 48
        g("s_add_u32 s5, s4, 4096")
        g("s_mov_b32 s56, 0x04000c0c"); g("s_mov_b32 s57, 0x0706000c")
        g("v_lshlrev_b32 %s, 3, v0" % v(a)); g("v_add_u32 %s, %d, %s" % (v(a), QA, v(a)))
        g("v_mov_b32 %s, %d" % (v(b), TAGA))
        g("v_mov_b32 %s, s30" % v(Dq)); g("v_mov_b32 %s, 1" % v(Dq + 1))
        g.poll("L_pq", ["buffer_load_dwordx4 %s, v3, s[20:23], %s offen offset:%d sc1" % (v(QB + 4 * u, 4), "s4" if u < 4 else "s5", 1024 * (u & 3)) for u in range(2 * RS)],
               [QB + 4 * u + 3 for u in range(2 * RS)], o["pqs"])
        g.stamp(10)
        for u in range(2 * RS):
            r = QB + 4 * u
            g("v_perm_b32 %s, %s, %s, s56" % (v(r + 3), v(r), v(r + 1)))
            g("v_perm_b32 %s, %s, %s, s57" % (v(r + 3), v(r + 3), v(r + 2)))
        st = 8
        while st < 8 * RS:
            for r0 in range(QB, QB + 8 * RS, 2 * st):
                for e in range(8): g("v_add_f32 %s, %s, %s" % (v(r0 + e), v(r0 + e), v(r0 + st + e)))
            st *= 2
        for e in range(4): g("v_cvt_pk_bf16_f32 %s, %s, %s" % (v(QB + e), v(QB + 2 * e), v(QB + 2 * e + 1)))
        g("ds_write_b64 %s, %s" % (v(a), v(QB, 2)))
        g("ds_write_b64 %s, %s offset:512" % (v(a), v(QB + 2, 2)))
        g("ds_write_b64 %s, %s" % (v(b), v(Dq, 2)))
    if o["fprio"] >= 0: g("s_setprio %d" % o["fprio"])
    g("s_cmp_eq_u32 s60, 0")
    g("s_cbranch_scc1 L_nofp")
    if fm == 2: g("s_branch L_nofp")
    XP, XQ, AG, AU, PT = 24, 32, 40, 48, 56
    if o["ffnlate"]: ffn_loads()
    g("v_lshrrev_b32 %s, 3, v0" % v(a)); g("v_lshlrev_b32 %s, 2, %s" % (v(a), v(a)))
    g("s_lshl_b32 s3, s62, 8"); g("s_add_u32 s3, s3, %d" % XN); g("s_mov_b32 s7, s3")
    g("s_cmp_eq_u32 s60, 1")
    g("s_cbranch_scc1 L_fc")
    g("s_mul_i32 s4, s61, %d" % CSA); g("s_add_u32 s4, s4, %d" % WS_FA)
    g("s_add_u32 s5, s4, 4096")
    FA_ = 56
    plim = {4: -1, 5: 2, 6: -1, 7: -1, 8: -1, 10: -1}.get(fm, 0x40000)
    if o["cpoll"]:
        g("v_lshlrev_b32 %s, 9, v0" % v(b))
        g("s_mov_b64 exec, 0xffff")
        g.poll("L_pc", ["buffer_load_dwordx4 %s, %s, s[20:23], s4 offen offset:496 sc1" % (v(FA_, 4), v(b))], [FA_ + 3], o["cpoll"], lim=plim)
        g("s_mov_b64 exec, -1")
    g.poll("L_pa", ["buffer_load_dwordx4 %s, v3, s[20:23], %s offen offset:%d sc1" % (v(FA_ + 4 * u, 4), "s4" if u < 4 else "s5", 1024 * (u & 3)) for u in range(8)],
           [FA_ + 4 * u + 3 for u in range(8)], o["fsleep"], lim=plim)
    if o["ts"] != 3: g.stamp(11)
    g("s_mov_b32 s3, 0x04000c0c"); g("s_mov_b32 s7, 0x0706000c")
    for u in range(8):
        r = FA_ + 4 * u
        g("v_perm_b32 %s, %s, %s, s3" % (v(r + 3), v(r), v(r + 1)))
        g("v_perm_b32 %s, %s, %s, s7" % (v(r + 3), v(r + 3), v(r + 2)))
    for cb in range(4):
        for e in range(4): g("v_add_f32 %s, %s, %s" % (v(FA_ + 8 * cb + e), v(FA_ + 8 * cb + e), v(FA_ + 8 * cb + 4 + e)))
    g.tswap("v_permlane32_swap_b32", [(FA_ + 8 * cb + e, FA_ + 8 * cb + 16 + e) for cb in range(2) for e in range(4)])
    GT = [FA_, FA_ + 2, FA_ + 8, FA_ + 10]; UP = [x + 1 for x in GT]; E = [FA_ + 4, FA_ + 5, FA_ + 6, FA_ + 7]
    g.rbf(list(zip(GT, UP)), c_)
    k1 = -2.0 * math.sqrt(2.0 / math.pi) * LOG2E
    for j in range(4): g("v_mul_f32 %s, %s, %s" % (v(E[j]), v(GT[j]), v(GT[j])))
    for j in range(4): g("v_mul_f32 %s, %s, %s" % (v(E[j]), hx(f2u(0.044715)), v(E[j])))
    for j in range(4): g("v_add_f32 %s, 1.0, %s" % (v(E[j]), v(E[j])))
    for j in range(4): g("v_mul_f32 %s, %s, %s" % (v(E[j]), v(E[j]), v(GT[j])))
    for j in range(4): g("v_mul_f32 %s, %s, %s" % (v(E[j]), hx(f2u(k1)), v(E[j])))
    for j in range(4): g("v_exp_f32 %s, %s" % (v(E[j]), v(E[j])))
    for j in range(4): g("v_add_f32 %s, 1.0, %s" % (v(E[j]), v(E[j])))
    for j in range(4): g("v_rcp_f32 %s, %s" % (v(E[j]), v(E[j])))
    for j in range(4): g("v_mul_f32 %s, %s, %s" % (v(E[j]), v(E[j]), v(GT[j])))
    g.rbf([(E[0], E[1]), (E[2], E[3])], c_)
    for j in range(4): g("v_mul_f32 %s, %s, %s" % (v(E[j]), v(E[j]), v(UP[j])))
    g("v_cvt_pk_bf16_f32 %s, %s, %s" % (v(E[0]), v(E[0]), v(E[1])))
    g("v_cvt_pk_bf16_f32 %s, %s, %s" % (v(E[2]), v(E[2]), v(E[3])))
    g("v_lshrrev_b32 %s, 5, v0" % v(c_)); g("v_and_b32 %s, 31, v0" % v(b)); g("v_lshlrev_b32 %s, 2, %s" % (v(b), v(b)))
    g("v_lshl_add_u32 %s, %s, 8, %s" % (v(c_), v(c_), v(b))); g("v_add_u32 %s, %d, %s" % (v(c_), HA, v(c_)))
    g("ds_write2_b32 %s, %s, %s offset0:0 offset1:32" % (v(c_), v(E[0]), v(E[2])))
    g("s_mov_b32 s3, %d" % HA); g("s_mov_b32 s7, %d" % (HA + 256))
    g.lab("L_fc")
    g("v_add_u32 %s, s3, %s" % (v(b), v(a))); g("v_add_u32 %s, s7, %s" % (v(c_), v(a)))
    for k in range(8): g("ds_read_b32 %s, %s offset:%d" % (v(XP + k), v(b), 32 * k))
    for k in range(8): g("ds_read_b32 %s, %s offset:%d" % (v(XQ + k), v(c_), 32 * k))
    for e in range(16): g("v_mov_b32 %s, 0" % v(AG + e))
    g("s_mov_b32 s3, 0x05040100"); g("s_mov_b32 s7, 0x07060302")
    def pairs(W, ACC, XPr):
        for k in range(8):
            for e in range(4):
                ra, rb_ = W + 8 * k + e, W + 8 * k + 4 + e
                g("v_perm_b32 %s, %s, %s, s3" % (v(PT + 2 * (e & 1)), v(rb_), v(ra)))
                g("v_perm_b32 %s, %s, %s, s7" % (v(PT + 2 * (e & 1) + 1), v(rb_), v(ra)))
                g("v_dot2_f32_bf16 %s, %s, %s, %s" % (v(ACC + 2 * e), v(PT + 2 * (e & 1)), v(XPr + k), v(ACC + 2 * e)))
                g("v_dot2_f32_bf16 %s, %s, %s, %s" % (v(ACC + 2 * e + 1), v(PT + 2 * (e & 1) + 1), v(XPr + k), v(ACC + 2 * e + 1)))
    g("s_waitcnt vmcnt(0) lgkmcnt(0)")
    pairs(W1, AG, XP)
    pairs(W2, AU, XQ)
    g.nop(1)
    g.tswap("v_permlane32_swap_b32", [(AG + c, AG + c + 4) for c in range(4)] + [(AU + c, AU + c + 4) for c in range(4)])
    g.tswap("v_permlane16_swap_b32", [(AG + c, AG + c + 2) for c in range(2)] + [(AU + c, AU + c + 2) for c in range(2)])
    g.red_dpp("v_add_f32", [AG, AG + 1, AU, AU + 1], ["row_ror:8"])
    g("v_and_b32 %s, 7, v0" % v(b))
    g("v_mov_b32 %s, s30" % v(AG + 3))
    g("s_cmp_eq_u32 s60, 2")
    g("s_cbranch_scc1 L_fb")
    g("s_mov_b32 s3, 0x07060503"); g("s_mov_b32 s4, 0x07060502"); g("s_mov_b32 s7, 0x07060501")
    g("v_perm_b32 %s, %s, %s, s7" % (v(AG + 2), v(AG + 1), v(AU + 1)))
    g("v_perm_b32 %s, %s, %s, s4" % (v(AG + 1), v(AU), v(AU + 1)))
    g("v_perm_b32 %s, %s, %s, s3" % (v(AG), v(AG), v(AU + 1)))
    g("v_lshlrev_b32 %s, 6, %s" % (v(b), v(b)))
    g("s_lshr_b32 s4, s61, 2"); g("s_mul_i32 s4, s4, %d" % CSA); g("s_and_b32 s5, s61, 3"); g("s_lshl_b32 s5, s5, 11"); g("s_add_u32 s4, s4, s5")
    g("s_lshl_b32 s5, s62, 9"); g("s_add_u32 s4, s4, s5"); g("s_add_u32 s4, s4, %d" % WS_FA)
    if fm in (5, 6, 8): g("s_branch L_nofp")
    g("s_branch L_fs")
    g.lab("L_fb")
    g("v_add_f32 %s, %s, %s" % (v(AG), v(AG), v(AU))); g("v_add_f32 %s, %s, %s" % (v(AG + 1), v(AG + 1), v(AU + 1)))
    g("v_mov_b32 %s, 0" % v(AG + 2))
    g("v_mul_u32_u24 %s, %d, %s" % (v(b), CSB, v(b)))
    g("s_mul_i32 s4, s25, %d" % (8 * CSB)); g("s_lshl_b32 s5, s61, 6"); g("s_add_u32 s4, s4, s5"); g("s_add_u32 s4, s4, %d" % WS_FB)
    if fm in (5, 6, 7): g("s_branch L_nofp")
    g.lab("L_fs")
    g("v_lshl_add_u32 %s, v1, 4, %s" % (v(b), v(b)))
    g("s_mov_b32 exec_lo, 0x00ff00ff"); g("s_mov_b32 exec_hi, 0x00ff00ff")
    g("buffer_store_dwordx4 %s, %s, s[20:23], s4 offen sc1" % (v(AG, 4), v(b)))
    g("s_mov_b64 exec, -1")
    g.lab("L_nofp")
    if o["dn"]:
        g.srd(8, 54, 32 << 20, hx(o["dbase"] << 20))
        g("s_mul_i32 s4, s2, %d" % (o["dn"] * 1024 + 128))
        for j in range(o["dn"]):
            g("buffer_load_dwordx4 v[56:59], v3, s[8:11], s4 offen %s" % ["sc1", "", "sc0 sc1", "sc1 nt", "sc0", "nt"][o["dmod"]])
            g("s_add_u32 s4, s4, 1024")
        g("s_waitcnt vmcnt(0)")
    if o["dpoll"]:
        if not o["dwho"]: g("s_cmp_ge_u32 s26, 8"); g("s_cbranch_scc1 L_dp")
        g("s_mul_i32 s4, s2, %d" % o["dstr"]); g("s_add_u32 s4, s4, %d" % o["doff"])
        if o["dst"]:
            g("v_mov_b32 v59, 0")
            g("buffer_store_dwordx4 v[56:59], v3, s[20:23], s4 offen sc1")
        g.poll("L_dq", ["buffer_load_dwordx4 v[56:59], v3, s[20:23], s4 offen %s" % ["sc1", "", "sc0 sc1", "sc1 nt", "sc0"][o["dmod"]]], [59], o["gsleep"], lim=o["dpoll"] - 1)
        g.lab("L_dp")
    g("s_cmp_ge_u32 s26, 8")
    g("s_cbranch_scc1 L_nofc")
    E = 56
    g("v_mov_b32 %s, 0" % v(E)); g("v_mov_b32 %s, 0" % v(E + 1)); g("v_mov_b32 %s, s30" % v(E + 3))
    if not (o["noffn"] or fm == 2):
        g("s_mul_i32 s4, s28, %d" % CSB); g("s_add_u32 s4, s4, %d" % WS_FB)
        g("s_mov_b64 exec, 0x0fffffff")
        g.poll("L_pb", ["buffer_load_dwordx4 %s, v3, s[20:23], s4 offen sc1" % v(E, 4)], [E + 3], o["gsleep"], lim={9: -1, 10: 0x40000}.get(fm, plim))
        g("s_mov_b64 exec, -1")
    g.red_dpp("v_add_f32", [E, E + 1], ["row_ror:4", "row_ror:8"])
    g.red_swap("v_add_f32", [E, E + 1], [a, b])
    g.rbf([(E, E + 1)], c_)
    g("s_mov_b32 s7, %s" % hx(f2u(-LOG2E)))
    g("v_mul_f32 %s, s7, %s" % (v(a), v(E))); g("v_mul_f32 %s, s7, %s" % (v(b), v(E + 1)))
    g("v_exp_f32 %s, %s" % (v(a), v(a))); g("v_exp_f32 %s, %s" % (v(b), v(b)))
    g("v_lshlrev_b32 %s, 16, %s" % (v(E + 2), v(TT + 2)))
    g("v_add_f32 %s, 1.0, %s" % (v(a), v(a))); g("v_add_f32 %s, 1.0, %s" % (v(b), v(b)))
    g("v_rcp_f32 %s, %s" % (v(a), v(a))); g("v_rcp_f32 %s, %s" % (v(b), v(b)))
    g("v_and_b32 %s, 0xffff0000, %s" % (v(E + 3), v(TT + 2)))
    g("v_mul_f32 %s, %s, %s" % (v(E), v(E), v(a))); g("v_mul_f32 %s, %s, %s" % (v(E + 1), v(E + 1), v(b)))
    g.rbf([(E, E + 1)], c_)
    g("v_add_u32 %s, %d, v3" % (v(a), GA))
    g("s_mov_b64 exec, 15")
    g("ds_write_b128 %s, %s" % (v(a), v(E, 4)))
    g("s_mov_b64 exec, -1")
    g.lab("L_nofc")
    g.stamp(12)
    if o["ts"] in (0, 3): g.write_stamps([8, 9, 10, 11, 12, 13])
    g("s_waitcnt vmcnt(0) lgkmcnt(0)")
    if o["reh"]:
        g("v_lshrrev_b32 v1, 4, v0"); g("v_and_b32 v2, 15, v0")
        tail_addr()
        g.srd(16, 50, 0)
        g.srd(20, 54, 0)
        g("s_mov_b32 s30, 0")
        g("s_branch L_tail")
    g.lab("L_end")
    g("s_endpgm")

    out = HEADER + "; @launch grid=(256,1,1) block=(320,1,1) lds=%d\n" % LDS_BYTES
    out += '.amdgcn_target "amdgcn-amd-amdhsa--gfx950"\n.text\n.globl %s_kernel\n.p2align 8\n.type %s_kernel,@function\n%s_kernel:\n' % (KNAME, KNAME, KNAME)
    MODS = ["nt", "", "sc1 nt", "sc0 nt", "sc0 sc1 nt", "sc1", "sc0"]
    for i_, l_ in enumerate(g.L):
        if l_.endswith(" nt lds") and ("s[8:11]" in l_ or ("s[12:15]" in l_ and "offset:" in l_)): g.L[i_] = l_[:-6] + MODS[o["smod"]] + " lds"
        elif l_.endswith(" nt lds") and "s[44:47]" in l_: g.L[i_] = l_[:-6] + MODS[o["womod"]] + " lds"
        elif l_.endswith("s4 offen nt") and "v[56:59]" not in l_: g.L[i_] = l_[:-2] + MODS[o["fmod"]]
    out += "\n".join(g.L) + "\n"
    out += """.section .rodata,"a"
.p2align 6
.amdhsa_kernel %s_kernel
  .amdhsa_next_free_vgpr %d
  .amdhsa_next_free_sgpr 100
  .amdhsa_accum_offset %d
  .amdhsa_group_segment_fixed_size 0
  .amdhsa_kernarg_size 96
  .amdhsa_user_sgpr_count 2
  .amdhsa_user_sgpr_kernarg_segment_ptr 1
  .amdhsa_system_sgpr_workgroup_id_x 1
.end_amdhsa_kernel
""" % (KNAME, NV, NV)
    return out

if __name__ == "__main__":
    import hazcheck
    names = []
    for spec in sys.argv[1:]:
        parts = spec.split(",")
        fn = parts[0]
        opts = {}
        for p in parts[1:]:
            k, x = p.split("=")
            opts[k] = int(x)
        txt = gen(**opts)
        nb = hazcheck.check(txt)
        assert nb == 0, "hazards found"
        open(fn, "w").write(txt)
        names.append(fn)
    print(" ".join(names))
```

```python
import sys, struct, math
KNAME = "recurrent_scan__gqa_block_cached__geglu_ffn__decode"

def f2u(x): return struct.unpack("<I", struct.pack("<f", x))[0]
def hx(x): return "0x%x" % (x & 0xffffffff)
def v(n, c=1): return "v%d" % n if c == 1 else "v[%d:%d]" % (n, n + c - 1)
def s(n, c=1): return "s%d" % n if c == 1 else "s[%d:%d]" % (n, n + c - 1)

STAGE = 131072
XN = 147456
QA = 148480
ML = 149504
GA = 150016
TAGA = 150144
OA = 150272
HA = 150528
COMB = 151552
LDS_BYTES = 163840
WS_EPOCH = 0
WS_Q = 0x30000
WS_CNT = 0x8000
WS_B1 = 0x100000
WS_B2 = 0x200000
WS_FA = 0x300000
WS_FB = 0x380000
WS_SIZE = 0x400000
STAMP_OFF = 256 << 20
LOG2E = math.log2(math.e)

HEADER = """; Kernarg layout for this problem (96 bytes, ptrs only, base s[0:1]):
"""

class G:
    def __init__(self, **o):
        self.L = []
        self.o = dict(stamps=0, D=5, rot=1572864, noffn=0, auxprio=3, reh=1, round=1, wqnt=1, wqrot=0,
                      pad1=128, pad2=128, S=30, fsleep=8, b0=3, qsleep=2, wqmode=0, ffnlate=1, nowo=0, ack=1, cstride=4096, ts=0, thr=5, ffnmode=0, womode=3, dynthr=6, N=28, thk=5556, thv=5556, cpoll=8, sprio=0, fprio=0, sw=0, fthr=0, tailmode=0, stm=0, gsleep=8, dpoll=0, dmod=0, dwho=0, dst=0, doff=0x300000, dstr=1152, dn=0, dbase=8, smod=0, fmod=0, womod=0, dN=0, thw=5556, wopos=0, RS=4, pqs=8)
        for k in o: assert k in self.o, k
        self.o.update(o)
    def __call__(self, x): self.L.append("    " + x)
    def lab(self, x): self.L.append(x + ":")
    def c(self, x): self.L.append("    ; " + x)
    def nop(self, n):
        while n > 0:
            k = min(n, 16); self("s_nop %d" % (k - 1)); n -= k
    def stamp(self, i):
        if self.o["stamps"]: self("s_memrealtime %s" % s(64 + 2 * i, 2))
    def write_stamps(self, idx):
        if not self.o["stamps"]: return
        self("s_waitcnt lgkmcnt(0)")
        self("s_lshl_b32 s3, s2, 7")
        self("s_add_u32 s3, s3, %d" % STAMP_OFF)
        self("v_mov_b32 v1, s3")
        for i in idx:
            self("v_mov_b32 v2, %s" % s(64 + 2 * i)); self("v_mov_b32 v3, %s" % s(65 + 2 * i))
            self("global_store_dwordx2 v1, v[2:3], s[54:55] offset:%d" % (8 * i))
        if 0 in idx:
            self("s_getreg_b32 s3, hwreg(HW_REG_XCC_ID)")
            self("v_mov_b32 v2, s3"); self("v_mov_b32 v3, s95")
            self("global_store_dwordx2 v1, v[2:3], s[54:55] offset:120")
    def srd(self, d, base, size, add=None):
        if add is None:
            self("s_mov_b32 %s, %s" % (s(d), s(base))); self("s_mov_b32 %s, %s" % (s(d + 1), s(base + 1)))
        else:
            self("s_add_u32 %s, %s, %s" % (s(d), s(base), add)); self("s_addc_u32 %s, %s, 0" % (s(d + 1), s(base + 1)))
        self("s_mov_b32 %s, %s" % (s(d + 2), size if isinstance(size, str) else hx(size))); self("s_mov_b32 %s, 0x20000" % s(d + 3))
    def red_dpp(self, op, rs, ctrls):
        for ct in ctrls:
            self.nop(max(0, 2 - (len(rs) - 1)))
            for r in rs: self("%s_dpp %s, %s, %s %s row_mask:0xf bank_mask:0xf" % (op, v(r), v(r), v(r), ct))
    def red_swap(self, op, rs, ts):
        for sw in ("v_permlane16_swap_b32", "v_permlane32_swap_b32"):
            for r, t in zip(rs, ts): self("v_mov_b32 %s, %s" % (v(t), v(r)))
            self.nop(max(0, 2 - (len(rs) - 1)))
            for r, t in zip(rs, ts): self("%s %s, %s" % (sw, v(t), v(r)))
            for r, t in zip(rs, ts): self("%s %s, %s, %s" % (op, v(r), v(t), v(r)))
    def red_wave(self, op, rs, ts):
        self.red_dpp(op, rs, ["quad_perm:[1,0,3,2]", "quad_perm:[2,3,0,1]", "row_half_mirror", "row_mirror"])
        self.red_swap(op, rs, ts)
    def tswap(self, sw, pairs):
        self.nop(2)
        for a, b in pairs: self("%s %s, %s" % (sw, v(a), v(b)))
        for a, b in pairs: self("v_add_f32 %s, %s, %s" % (v(a), v(a), v(b)))
    def rbf(self, pairs, t):
        for a, b in pairs:
            self("v_cvt_pk_bf16_f32 %s, %s, %s" % (v(t), v(a), v(b)))
            self("v_lshlrev_b32 %s, 16, %s" % (v(a), v(t)))
            if b != a: self("v_and_b32 %s, 0xffff0000, %s" % (v(b), v(t)))
    def tstamp(self, i):
        if self.o["ts"] == 1: self.stamp(i)
    def poll(self, name, loads, tagregs, sleep=0, st=None, first=None, lim=0x40000):
        if lim < 0: return
        self("s_mov_b32 s31, 0x%x" % lim)
        if self.o["ack"] or first: self("s_waitcnt vmcnt(0)")
        if st is not None: self.tstamp(st)
        if first:
            for l in loads + first: self(l)
            self("s_branch %s_w" % name)
        self.lab(name)
        for l in loads: self(l)
        if first: self.lab(name + "_w")
        self("s_waitcnt vmcnt(0)")
        self("v_cmp_ne_u32 vcc, s30, %s" % v(tagregs[0]))
        for k, t in enumerate(tagregs[1:]):
            self("v_cmp_ne_u32 %s, s30, %s" % (s(96 + 2 * (k & 1), 2), v(t)))
            if k & 1 or k == len(tagregs) - 2:
                for kk in range(k & ~1, k + 1): self("s_or_b64 vcc, vcc, %s" % s(96 + 2 * (kk & 1), 2))
        self("s_cbranch_vccz %s_done" % name)
        if sleep: self("s_sleep %d" % sleep)
        self("s_sub_u32 s31, s31, 1")
        self("s_cbranch_scc0 %s" % name)
        self.lab(name + "_done")

def gen(**opts):
    g = G(**opts); o = g.o
    CS1 = 8192 + o["pad1"]; CS2 = 4096 + o["pad2"]; CSA = 8192 + 128; CSB = 512 + 128
    g("s_cmp_ge_u32 s2, 256")
    g("s_cbranch_scc1 L_end")
    g("s_load_dwordx16 s[32:47], s[0:1], 0")
    g("s_load_dwordx8 s[48:55], s[0:1], 64")
    g.stamp(0)
    g("v_lshrrev_b32 v1, 6, v0")
    g("v_and_b32 v0, 63, v0")
    g("v_readfirstlane_b32 s24, v1")
    g("s_lshr_b32 s25, s2, 5")
    g("s_and_b32 s26, s2, 31")
    g("v_lshrrev_b32 v1, 4, v0")
    g("v_and_b32 v2, 15, v0")
    g("s_lshl_b32 s28, s25, 3"); g("s_add_u32 s28, s28, s26")
    g("s_cmp_eq_u32 s24, 4")
    g("s_cbranch_scc1 L_aux")
    KS, VS, KA, VA, TK = 4, 8, 10, 14, 22
    QF, F, VF, S, P = 24, 40, 56, 72, 76
    M, LS, AL, NM, T0, T1, T2, CA = 78, 79, 80, 81, 82, 83, 84, 85
    SG = 120
    O, WO = 88, 120
    CW, MW, CR, MR, H1A, P1A, OW, OR, H2A, P2A, GR, OUTA, WS_, WR = range(184, 198)
    NV = 224
    def tail_addr():
        g("v_and_b32 v3, 3, v0")
        g("s_lshl_b32 s3, s24, 11"); g("s_add_u32 s3, s3, %d" % COMB)
        g("v_lshlrev_b32 %s, 9, v3" % v(CW)); g("v_lshl_or_b32 %s, v1, 4, %s" % (v(CW), v(CW))); g("v_add_u32 %s, s3, %s" % (v(CW), v(CW)))
        g("s_lshl_b32 s3, s24, 2"); g("s_add_u32 s3, s3, %d" % ML)
        g("v_lshl_add_u32 %s, v3, 6, s3" % v(MW))
        g("s_lshl_b32 s3, s24, 9"); g("s_add_u32 s3, s3, %d" % COMB)
        g("v_and_b32 %s, 31, v0" % v(CR)); g("v_lshl_add_u32 %s, %s, 4, s3" % (v(CR), v(CR)))
        g("s_lshl_b32 s3, s24, 6"); g("s_add_u32 s3, s3, %d" % ML); g("v_mov_b32 %s, s3" % v(MR))
        g("s_lshl_b32 s3, s25, 2"); g("s_add_u32 s3, s3, s24"); g("s_mul_i32 s3, s3, %d" % (2 * CS1))
        g("s_lshl_b32 s7, s26, 8"); g("s_add_u32 s3, s3, s7"); g("s_add_u32 s3, s3, %d" % WS_B1)
        g("v_and_b32 %s, 1, v1" % v(H1A)); g("v_mul_u32_u24 %s, %d, %s" % (v(H1A), CS1, v(H1A)))
        g("v_lshl_add_u32 %s, v2, 4, %s" % (v(H1A), v(H1A))); g("v_add_u32 %s, s3, %s" % (v(H1A), v(H1A)))
        g("s_mul_i32 s3, s28, %d" % CS1); g("s_lshl_b32 s7, s24, 6"); g("s_add_u32 s3, s3, s7"); g("s_add_u32 s3, s3, %d" % WS_B1)
        g("v_lshrrev_b32 %s, 2, v0" % v(H2A))
        g("v_lshlrev_b32 %s, 9, %s" % (v(P1A), v(H2A))); g("v_lshl_or_b32 %s, v3, 4, %s" % (v(P1A), v(P1A))); g("v_add_u32 %s, s3, %s" % (v(P1A), v(P1A)))
        g("s_lshl_b32 s3, s24, 3"); g("s_add_u32 s3, s3, %d" % OA)
        g("v_lshl_add_u32 %s, v3, 5, s3" % v(OW))
        g("v_lshlrev_b32 %s, 5, v1" % v(OR)); g("v_add_u32 %s, %d, %s" % (v(OR), OA, v(OR)))
        g("v_lshrrev_b32 %s, 2, v0" % v(WR)); g("v_and_b32 %s, 3, %s" % (v(WR + 1), v(WR)))
        g("v_lshlrev_b32 %s, 8, %s" % (v(WR), v(WR))); g("v_lshl_or_b32 %s, %s, 6, %s" % (v(WR), v(WR + 1), v(WR)))
        g("v_lshl_or_b32 %s, v3, 4, %s" % (v(WR), v(WR)))
        g("s_lshl_b32 s3, s24, 15"); g("s_add_u32 s3, s3, 0x4000"); g("v_add_u32 %s, s3, %s" % (v(WR), v(WR)))
        for a_ in range(1, 4): g("v_xor_b32 %s, %d, %s" % (v(WR + a_), 64 * a_, v(WR)))
        g("s_mul_i32 s3, s24, %d" % (16 * CS2)); g("s_lshl_b32 s7, s28, 6"); g("s_add_u32 s3, s3, s7"); g("s_add_u32 s3, s3, %d" % WS_B2)
        g("v_mul_u32_u24 %s, %d, %s" % (v(H2A), CS2, v(H2A))); g("v_lshl_add_u32 %s, v3, 4, %s" % (v(H2A), v(H2A))); g("v_add_u32 %s, s3, %s" % (v(H2A), v(H2A)))
        g("s_mul_i32 s3, s28, %d" % CS2); g("s_lshl_b32 s7, s24, 4"); g("s_add_u32 s3, s3, s7"); g("s_add_u32 s3, s3, %d" % WS_B2)
        g("v_lshl_add_u32 %s, v0, 6, s3" % v(P2A))
        g("s_lshr_b32 s3, s24, 1"); g("s_lshl_b32 s3, s3, 4"); g("s_and_b32 s7, s24, 1"); g("s_lshl_b32 s7, s7, 2")
        g("s_add_u32 s3, s3, s7"); g("s_add_u32 s3, s3, %d" % GA); g("v_mov_b32 %s, s3" % v(GR))
        g("s_lshl_b32 s3, s28, 4"); g("s_lshl_b32 s7, s24, 1"); g("s_add_u32 s3, s3, s7"); g("v_mov_b32 %s, s3" % v(OUTA))
        g("s_mov_b32 s6, %s" % hx(f2u(LOG2E)))
    g("v_xor_b32 v3, v1, v2")
    g("v_lshlrev_b32 v3, 4, v3")
    g("v_lshl_or_b32 %s, v1, 8, v3" % v(KS))
    for u in range(1, 4): g("v_xor_b32 %s, %d, %s" % (v(KS + u), 64 * u, v(KS)))
    g("v_lshlrev_b32 v3, 1, v1")
    g("v_xor_b32 v3, v3, v2")
    g("v_lshlrev_b32 v3, 4, v3")
    g("v_lshl_or_b32 %s, v1, 8, v3" % v(VS))
    g("v_xor_b32 %s, 0x80, %s" % (v(VS + 1), v(VS)))
    NP = 4; SS = o["S"]; D = o["D"]; TH = o["thr"]; N = o["N"]
    dN = o["dN"]; NC = N - dN
    assert N % 4 == 0 and 12 <= N <= 30 and SS == N + 2 and dN in (0, 2, 4)
    PA = 86
    g("s_lshl_b32 s27, s24, 12")
    g("s_mul_i32 s3, s25, %d" % o["rot"])
    g("s_add_u32 s27, s27, s3")
    g("s_lshl_b32 s5, s26, 14"); g("s_add_u32 s5, s5, s27")
    g("s_lshl_b32 s29, s24, 15")
    g("s_lshl_b32 s3, s25, 24")
    g("s_waitcnt lgkmcnt(0)")
    g.srd(8, 34, 1 << 24, "s3")
    g.srd(12, 36, 1 << 24, "s3")
    g.srd(20, 54, WS_SIZE)
    if o["b0"] == 1: g("s_barrier")
    cnt = [0]
    def throttle():
        k = cnt[0]; cnt[0] += 1
        if k >= D: g("s_waitcnt vmcnt(%d)" % (D - 1))
        return k >= D
    g("s_mov_b32 s92, s5")
    def kload(u): g("buffer_load_dwordx4 %s, s[8:11], s4 offen offset:%d nt lds" % (v(KS + u), u * 1024))
    def vload(u): g("buffer_load_dwordx4 %s, s[12:15], s4 offen offset:%d nt lds" % (v(VS + (u & 1)), u * 1024))
    for t_ in range(8):
        g("s_and_b32 s4, s5, 0xffffff")
        g("s_add_u32 m0, s29, %d" % (4096 * (t_ >> 1) + 0x4000 * (t_ & 1)))
        g("s_add_u32 s5, s5, 0x80000")
        for u in range(4):
            if cnt[0] == D:
                for n in range(32): g("v_mov_b32 %s, 0" % v(O + n))
                g("v_mov_b32 %s, 0xff7fffff" % v(M))
                g("v_mov_b32 %s, 0" % v(LS))
                tail_addr()
                g("s_mul_i32 s3, s25, %d" % NP); g("s_add_u32 s3, s3, s24"); g("s_mul_i32 s3, s3, %d" % o["cstride"]); g("s_add_u32 s3, s3, %d" % WS_CNT)
                g("v_mov_b32 v3, s3"); g("v_mov_b32 %s, 0x7ffffff0" % v(CA))
                g("v_cmp_eq_u32 vcc, 0, v0")
                g("s_and_b32 s3, s28, 63"); g("s_lshl_b32 s7, s3, 16")
                g("v_cndmask_b32 %s, %s, v3, vcc" % (v(CA), v(CA)))
                g("v_lshlrev_b32 v3, 2, v1"); g("v_xor_b32 v3, v3, v2"); g("v_lshlrev_b32 v3, 4, v3")
                g("v_lshl_or_b32 v3, v1, 10, v3"); g("s_lshl_b32 s3, s24, 8"); g("v_add_u32 %s, s3, v3" % v(WS_))
                g.srd(44, 40, 65536, "s7")
                g.srd(16, 50, 1024)
                g("v_and_b32 v3, 3, v0"); g("v_lshlrev_b32 v3, 5, v3"); g("v_lshl_or_b32 v3, v1, 3, v3")
                g("s_lshl_b32 s3, s24, 12"); g("s_add_u32 s3, s3, %d" % STAGE); g("v_add_u32 %s, s3, v3" % v(PA))
            throttle()
            kload(u)
        if t_ == 0:
            g("v_xor_b32 v3, v1, v2")
            g("v_lshlrev_b32 v3, 4, v3")
            g("v_lshl_or_b32 v3, v2, 8, v3")
            g("v_add_u32 %s, s29, v3" % v(KA))
            for k in range(1, 4): g("v_xor_b32 %s, %d, %s" % (v(KA + k), 64 * k, v(KA)))
            g("v_lshrrev_b32 v3, 2, v0")
            g("v_and_b32 %s, 7, v3" % v(T0))
            g("v_lshlrev_b32 %s, 5, %s" % (v(T0), v(T0)))
            g("v_lshl_or_b32 v3, v3, 8, %s" % v(T0))
            g("v_and_b32 %s, 3, v0" % v(T0))
            g("v_lshl_or_b32 v3, %s, 3, v3" % v(T0))
            g("v_add_u32 %s, s29, v3" % v(VA))
            for n in range(1, 8): g("v_xor_b32 %s, %d, %s" % (v(VA + n), 32 * n, v(VA)))
            if o["b0"] >= 2: g("s_barrier")
    g("v_and_b32 v3, 3, v0")
    g("v_lshlrev_b32 v3, 8, v3")
    g("v_lshl_or_b32 v3, v1, 4, v3")
    g("v_add_u32 v3, %d, v3" % QA)
    g("v_mov_b32 %s, %d" % (v(T2), TAGA))
    g("s_mov_b32 s56, %s" % hx(f2u(128.0 ** -0.5))); g("s_mov_b32 s57, s56")
    g("s_mov_b32 s58, 0")
    g("s_mov_b32 s59, s29")
    g("s_mov_b32 s63, 4")
    def tm(n): return (((1 << n) - 1) << (n - 8)) | (0b1010 << (2 * n - 8))
    g("s_mov_b32 s40, %s" % hx(tm(N))); g("s_mov_b32 s41, %s" % hx(tm(N) >> 32))
    g("s_cmp_lt_u32 s26, 8")
    g("s_cselect_b32 s61, %d, %d" % (NC, N))
    g("s_cselect_b32 s40, %s, s40" % hx(tm(NC))); g("s_cselect_b32 s41, %s, s41" % hx(tm(NC) >> 32))
    g("s_mov_b32 s60, s61")
    g("s_and_b32 s62, s61, 2"); g("s_lshl_b32 s62, s62, 12")
    if dN & 2:
        for n in range(8): g("v_xor_b32 %s, s62, %s" % (v(VA + n), v(VA + n)))
    g("s_mov_b32 s95, s61")
    if o["sprio"]: g("s_setprio %d" % o["sprio"])
    g.stamp(1)
    g("s_mov_b32 s31, 0x400000")
    g.lab("L_wq")
    g("ds_read_b64 %s, %s" % (v(T0, 2), v(T2)))
    g("s_waitcnt lgkmcnt(0)")
    g("v_readfirstlane_b32 s3, %s" % v(T1))
    g("v_readfirstlane_b32 s30, %s" % v(T0))
    g("s_cmp_lg_u32 s3, 0")
    g("s_cbranch_scc1 L_wq_done")
    if o["qsleep"]: g("s_sleep %d" % o["qsleep"])
    g("s_sub_u32 s31, s31, 1")
    g("s_cbranch_scc0 L_wq")
    g.lab("L_wq_done")
    for k in range(4): g("ds_read_b128 %s, v3 offset:%d" % (v(QF + 4 * k, 4), 64 * k))
    g.stamp(2)
    g("s_waitcnt lgkmcnt(0)")
    def refill(nm, th, atomic):
        g("s_bitcmp1_b32 s40, 0")
        g("s_cbranch_scc1 L_%sv" % nm)
        g("s_and_b32 s4, s5, 0xffffff"); g("s_add_u32 s5, s5, 0x80000")
        th = [th] * 4 if th < 10 else [int(c) for c in str(th)]
        for u in range(4): g("s_waitcnt vmcnt(%d)" % (th[u] - 1)); kload(u)
        g("s_branch L_%sd" % nm)
        g.lab("L_%sv" % nm)
        g("s_and_b32 s4, s92, 0xffffff"); g("s_add_u32 s92, s92, 0x80000")
        if atomic:
            g("s_cmp_lg_u64 s[40:41], 1")
            g("s_cbranch_scc1 L_%sn" % nm)
            g("v_mov_b32 %s, 1" % v(TK))
            g("buffer_atomic_add %s, %s, s[20:23], 0 offen sc0" % (v(TK), v(CA)))
            g.lab("L_%sn" % nm)
        for u in range(4): g("s_waitcnt vmcnt(%d)" % (th[u] - 1)); vload(u)
        g.lab("L_%sd" % nm)
        g("s_lshr_b64 s[40:41], s[40:41], 1")
    def unpack(a, b):
        g("v_lshlrev_b32 %s, 16, %s" % (v(S), v(a))); g("v_and_b32 %s, 0xffff0000, %s" % (v(S + 1), v(a)))
        g("v_lshlrev_b32 %s, 16, %s" % (v(S + 2), v(b))); g("v_and_b32 %s, 0xffff0000, %s" % (v(S + 3), v(b)))
    def midstamp(i, c):
        if o["ts"] == 2:
            g("s_cmp_lg_u32 s60, %d" % c); g("s_cbranch_scc1 L_ts%d" % i); g.stamp(i); g("s_waitcnt lgkmcnt(0)"); g.lab("L_ts%d" % i)
    g.lab("L_a")
    g("s_waitcnt vmcnt(12)")
    for k in range(4): g("ds_read_b128 %s, %s" % (v(F + 4 * k, 4), v(KA + k)))
    midstamp(8, N - 12)
    g("s_mov_b32 m0, s59")
    g("s_cmp_lg_u32 s58, 0")
    for k in range(4):
        g("s_waitcnt lgkmcnt(%d)" % (3 - k))
        g("v_mfma_f32_16x16x32_bf16 %s, %s, %s, %s" % (v(S, 4), v(F + 4 * k, 4), v(QF + 4 * k, 4), "0" if k == 0 else v(S, 4)))
    g("s_cbranch_scc1 L_aw")
    refill("a", o["thk"] or TH, False)
    g.lab("L_ai")
    g("s_add_u32 s3, s59, 0x1000"); g("s_xor_b32 s3, s3, s59"); g("s_and_b32 s3, s3, 0x3000")
    g("s_lshl_b32 s7, s58, 14"); g("s_or_b32 s3, s3, s7")
    g("s_cmp_lg_u32 s63, s58")
    g("s_cselect_b32 s7, 1, 0"); g("s_sub_u32 s63, s63, s58"); g("s_andn2_b32 s58, s7, s58")
    g("s_cselect_b32 s3, 0x4000, s3")
    g("v_cvt_pk_bf16_f32 %s, %s, %s" % (v(T0), v(S), v(S + 1)))
    g("v_cvt_pk_bf16_f32 %s, %s, %s" % (v(T1), v(S + 2), v(S + 3)))
    unpack(T0, T1)
    g("v_pk_mul_f32 %s, %s, s[56:57]" % (v(S, 2), v(S, 2)))
    g("v_pk_mul_f32 %s, %s, s[56:57]" % (v(S + 2, 2), v(S + 2, 2)))
    for k in range(4): g("v_xor_b32 %s, s3, %s" % (v(KA + k), v(KA + k)))
    g("v_cvt_pk_bf16_f32 %s, %s, %s" % (v(T0), v(S), v(S + 1)))
    g("v_cvt_pk_bf16_f32 %s, %s, %s" % (v(T1), v(S + 2), v(S + 3)))
    g("v_max3_f32 %s, %s, %s, %s" % (v(M), v(S), v(S + 1), v(M)))
    g("v_max3_f32 %s, %s, %s, %s" % (v(M), v(S + 2), v(S + 3), v(M)))
    g("s_mov_b32 exec_lo, 0x000f000f"); g("s_mov_b32 exec_hi, 0x000f000f")
    g("ds_write_b64 %s, %s" % (v(PA), v(T0, 2)))
    g("s_mov_b64 exec, -1")
    g("s_xor_b32 s59, s59, s3")
    g("v_add_u32 %s, 128, %s" % (v(PA), v(PA)))
    g("s_sub_u32 s60, s60, 1")
    g("s_cmp_lg_u32 s60, 0")
    g("s_cbranch_scc1 L_a")
    if o["ts"] == 2: g.stamp(9)
    g.red_swap("v_max_f32", [M], [T1])
    g("s_lshl_b32 s3, s61, 7")
    g("v_subrev_u32 %s, s3, %s" % (v(PA), v(PA)))
    g("v_cvt_pk_bf16_f32 %s, %s, %s" % (v(M), v(M), v(M)))
    g("s_mov_b32 s60, s61")
    if dN & 2:
        for k in range(4): g("v_xor_b32 %s, s62, %s" % (v(KA + k), v(KA + k)))
    g("v_lshlrev_b32 %s, 16, %s" % (v(M), v(M)))
    g("v_mul_f32 %s, s6, %s" % (v(NM), v(M)))
    g.lab("L_c")
    g("ds_read_b64 %s, %s" % (v(T0, 2), v(PA)))
    g("s_waitcnt vmcnt(12)")
    for n in range(8): g("ds_read_b64_tr_b16 %s, %s" % (v(VF + 2 * n, 2), v(VA + n)))
    midstamp(10, N // 2)
    g("s_mov_b32 m0, s59")
    g("s_add_u32 s3, s59, 0x1000"); g("s_xor_b32 s3, s3, s59"); g("s_and_b32 s3, s3, 0x3000")
    g("s_xor_b32 s59, s59, s3")
    g("v_add_u32 %s, 128, %s" % (v(PA), v(PA)))
    g("s_waitcnt lgkmcnt(8)")
    unpack(T0, T1)
    for e in range(4): g("v_fma_f32 %s, %s, s6, -%s" % (v(S + e), v(S + e), v(NM)))
    for e in range(4): g("v_exp_f32 %s, %s" % (v(S + e), v(S + e)))
    for n in range(8): g("v_xor_b32 %s, s3, %s" % (v(VA + n), v(VA + n)))
    g("v_cvt_pk_bf16_f32 %s, %s, %s" % (v(P), v(S), v(S + 1)))
    g("v_cvt_pk_bf16_f32 %s, %s, %s" % (v(P + 1), v(S + 2), v(S + 3)))
    g("v_add_f32 %s, %s, %s" % (v(T0), v(S), v(S + 1)))
    g("v_add_f32 %s, %s, %s" % (v(T1), v(S + 2), v(S + 3)))
    g("v_add_f32 %s, %s, %s" % (v(LS), v(LS), v(T0)))
    g("v_add_f32 %s, %s, %s" % (v(LS), v(LS), v(T1)))
    for n in range(8):
        g("s_waitcnt lgkmcnt(%d)" % (7 - n))
        g("v_mfma_f32_16x16x16_bf16 %s, %s, %s, %s" % (v(O + 4 * n, 4), v(VF + 2 * n, 2), v(P, 2), v(O + 4 * n, 4)))
    refill("c", o["thv"] or TH, True)
    g("s_sub_u32 s60, s60, 1")
    g("s_cmp_lg_u32 s60, 0")
    g("s_cbranch_scc1 L_c")
    if o["ts"] == 2: g.stamp(11)
    g.lab("L_loop")
    g("s_cmp_lg_u32 s58, 0")
    g("s_cbranch_scc1 L_k")
    g("s_waitcnt vmcnt(12)")
    g.lab("L_k")
    for k in range(4): g("ds_read_b128 %s, %s" % (v(F + 4 * k, 4), v(KA + k)))
    if o["stamps"]: g("s_add_u32 s95, s95, 1")
    g("s_mov_b32 m0, s59")
    g("s_cmp_lg_u32 s58, 0")
    for k in range(4):
        g("s_waitcnt lgkmcnt(%d)" % (3 - k))
        g("v_mfma_f32_16x16x32_bf16 %s, %s, %s, %s" % (v(S, 4), v(F + 4 * k, 4), v(QF + 4 * k, 4), "0" if k == 0 else v(S, 4)))
    g("s_cbranch_scc1 L_ki")
    g("s_waitcnt vmcnt(4)")
    g("v_readfirstlane_b32 s3, %s" % v(TK))
    if dN:
        g("s_and_b32 s7, s3, 7"); g("s_lshr_b32 s4, s3, 3"); g("s_lshl_b32 s4, s4, 5"); g("s_add_u32 s7, s7, s4"); g("s_add_u32 s7, s7, %d" % (32 * (SS - dN)))
        g("s_add_u32 s4, s3, %d" % (32 * SS - 8 * dN))
        g("s_cmp_lt_u32 s3, %d" % (8 * dN))
        g("s_cselect_b32 s3, s7, s4")
    else:
        g("s_add_u32 s3, s3, %d" % (32 * SS))
    g("s_cmp_ge_u32 s3, 1024")
    g("s_cbranch_scc1 L_last")
    g("s_lshl_b32 s3, s3, 14")
    g("s_add_u32 s3, s3, s27")
    g("s_and_b32 s4, s3, 0xffffff")
    DT = o["dynthr"]
    for u in range(4):
        if u + 4 > DT - 1: g("s_waitcnt vmcnt(%d)" % (DT - 1))
        kload(u)
    g.lab("L_ki")
    g.nop(7)
    if o["round"]:
        g("v_cvt_pk_bf16_f32 %s, %s, %s" % (v(T0), v(S), v(S + 1)))
        g("v_cvt_pk_bf16_f32 %s, %s, %s" % (v(T1), v(S + 2), v(S + 3)))
        g("v_lshlrev_b32 %s, 16, %s" % (v(S), v(T0))); g("v_and_b32 %s, 0xffff0000, %s" % (v(S + 1), v(T0)))
        g("v_lshlrev_b32 %s, 16, %s" % (v(S + 2), v(T1))); g("v_and_b32 %s, 0xffff0000, %s" % (v(S + 3), v(T1)))
    g("v_pk_mul_f32 %s, %s, s[56:57]" % (v(S, 2), v(S, 2)))
    g("v_pk_mul_f32 %s, %s, s[56:57]" % (v(S + 2, 2), v(S + 2, 2)))
    if o["round"]:
        g("v_cvt_pk_bf16_f32 %s, %s, %s" % (v(T0), v(S), v(S + 1)))
        g("v_cvt_pk_bf16_f32 %s, %s, %s" % (v(T1), v(S + 2), v(S + 3)))
        g("v_lshlrev_b32 %s, 16, %s" % (v(S), v(T0))); g("v_and_b32 %s, 0xffff0000, %s" % (v(S + 1), v(T0)))
        g("v_lshlrev_b32 %s, 16, %s" % (v(S + 2), v(T1))); g("v_and_b32 %s, 0xffff0000, %s" % (v(S + 3), v(T1)))
    g("v_max3_f32 %s, %s, %s, %s" % (v(T0), v(S), v(S + 1), v(S + 2)))
    g("v_max3_f32 %s, %s, %s, %s" % (v(T0), v(T0), v(S + 3), v(M)))
    g("v_cmp_gt_f32 vcc, %s, %s" % (v(T0), v(M)))
    g("s_cbranch_vccz L_ns")
    g.red_swap("v_max_f32", [T0], [T1])
    g("v_sub_f32 %s, %s, %s" % (v(AL), v(M), v(T0)))
    g("v_mul_f32 %s, s6, %s" % (v(NM), v(T0)))
    g("v_mul_f32 %s, s6, %s" % (v(AL), v(AL)))
    g("v_exp_f32 %s, %s" % (v(AL), v(AL)))
    g("v_mov_b32 %s, %s" % (v(M), v(T0)))
    g("v_mul_f32 %s, %s, %s" % (v(LS), v(AL), v(LS)))
    for n in range(32): g("v_mul_f32 %s, %s, %s" % (v(O + n), v(AL), v(O + n)))
    g.lab("L_ns")
    for e in range(4): g("v_fma_f32 %s, %s, s6, -%s" % (v(S + e), v(S + e), v(NM)))
    for e in range(4): g("v_exp_f32 %s, %s" % (v(S + e), v(S + e)))
    g("s_cmp_lg_u32 s58, 0")
    g("v_cvt_pk_bf16_f32 %s, %s, %s" % (v(P), v(S), v(S + 1)))
    g("v_cvt_pk_bf16_f32 %s, %s, %s" % (v(P + 1), v(S + 2), v(S + 3)))
    g("s_cbranch_scc1 L_vw")
    g("s_waitcnt vmcnt(12)")
    g.lab("L_v")
    for n in range(8): g("ds_read_b64_tr_b16 %s, %s offset:4096" % (v(VF + 2 * n, 2), v(VA + n)))
    g("s_add_u32 m0, s59, 4096")
    g("v_add_f32 %s, %s, %s" % (v(T0), v(S), v(S + 1)))
    g("v_add_f32 %s, %s, %s" % (v(T1), v(S + 2), v(S + 3)))
    g("v_add_f32 %s, %s, %s" % (v(LS), v(LS), v(T0)))
    g("v_add_f32 %s, %s, %s" % (v(LS), v(LS), v(T1)))
    g("s_cmp_lg_u32 s58, 0")
    for n in range(8):
        g("s_waitcnt lgkmcnt(%d)" % (7 - n))
        g("v_mfma_f32_16x16x16_bf16 %s, %s, %s, %s" % (v(O + 4 * n, 4), v(VF + 2 * n, 2), v(P, 2), v(O + 4 * n, 4)))
    g("s_cbranch_scc1 L_vs")
    g("v_mov_b32 %s, 1" % v(TK))
    g("buffer_atomic_add %s, %s, s[20:23], 0 offen sc0" % (v(TK), v(CA)))
    for u in range(4):
        g("s_waitcnt vmcnt(%d)" % DT)
        vload(u)
    g("s_movk_i32 s3, 0x2000")
    g.lab("L_sw")
    for r in list(range(KA, KA + 4)) + list(range(VA, VA + 8)): g("v_xor_b32 %s, s3, %s" % (v(r), v(r)))
    g("s_xor_b32 s59, s59, s3")
    g("s_branch L_loop")
    g.lab("L_aw")
    g("s_cmp_ge_u32 s26, %d" % (0 if o["nowo"] or o["womode"] == 4 else 8))
    g("s_cbranch_scc1 L_ai")
    g("s_bfe_u32 s4, s59, 0x2000c")
    if o["womode"]:
        g("s_cmp_ge_u32 s4, %d" % (4 - o["womode"])); g("s_cbranch_scc1 L_ai")
    g("s_lshl_b32 s4, s4, 14")
    for u in range(4):
        if u: g("s_add_u32 s4, s4, 3072")
        g("s_waitcnt vmcnt(%d)" % (int(str(o["thw"])[u]) - 1))
        g("buffer_load_dwordx4 %s, s[44:47], s4 offen offset:%d nt lds" % (v(WS_), u * 1024))
    g("s_branch L_ai")
    g.lab("L_last")
    g("s_mov_b32 s58, 1"); g("s_mov_b32 s60, 1")
    g("s_branch L_ki")
    g.lab("L_vw")
    g("s_cmp_lg_u32 s60, 2")
    g("s_cbranch_scc1 L_v")
    g("s_waitcnt vmcnt(0)")
    g("s_branch L_v")
    g.lab("L_vs")
    g("s_movk_i32 s3, 0x2000")
    g("s_cmp_eq_u32 s60, 1")
    g("s_mov_b32 s60, 2")
    g("s_cbranch_scc1 L_sw")
    def wo_late(lab):
        g("s_cmp_ge_u32 s26, 8")
        g("s_cbranch_scc1 %s" % lab)
        for p in range(4 - o["womode"], 4):
            g("s_add_u32 m0, s29, %d" % (0x4000 + 4096 * p))
            for u in range(4):
                g("s_mov_b32 s4, %d" % (16384 * p + 3072 * u))
                g("buffer_load_dwordx4 %s, s[44:47], s4 offen offset:%d nt lds" % (v(WS_), u * 1024))
    if o["womode"] and o["wopos"] == 0: wo_late("L_tail")
    g.lab("L_tail")
    g.stamp(3)
    g.red_swap("v_add_f32", [LS], [T1])
    g("s_mov_b32 exec_lo, 0x000f000f"); g("s_mov_b32 exec_hi, 0x000f000f")
    for n in range(8): g("ds_write_b128 %s, %s offset:%d" % (v(CW), v(O + 4 * n, 4), 64 * n))
    g("ds_write2_b32 %s, %s, %s offset0:0 offset1:8" % (v(MW), v(M), v(LS)))
    g("s_mov_b64 exec, -1")
    g("s_cmp_eq_u32 s24, 4")
    g("s_waitcnt lgkmcnt(0)")
    g("s_cbranch_scc1 L_nb2")
    g("s_barrier")
    if o["womode"] and o["wopos"] == 1: wo_late("L_nb2")
    g.lab("L_nb2")
    g.stamp(4)
    A = 24
    g("ds_read_b128 %s, %s" % (v(A, 4), v(MR)))
    g("ds_read_b128 %s, %s offset:32" % (v(A + 4, 4), v(MR)))
    for w in range(4): g("ds_read_b128 %s, %s offset:%d" % (v(A + 8 + 4 * w, 4), v(CR), 2048 * w))
    GG = 4
    g("ds_read2_b32 %s, %s offset0:0 offset1:8" % (v(GG, 2), v(GR)))
    g("ds_read2_b32 %s, %s offset0:2 offset1:10" % (v(GG + 2, 2), v(GR)))
    R = 48
    g("v_mov_b32 %s, s30" % v(R + 3))
    g("s_waitcnt lgkmcnt(7)")
    g("v_max3_f32 %s, %s, %s, %s" % (v(T0), v(A), v(A + 1), v(A + 2)))
    g("v_max_f32 %s, %s, %s" % (v(T0), v(T0), v(A + 3)))
    for w in range(4): g("v_sub_f32 %s, %s, %s" % (v(A + w), v(A + w), v(T0)))
    for w in range(4): g("v_mul_f32 %s, s6, %s" % (v(A + w), v(A + w)))
    for w in range(4): g("v_exp_f32 %s, %s" % (v(A + w), v(A + w)))
    g("s_waitcnt lgkmcnt(5)")
    g("v_mul_f32 %s, %s, %s" % (v(T1), v(A), v(A + 4)))
    for w in range(1, 4): g("v_fmac_f32 %s, %s, %s" % (v(T1), v(A + w), v(A + 4 + w)))
    for e in range(4): g("v_mul_f32 %s, %s, %s" % (v(A + 8 + e), v(A), v(A + 8 + e)))
    g("v_rcp_f32 %s, %s" % (v(T2), v(T1)))
    g("v_log_f32 %s, %s" % (v(R + 2), v(T1)))
    for w in range(1, 4):
        g("s_waitcnt lgkmcnt(%d)" % (5 - w))
        for e in range(4): g("v_fmac_f32 %s, %s, %s" % (v(A + 8 + e), v(A + w), v(A + 8 + 4 * w + e)))
    g("v_fmac_f32 %s, s6, %s" % (v(R + 2), v(T0)))
    for e in range(4): g("v_mul_f32 %s, %s, %s" % (v(A + 8 + e), v(T2), v(A + 8 + e)))
    g("v_cvt_pk_bf16_f32 %s, %s, %s" % (v(R), v(A + 8), v(A + 9)))
    g("v_cvt_pk_bf16_f32 %s, %s, %s" % (v(R + 1), v(A + 10), v(A + 11)))
    g("s_mov_b32 exec_hi, 0")
    if o["tailmode"] == 2: g("s_mov_b32 exec_lo, 0x00ff00ff")
    if o["tailmode"] == 3: g("s_mov_b32 exec_lo, 0x000f000f")
    if o["tailmode"] != 1: g("buffer_store_dwordx4 %s, %s, s[20:23], 0 offen sc1" % (v(R, 4), v(H1A)))
    if o["tailmode"] >= 2: g("s_mov_b32 exec_lo, -1")
    g("s_mov_b32 exec_hi, -1")
    g.tstamp(8)
    if o["ts"] == 1:
        for i in (9, 10, 11, 12, 13): g.stamp(i)
    g("s_cmp_ge_u32 s26, 8")
    g("s_cbranch_scc1 L_fin")
    B = 56
    g.poll("L_p1", ["buffer_load_dwordx4 %s, %s, s[20:23], 0 offen offset:%d sc1" % (v(B + 4 * u, 4), v(P1A), 256 * u) for u in range(2)],
           [B + 3, B + 7], st=9, lim=(0 if o["tailmode"] else 0x40000),
           first=["ds_read_b64_tr_b16 %s, %s offset:%d" % (v(WO + 16 * t + 2 * n, 2), v(WR + (n >> 1)), 4096 * t + 8 * (n & 1)) for t in range(4) for n in range(8)])
    g.stamp(5)
    g("v_max_f32 %s, %s, %s" % (v(T0), v(B + 2), v(B + 6)))
    U = 64
    for u in range(2):
        for e in range(2):
            g("v_lshlrev_b32 %s, 16, %s" % (v(U + 4 * u + 2 * e), v(B + 4 * u + e)))
            g("v_and_b32 %s, 0xffff0000, %s" % (v(U + 4 * u + 2 * e + 1), v(B + 4 * u + e)))
    g.red_dpp("v_max_f32", [T0], ["row_ror:4", "row_ror:8"])
    g.red_swap("v_max_f32", [T0], [T1])
    for u in range(2): g("v_sub_f32 %s, %s, %s" % (v(B + 4 * u + 2), v(B + 4 * u + 2), v(T0)))
    for u in range(2): g("v_exp_f32 %s, %s" % (v(B + 4 * u + 2), v(B + 4 * u + 2)))
    g("s_nop 0")
    for e in range(4): g("v_mul_f32 %s, %s, %s" % (v(U + e), v(B + 2), v(U + e)))
    g("v_add_f32 %s, %s, %s" % (v(B), v(B + 2), v(B + 6)))
    for e in range(4): g("v_fmac_f32 %s, %s, %s" % (v(U + e), v(B + 6), v(U + 4 + e)))
    rs = [B, U, U + 1, U + 2, U + 3]
    g.red_dpp("v_add_f32", rs, ["row_ror:4", "row_ror:8"])
    g.red_swap("v_add_f32", rs, [B + 1, U + 4, U + 5, U + 6, U + 7])
    g("v_rcp_f32 %s, %s" % (v(B), v(B)))
    g("s_cmp_eq_u32 s24, 4")
    for e in range(4): g("v_mul_f32 %s, %s, %s" % (v(U + e), v(B), v(U + e)))
    g("v_cvt_pk_bf16_f32 %s, %s, %s" % (v(U), v(U), v(U + 1)))
    g("v_cvt_pk_bf16_f32 %s, %s, %s" % (v(U + 1), v(U + 2), v(U + 3)))
    g("s_mov_b64 exec, 15")
    g("ds_write_b64 %s, %s" % (v(OW), v(U, 2)))
    g("s_mov_b64 exec, -1")
    AC, AX = 48, 40
    def acc(n): return AC + n if n < 2 else AX + n
    g("v_mov_b32 %s, 0" % v(AC + 2))
    g("s_waitcnt lgkmcnt(0)")
    g.tstamp(10)
    g("s_cbranch_scc1 L_nb3")
    g("s_barrier")
    g.lab("L_nb3")
    g.tstamp(11)
    g("ds_read_b128 %s, %s" % (v(U, 4), v(OR)))
    g("ds_read_b128 %s, %s offset:16" % (v(U + 4, 4), v(OR)))
    for t in range(4):
        if t % 2 == 0: g("s_waitcnt lgkmcnt(%d)" % (1 - t // 2))
        for hh in range(2):
            for n in range(8):
                g("v_dot2_f32_bf16 %s, %s, %s, %s" % (v(acc(n)), v(WO + 16 * t + 2 * n + hh), v(U + 2 * t + hh), "0" if t == 0 and hh == 0 else v(acc(n))))
    g.tswap("v_permlane32_swap_b32", [(acc(n), acc(n + 4)) for n in range(4)])
    g.tswap("v_permlane16_swap_b32", [(acc(n), acc(n + 2)) for n in range(2)])
    g("buffer_store_dwordx4 %s, %s, s[20:23], 0 offen sc1" % (v(AC, 4), v(H2A)))
    g.tstamp(12)
    g.poll("L_p2", ["buffer_load_dwordx4 %s, %s, s[20:23], 0 offen sc1" % (v(B, 4), v(P2A))], [B + 3], st=13, lim=(0 if o["tailmode"] else 0x40000))
    g.stamp(6)
    R0, R1 = B, B + 1
    g.red_wave("v_add_f32", [R0, R1], [T0, T1])
    g.rbf([(R0, R1)], T0)
    g("v_mul_f32 %s, %s, %s" % (v(R0), v(R0), v(GG)))
    g("v_mul_f32 %s, %s, %s" % (v(R1), v(R1), v(GG + 1)))
    g.rbf([(R0, R1)], T0)
    g("v_add_f32 %s, %s, %s" % (v(R0), v(R0), v(GG + 2)))
    g("v_add_f32 %s, %s, %s" % (v(R1), v(R1), v(GG + 3)))
    g("v_cvt_pk_bf16_f32 %s, %s, %s" % (v(R0), v(R0), v(R1)))
    g("s_mov_b64 exec, 1")
    g("buffer_store_short %s, %s, s[16:19], 0 offen" % (v(R0), v(OUTA)))
    g("buffer_store_short_d16_hi %s, %s, s[16:19], 0 offen offset:8" % (v(R0), v(OUTA)))
    g("s_or_b32 s3, s2, s24")
    g("s_cbranch_scc1 L_noep")
    g("buffer_store_dword %s, off, s[20:23], 0 offset:%d sc1" % (v(AC + 3), WS_EPOCH))
    g.lab("L_noep")
    g("s_mov_b64 exec, -1")
    if o["stamps"]:
        g("s_branch L_fin2")
    g.lab("L_fin")
    if o["stamps"]:
        g.stamp(5); g.stamp(6)
        g.lab("L_fin2")
        g.stamp(7)
        g("s_cmp_lg_u32 s24, %d" % o["sw"])
        g("s_cbranch_scc1 L_fin3")
        g.write_stamps([0, 1, 2, 3, 4, 5, 6, 7] + ([8, 9, 10, 11, 12, 13] if o["ts"] in (1, 2) else []))
        g.lab("L_fin3")
    g("s_waitcnt vmcnt(0)")
    g("s_endpgm")

    g.lab("L_aux")
    if o["auxprio"]: g("s_setprio %d" % o["auxprio"])
    X, XF, TT = 4, 8, 16
    g("v_lshlrev_b32 v3, 4, v0")
    if o["wqrot"]: g("s_add_u32 s3, s26, s25"); g("s_and_b32 s3, s3, 7")
    else: g("s_and_b32 s3, s26, 7")
    g("s_lshl_b32 s3, s3, 6")
    g("s_lshr_b32 s7, s26, 3"); g("s_lshl_b32 s7, s7, 4"); g("s_add_u32 s27, s3, s7")
    g("s_lshl_b32 s3, s25, 9"); g("s_add_u32 s3, s3, s27"); g("s_lshl_b32 s3, s3, 1")
    g("v_lshrrev_b32 %s, 1, v0" % v(TT)); g("v_lshlrev_b32 %s, 13, %s" % (v(TT), v(TT)))
    g("v_and_b32 %s, 1, v0" % v(TT + 1)); g("v_lshl_or_b32 %s, %s, 4, %s" % (v(TT), v(TT + 1), v(TT)))
    g("v_add_u32 %s, s3, %s" % (v(TT), v(TT)))
    RS = o["RS"]
    if RS > 1:
        assert o["ffnlate"] and o["wqmode"] == 0
        lg = RS.bit_length() - 1
        g("s_and_b32 s3, s26, 7"); g("s_lshl_b32 s27, s3, 6")
        g("s_lshr_b32 s63, s26, 3")
        if RS == 2:
            g("s_and_b32 s7, s63, 1"); g("s_lshl_b32 s7, s7, 5"); g("s_add_u32 s27, s27, s7"); g("s_lshr_b32 s63, s63, 1")
        g("s_lshl_b32 s3, s25, 9"); g("s_add_u32 s3, s3, s27"); g("s_lshl_b32 s3, s3, 1")
        g("s_lshl_b32 s7, s63, %d" % (22 - lg)); g("s_add_u32 s3, s3, s7")
        g("v_lshrrev_b32 %s, %d, v0" % (v(TT), 1 + lg)); g("v_lshlrev_b32 %s, 13, %s" % (v(TT), v(TT)))
        g("v_and_b32 %s, %d, v0" % (v(TT + 1), 2 * RS - 1))
        if RS == 2: g("v_lshrrev_b32 %s, 4, v0" % v(TT + 8)); g("v_and_b32 %s, 2, %s" % (v(TT + 8), v(TT + 8)))
        else: g("v_lshrrev_b32 %s, 3, v0" % v(TT + 8)); g("v_and_b32 %s, 2, %s" % (v(TT + 8), v(TT + 8)))
        g("v_xor_b32 %s, %s, %s" % (v(TT + 1), v(TT + 1), v(TT + 8)))
        g("v_lshl_or_b32 %s, %s, 4, %s" % (v(TT), v(TT + 1), v(TT)))
        g("v_add_u32 %s, s3, %s" % (v(TT), v(TT)))
        if RS == 4: g("v_xor_b32 %s, 64, %s" % (v(TT + 8), v(TT)))
    if o["wqmode"] == 1:
        g("s_lshl_b32 s3, s2, 14"); g("v_add_u32 %s, s3, v3" % v(TT))
    if o["wqmode"] == 2:
        g("s_and_b32 s3, s2, 63"); g("s_lshl_b32 s3, s3, 7"); g("s_lshr_b32 s7, s2, 6"); g("s_lshl_b32 s7, s7, 20"); g("s_add_u32 s3, s3, s7")
        g("v_lshrrev_b32 %s, 3, v0" % v(TT)); g("v_lshlrev_b32 %s, 13, %s" % (v(TT), v(TT)))
        g("v_and_b32 %s, 7, v0" % v(TT + 1)); g("v_lshl_or_b32 %s, %s, 4, %s" % (v(TT), v(TT + 1), v(TT)))
        g("v_add_u32 %s, s3, %s" % (v(TT), v(TT)))
    if o["wqmode"] == 3:
        g("s_and_b32 s3, s2, 127"); g("s_and_b32 s7, s3, 7"); g("s_lshr_b32 s3, s3, 4"); g("s_lshl_b32 s3, s3, 3"); g("s_add_u32 s3, s3, s7"); g("s_lshl_b32 s3, s3, 7")
        g("s_bfe_u32 s7, s2, 0x10003"); g("s_lshl_b32 s7, s7, 6"); g("s_add_u32 s3, s3, s7")
        g("s_lshr_b32 s7, s2, 7"); g("s_lshl_b32 s7, s7, 21"); g("s_add_u32 s3, s3, s7")
        g("v_lshrrev_b32 %s, 2, v0" % v(TT)); g("v_lshlrev_b32 %s, 13, %s" % (v(TT), v(TT)))
        g("v_and_b32 %s, 3, v0" % v(TT + 1)); g("v_lshl_or_b32 %s, %s, 4, %s" % (v(TT), v(TT + 1), v(TT)))
        g("v_add_u32 %s, s3, %s" % (v(TT), v(TT)))
    g("v_mov_b32 %s, %d" % (v(TT + 2), TAGA)); g("v_mov_b32 %s, 0" % v(TT + 3))
    g("ds_write_b32 %s, %s offset:4" % (v(TT + 2), v(TT + 3)))
    g("s_waitcnt lgkmcnt(0)")
    if o["ts"] == 3: g.stamp(11)
    if o["b0"] == 3: g("s_barrier")
    g.srd(8, 32, 1024)
    g.srd(12, 38, 512 * 8192)
    g.srd(20, 54, WS_SIZE)
    g("buffer_load_dwordx4 %s, v3, s[8:11], 0 offen" % v(X, 4))
    g("buffer_load_dword %s, off, s[20:23], 0 offset:%d sc1" % (v(TT + 1), WS_EPOCH))
    g("s_mov_b32 s4, 0")
    for u in range(16):
        g("s_mov_b32 m0, %d" % (STAGE + u * 1024))
        if u: g("s_add_u32 s4, s4, %d" % ((0x40000 // RS, 1024, 0x10000, 0x20000)[o["wqmode"]]))
        else: g("s_nop 0")
        g("buffer_load_dwordx4 %s, s[12:15], s4 offen%s lds" % (v(TT + 8 if RS == 4 and u & 1 else TT), " nt" if o["wqnt"] else ""))
    if o["b0"] != 3: g("s_barrier")
    g("v_and_b32 %s, 3, v0" % v(TT + 2)); g("s_lshl_b32 s3, s28, 4"); g("v_lshl_add_u32 %s, %s, 2, s3" % (v(TT + 2), v(TT + 2)))
    g("buffer_load_dword %s, %s, s[8:11], 0 offen" % (v(TT + 2), v(TT + 2)))
    g("s_mul_i32 s3, s25, %d" % (NP * o["cstride"])); g("s_add_u32 s3, s3, %d" % WS_CNT)
    g("v_mul_u32_u24 %s, %d, v0" % (v(TT + 3), o["cstride"])); g("v_add_u32 %s, s3, %s" % (v(TT + 3), v(TT + 3))); g("v_mov_b32 %s, 0" % v(TT + 4))
    g("s_cmp_eq_u32 s26, 0"); g("s_cselect_b32 vcc_lo, %d, 0" % ((1 << NP) - 1)); g("s_mov_b32 vcc_hi, 0")
    g("v_mov_b32 %s, 0x7ffffff0" % v(TT + 5))
    g("v_cndmask_b32 %s, %s, %s, vcc" % (v(TT + 3), v(TT + 5), v(TT + 3)))
    g("buffer_store_dword %s, %s, s[20:23], 0 offen sc1" % (v(TT + 4), v(TT + 3)))
    g("s_waitcnt vmcnt(18)")
    g.stamp(13)
    g("v_readfirstlane_b32 s30, %s" % v(TT + 1))
    for e in range(4):
        g("v_lshlrev_b32 %s, 16, %s" % (v(XF + 2 * e), v(X + e)))
        g("v_and_b32 %s, 0xffff0000, %s" % (v(XF + 2 * e + 1), v(X + e)))
    g("s_mul_i32 s30, s30, 0x9e3779b1")
    g("s_add_u32 s30, s30, 0x7f4a7c15")
    a, b, c_ = TT + 5, TT + 6, TT + 7
    g("v_add_f32 %s, %s, %s" % (v(a), v(XF), v(XF + 1)))
    for e in range(2, 8): g("v_add_f32 %s, %s, %s" % (v(a), v(a), v(XF + e)))
    g.red_wave("v_add_f32", [a], [b])
    g("v_mul_f32 %s, %s, %s" % (v(a), hx(f2u(1.0 / 512)), v(a)))
    g("v_sub_f32 %s, %s, %s" % (v(c_), v(XF), v(a)))
    g("v_mul_f32 %s, %s, %s" % (v(b), v(c_), v(c_)))
    for e in range(1, 8):
        g("v_sub_f32 %s, %s, %s" % (v(c_), v(XF + e), v(a)))
        g("v_fmac_f32 %s, %s, %s" % (v(b), v(c_), v(c_)))
    g.red_wave("v_add_f32", [b], [c_])
    g("v_mul_f32 %s, %s, %s" % (v(b), hx(f2u(1.0 / 512)), v(b)))
    g.rbf([(a, b)], c_)
    g("v_add_f32 %s, %s, %s" % (v(b), hx(f2u(1e-5)), v(b)))
    g.rbf([(b, b)], c_)
    g("v_sqrt_f32 %s, %s" % (v(b), v(b)))
    for e in range(8): g("v_sub_f32 %s, %s, %s" % (v(XF + e), v(XF + e), v(a)))
    g.rbf([(b, b)], c_)
    g("v_rcp_f32 %s, %s" % (v(a), v(b)))
    g.rbf([(XF + 2 * e, XF + 2 * e + 1) for e in range(4)], c_)
    for e in range(8):
        g("v_mul_f32 %s, %s, %s" % (v(c_), v(XF + e), v(a)))
        g("v_fma_f32 %s, -%s, %s, %s" % (v(XF + e), v(c_), v(b), v(XF + e)))
        g("v_fma_f32 %s, %s, %s, %s" % (v(XF + e), v(XF + e), v(a), v(c_)))
    for e in range(4): g("v_cvt_pk_bf16_f32 %s, %s, %s" % (v(X + e), v(XF + 2 * e), v(XF + 2 * e + 1)))
    g("v_add_u32 %s, %d, v3" % (v(a), XN))
    g("ds_write_b128 %s, %s" % (v(a), v(X, 4)))
    W1, W2 = 96, 160
    fm = o["ffnmode"]
    def ffn_loads():
        g("v_lshrrev_b32 %s, 3, v0" % v(a)); g("v_and_b32 %s, 7, v0" % v(b))
        g("s_cmp_eq_u32 s60, 2")
        g("s_cbranch_scc1 L_rb")
        g.srd(8, 44, 512 * 3584)
        g.srd(16, 46, 512 * 3584)
        g("s_mul_i32 s3, s62, %d" % (128 * 3584)); g("s_lshl_b32 s7, s61, 7"); g("s_add_u32 s3, s3, s7")
        g("s_movk_i32 s7, 3584")
        g("s_branch L_rj")
        g.lab("L_rb")
        g.srd(8, 48, 1792 * 1024)
        g.srd(16, 48, 1792 * 1024 - 128 * 1024, "0x20000")
        g("s_lshl_b32 s3, s61, 18"); g("s_lshl_b32 s7, s25, 7"); g("s_add_u32 s3, s3, s7")
        g("s_movk_i32 s7, 1024")
        g.lab("L_rj")
        g("v_lshlrev_b32 %s, 1, %s" % (v(a), v(a))); g("v_mul_u32_u24 %s, s7, %s" % (v(c_), v(a)))
        g("v_lshl_add_u32 %s, %s, 4, %s" % (v(c_), v(b), v(c_))); g("v_add_u32 %s, s3, %s" % (v(c_), v(c_)))
        g("v_add_u32 %s, s7, %s" % (v(a), v(c_)))
        g("s_lshl_b32 s7, s7, 4")
        g("s_mov_b32 s4, 0")
        for k in range(8):
            if k: g("s_add_u32 s4, s4, s7")
            for i in range(2):
                g("buffer_load_dwordx4 %s, %s, s[8:11], s4 offen nt" % (v(W1 + 8 * k + 4 * i, 4), v(a if i else c_)))
                g("buffer_load_dwordx4 %s, %s, s[16:19], s4 offen nt" % (v(W2 + 8 * k + 4 * i, 4), v(a if i else c_)))
    g("s_mov_b32 s60, 0")
    if not o["noffn"]:
        g("s_sub_u32 s61, s26, 22"); g("s_cmp_lt_u32 s61, 7"); g("s_cselect_b32 s60, 2, 0")
        g("s_sub_u32 s3, s26, 8"); g("s_cmp_lt_u32 s3, 14")
        g("s_cbranch_scc0 L_nra")
        g("s_mul_i32 s7, s25, 14"); g("s_add_u32 s3, s3, s7")
        g("s_mov_b32 s60, 1"); g("s_lshr_b32 s61, s3, 2"); g("s_and_b32 s62, s3, 3")
        g.lab("L_nra")
    if o["ffnlate"]:
        if RS == 1: g("s_waitcnt vmcnt(0)")
    else:
        g("s_cmp_eq_u32 s60, 0")
        g("s_cbranch_scc1 L_nofl")
        ffn_loads()
        g("s_waitcnt vmcnt(32)")
        g("s_branch L_fl")
        g.lab("L_nofl")
        g("s_waitcnt vmcnt(0)")
        g.lab("L_fl")
    if RS == 1:
        XA, WA, Dq = 24, 25, 28
        FB = 32
        g("v_lshlrev_b32 %s, 4, v1" % v(XA)); g("v_add_u32 %s, %d, %s" % (v(XA), XN, v(XA)))
        g("v_lshrrev_b32 %s, 2, v2" % v(a))
        g("v_lshl_add_u32 %s, v1, 3, %s" % (v(a), v(a)))
        g("v_and_b32 %s, 3, v0" % v(b))
        g("v_lshlrev_b32 %s, 5, %s" % (v(WA), v(a)))
        g("v_lshl_or_b32 %s, %s, 3, %s" % (v(WA), v(b), v(WA)))
        g("v_add_u32 %s, %d, %s" % (v(WA), STAGE, v(WA)))
        def rd(grp):
            for k in range(4):
                t = 4 * grp + k; r0 = FB + 32 * (grp & 1) + 8 * k
                g("ds_read_b128 %s, %s offset:%d" % (v(r0, 4), v(XA), 64 * t))
                g("ds_read_b64_tr_b16 %s, %s offset:%d" % (v(r0 + 4, 2), v(WA), 1024 * t))
                g("ds_read_b64_tr_b16 %s, %s offset:%d" % (v(r0 + 6, 2), v(WA), 1024 * t + 128))
        g("s_waitcnt lgkmcnt(0)")
        g.stamp(8)
        rd(0)
        for grp in range(4):
            g("s_waitcnt lgkmcnt(0)")
            if grp < 3: rd(grp + 1)
            for k in range(4):
                r0 = FB + 32 * (grp & 1) + 8 * k
                g("v_mfma_f32_16x16x32_bf16 %s, %s, %s, %s" % (v(Dq, 4), v(r0 + 4, 4), v(r0, 4), "0" if grp == 0 and k == 0 else v(Dq, 4)))
        g("s_lshl_b32 s3, s25, 11"); g("s_add_u32 s4, s3, %d" % WS_Q)
        g("s_lshl_b32 s3, s27, 2"); g("s_add_u32 s3, s3, s4")
        g("v_lshlrev_b32 %s, 4, v1" % v(a))
        g("v_mov_b32 %s, s30" % v(FB + 1)); g("v_mov_b32 %s, s30" % v(FB + 3))
        g.nop(2)
        g("v_cvt_pk_bf16_f32 %s, %s, %s" % (v(FB), v(Dq), v(Dq + 1)))
        g("v_cvt_pk_bf16_f32 %s, %s, %s" % (v(FB + 2), v(Dq + 2), v(Dq + 3)))
        g("s_mov_b32 exec_lo, 0x00010001"); g("s_mov_b32 exec_hi, 0x00010001")
        g("buffer_store_dwordx4 %s, %s, s[20:23], s3 offen sc1" % (v(FB, 4), v(a)))
        g("s_mov_b64 exec, -1")
        g.stamp(9)
        QB = 40
        g.poll("L_pq", ["buffer_load_dwordx4 %s, v3, s[20:23], s4 offen offset:%d sc1" % (v(QB + 4 * u, 4), 1024 * u) for u in range(2)],
               [QB + 1, QB + 3, QB + 5, QB + 7])
        g.stamp(10)
        g("v_lshlrev_b32 %s, 3, v0" % v(a)); g("v_add_u32 %s, %d, %s" % (v(a), QA, v(a)))
        g("v_mov_b32 %s, %s" % (v(QB + 1), v(QB + 2))); g("v_mov_b32 %s, %s" % (v(QB + 5), v(QB + 6)))
        g("v_mov_b32 %s, %d" % (v(b), TAGA))
        g("ds_write_b64 %s, %s" % (v(a), v(QB, 2)))
        g("ds_write_b64 %s, %s offset:512" % (v(a), v(QB + 4, 2)))
        g("v_mov_b32 %s, s30" % v(QB + 2)); g("v_mov_b32 %s, 1" % v(QB + 3))
        g("ds_write_b64 %s, %s" % (v(b), v(QB + 2, 2)))
    else:
        XA, WA, Dq, XF_, WF = 24, 25, 32, 48, 96
        KS_ = 16 // RS; pitch = 32 * RS
        g("s_lshl_b32 s3, s63, %d" % (10 - lg)); g("s_add_u32 s3, s3, %d" % XN)
        g("v_lshl_add_u32 %s, v1, 4, s3" % v(XA))
        g("v_lshrrev_b32 %s, 2, v2" % v(a))
        g("v_lshl_add_u32 %s, v1, 3, %s" % (v(c_), v(a)))
        g("v_and_b32 %s, 3, v0" % v(b))
        g("v_lshlrev_b32 %s, %d, %s" % (v(WA), 5 + lg, v(c_)))
        g("v_lshl_or_b32 %s, %s, 3, %s" % (v(WA), v(b), v(WA)))
        g("v_and_b32 %s, 1, v1" % v(b))
        if RS == 4: g("v_lshrrev_b32 %s, 1, %s" % (v(a), v(a))); g("v_lshl_or_b32 %s, %s, 1, %s" % (v(b), v(b), v(a)))
        g("v_lshl_or_b32 %s, %s, 5, %s" % (v(WA), v(b), v(WA)))
        g("v_add_u32 %s, %d, %s" % (v(WA), STAGE, v(WA)))
        for ct in range(1, RS): g("v_xor_b32 %s, %d, %s" % (v(WA + ct), 32 * ct, v(WA)))
        g("s_waitcnt lgkmcnt(0)")
        for k in range(KS_): g("ds_read_b128 %s, %s offset:%d" % (v(XF_ + 4 * k, 4), v(XA), 64 * k))
        g("s_mul_i32 s4, s25, %d" % (2048 * RS)); g("s_add_u32 s4, s4, %d" % WS_Q)
        g("s_lshl_b32 s3, s63, 11"); g("s_add_u32 s3, s3, s4"); g("s_lshl_b32 s7, s27, 2"); g("s_add_u32 s3, s3, s7")
        g("v_lshlrev_b32 %s, 4, v1" % v(a)); g("v_lshl_or_b32 %s, v2, 6, %s" % (v(a), v(a)))
        g("s_mov_b32 s56, 0x07060503"); g("s_mov_b32 s57, 0x07060502"); g("s_mov_b32 s58, 0x07060501")
        MK = [0, 34, 36, 42]
        for ct in range(1, RS): g("v_cmp_eq_u32 %s, %d, v2" % (s(MK[ct], 2), ct))
        g("s_waitcnt vmcnt(0) lgkmcnt(0)")
        g.stamp(8)
        seq = [(k, ct) for k in range(KS_) for ct in range(RS)]
        def rd2(j):
            k, ct = seq[j]
            g("ds_read_b64_tr_b16 %s, %s offset:%d" % (v(WF + 4 * j, 2), v(WA + ct), 32 * pitch * k))
            g("ds_read_b64_tr_b16 %s, %s offset:%d" % (v(WF + 4 * j + 2, 2), v(WA + ct), 32 * pitch * k + 4 * pitch))
        AH = 6
        for j in range(AH): rd2(j)
        for j in range(16):
            if j + AH < 16: rd2(j + AH)
            g("s_waitcnt lgkmcnt(%d)" % (2 * min(AH, 15 - j)))
            k, ct = seq[j]
            g("v_mfma_f32_16x16x32_bf16 %s, %s, %s, %s" % (v(Dq + 4 * ct, 4), v(WF + 4 * j, 4), v(XF_ + 4 * k, 4), "0" if k == 0 else v(Dq + 4 * ct, 4)))
        g.nop(8 if RS == 2 else 5)
        for ct in range(1, RS):
            for e in range(4): g("v_cndmask_b32 %s, %s, %s, %s" % (v(Dq + e), v(Dq + e), v(Dq + 4 * ct + e), s(MK[ct], 2)))
        for e in range(4): g("v_add_u32 %s, 0x80, %s" % (v(Dq + e), v(Dq + e)))
        for e in range(3): g("v_perm_b32 %s, %s, %s, %s" % (v(Dq + e), v(Dq + e), v(Dq + 3), s(56 + e)))
        g("v_mov_b32 %s, s30" % v(Dq + 3))
        m16 = (1 << RS) - 1
        g("s_mov_b32 exec_lo, %s" % hx(m16 | m16 << 16)); g("s_mov_b32 exec_hi, %s" % hx(m16 | m16 << 16))
        g("buffer_store_dwordx4 %s, %s, s[20:23], s3 offen sc1" % (v(Dq, 4), v(a)))
        g("s_mov_b64 exec, -1")
        g.stamp(9)
        QB = 48
        g("s_add_u32 s5, s4, 4096")
        g("s_mov_b32 s56, 0x04000c0c"); g("s_mov_b32 s57, 0x0706000c"); g("s_mov_b32 s58, 0xffffff00")
        g("v_lshlrev_b32 %s, 3, v0" % v(a)); g("v_add_u32 %s, %d, %s" % (v(a), QA, v(a)))
        g("v_mov_b32 %s, %d" % (v(b), TAGA))
        g("v_mov_b32 %s, s30" % v(Dq)); g("v_mov_b32 %s, 1" % v(Dq + 1))
        g.poll("L_pq", ["buffer_load_dwordx4 %s, v3, s[20:23], %s offen offset:%d sc1" % (v(QB + 4 * u, 4), "s4" if u < 4 else "s5", 1024 * (u & 3)) for u in range(2 * RS)],
               [QB + 4 * u + 3 for u in range(2 * RS)], o["pqs"])
        g.stamp(10)
        for u in range(2 * RS):
            r = QB + 4 * u
            g("v_perm_b32 %s, %s, %s, s56" % (v(r + 3), v(r), v(r + 1)))
            g("v_perm_b32 %s, %s, %s, s57" % (v(r + 3), v(r + 3), v(r + 2)))
            for e in range(3): g("v_and_b32 %s, s58, %s" % (v(r + e), v(r + e)))
        st = 8
        while st < 8 * RS:
            for r0 in range(QB, QB + 8 * RS, 2 * st):
                for e in range(8): g("v_add_f32 %s, %s, %s" % (v(r0 + e), v(r0 + e), v(r0 + st + e)))
            st *= 2
        for e in range(4): g("v_cvt_pk_bf16_f32 %s, %s, %s" % (v(QB + e), v(QB + 2 * e), v(QB + 2 * e + 1)))
        g("ds_write_b64 %s, %s" % (v(a), v(QB, 2)))
        g("ds_write_b64 %s, %s offset:512" % (v(a), v(QB + 2, 2)))
        g("ds_write_b64 %s, %s" % (v(b), v(Dq, 2)))
    if o["fprio"] >= 0: g("s_setprio %d" % o["fprio"])
    g("s_cmp_eq_u32 s60, 0")
    g("s_cbranch_scc1 L_nofp")
    if fm == 2: g("s_branch L_nofp")
    XP, XQ, AG, AU, PT = 24, 32, 40, 48, 56
    if o["ffnlate"]: ffn_loads()
    g("v_lshrrev_b32 %s, 3, v0" % v(a)); g("v_lshlrev_b32 %s, 2, %s" % (v(a), v(a)))
    g("s_lshl_b32 s3, s62, 8"); g("s_add_u32 s3, s3, %d" % XN); g("s_mov_b32 s7, s3")
    g("s_cmp_eq_u32 s60, 1")
    g("s_cbranch_scc1 L_fc")
    g("s_mul_i32 s4, s61, %d" % CSA); g("s_add_u32 s4, s4, %d" % WS_FA)
    g("s_add_u32 s5, s4, 4096")
    FA_ = 56
    plim = {4: -1, 5: 2, 6: -1, 7: -1, 8: -1, 10: -1}.get(fm, 0x40000)
    if o["cpoll"]:
        g("v_lshlrev_b32 %s, 9, v0" % v(b))
        g("s_mov_b64 exec, 0xffff")
        g.poll("L_pc", ["buffer_load_dwordx4 %s, %s, s[20:23], s4 offen offset:496 sc1" % (v(FA_, 4), v(b))], [FA_ + 3], o["cpoll"], lim=plim)
        g("s_mov_b64 exec, -1")
    g.poll("L_pa", ["buffer_load_dwordx4 %s, v3, s[20:23], %s offen offset:%d sc1" % (v(FA_ + 4 * u, 4), "s4" if u < 4 else "s5", 1024 * (u & 3)) for u in range(8)],
           [FA_ + 4 * u + 3 for u in range(8)], o["fsleep"], lim=plim)
    if o["ts"] != 3: g.stamp(11)
    g("s_mov_b32 s3, 0x04000c0c"); g("s_mov_b32 s7, 0x0706000c")
    for u in range(8):
        r = FA_ + 4 * u
        g("v_perm_b32 %s, %s, %s, s3" % (v(r + 3), v(r), v(r + 1)))
        g("v_perm_b32 %s, %s, %s, s7" % (v(r + 3), v(r + 3), v(r + 2)))
        for e in range(3): g("v_and_b32 %s, 0xffffff00, %s" % (v(r + e), v(r + e)))
    for cb in range(4):
        for e in range(4): g("v_add_f32 %s, %s, %s" % (v(FA_ + 8 * cb + e), v(FA_ + 8 * cb + e), v(FA_ + 8 * cb + 4 + e)))
    g.tswap("v_permlane32_swap_b32", [(FA_ + 8 * cb + e, FA_ + 8 * cb + 16 + e) for cb in range(2) for e in range(4)])
    GT = [FA_, FA_ + 2, FA_ + 8, FA_ + 10]; UP = [x + 1 for x in GT]; E = [FA_ + 4, FA_ + 5, FA_ + 6, FA_ + 7]
    g.rbf(list(zip(GT, UP)), c_)
    k1 = -2.0 * math.sqrt(2.0 / math.pi) * LOG2E
    for j in range(4): g("v_mul_f32 %s, %s, %s" % (v(E[j]), v(GT[j]), v(GT[j])))
    for j in range(4): g("v_mul_f32 %s, %s, %s" % (v(E[j]), hx(f2u(0.044715)), v(E[j])))
    for j in range(4): g("v_add_f32 %s, 1.0, %s" % (v(E[j]), v(E[j])))
    for j in range(4): g("v_mul_f32 %s, %s, %s" % (v(E[j]), v(E[j]), v(GT[j])))
    for j in range(4): g("v_mul_f32 %s, %s, %s" % (v(E[j]), hx(f2u(k1)), v(E[j])))
    for j in range(4): g("v_exp_f32 %s, %s" % (v(E[j]), v(E[j])))
    for j in range(4): g("v_add_f32 %s, 1.0, %s" % (v(E[j]), v(E[j])))
    for j in range(4): g("v_rcp_f32 %s, %s" % (v(E[j]), v(E[j])))
    for j in range(4): g("v_mul_f32 %s, %s, %s" % (v(E[j]), v(E[j]), v(GT[j])))
    g.rbf([(E[0], E[1]), (E[2], E[3])], c_)
    for j in range(4): g("v_mul_f32 %s, %s, %s" % (v(E[j]), v(E[j]), v(UP[j])))
    g("v_cvt_pk_bf16_f32 %s, %s, %s" % (v(E[0]), v(E[0]), v(E[1])))
    g("v_cvt_pk_bf16_f32 %s, %s, %s" % (v(E[2]), v(E[2]), v(E[3])))
    g("v_lshrrev_b32 %s, 5, v0" % v(c_)); g("v_and_b32 %s, 31, v0" % v(b)); g("v_lshlrev_b32 %s, 2, %s" % (v(b), v(b)))
    g("v_lshl_add_u32 %s, %s, 8, %s" % (v(c_), v(c_), v(b))); g("v_add_u32 %s, %d, %s" % (v(c_), HA, v(c_)))
    g("ds_write2_b32 %s, %s, %s offset0:0 offset1:32" % (v(c_), v(E[0]), v(E[2])))
    g("s_mov_b32 s3, %d" % HA); g("s_mov_b32 s7, %d" % (HA + 256))
    g.lab("L_fc")
    g("v_add_u32 %s, s3, %s" % (v(b), v(a))); g("v_add_u32 %s, s7, %s" % (v(c_), v(a)))
    for k in range(8): g("ds_read_b32 %s, %s offset:%d" % (v(XP + k), v(b), 32 * k))
    for k in range(8): g("ds_read_b32 %s, %s offset:%d" % (v(XQ + k), v(c_), 32 * k))
    for e in range(16): g("v_mov_b32 %s, 0" % v(AG + e))
    g("s_mov_b32 s3, 0x05040100"); g("s_mov_b32 s7, 0x07060302")
    def pairs(W, ACC, XPr):
        for k in range(8):
            for e in range(4):
                ra, rb_ = W + 8 * k + e, W + 8 * k + 4 + e
                g("v_perm_b32 %s, %s, %s, s3" % (v(PT + 2 * (e & 1)), v(rb_), v(ra)))
                g("v_perm_b32 %s, %s, %s, s7" % (v(PT + 2 * (e & 1) + 1), v(rb_), v(ra)))
                g("v_dot2_f32_bf16 %s, %s, %s, %s" % (v(ACC + 2 * e), v(PT + 2 * (e & 1)), v(XPr + k), v(ACC + 2 * e)))
                g("v_dot2_f32_bf16 %s, %s, %s, %s" % (v(ACC + 2 * e + 1), v(PT + 2 * (e & 1) + 1), v(XPr + k), v(ACC + 2 * e + 1)))
    g("s_waitcnt vmcnt(0) lgkmcnt(0)")
    pairs(W1, AG, XP)
    pairs(W2, AU, XQ)
    g.nop(1)
    g.tswap("v_permlane32_swap_b32", [(AG + c, AG + c + 4) for c in range(4)] + [(AU + c, AU + c + 4) for c in range(4)])
    g.tswap("v_permlane16_swap_b32", [(AG + c, AG + c + 2) for c in range(2)] + [(AU + c, AU + c + 2) for c in range(2)])
    g.red_dpp("v_add_f32", [AG, AG + 1, AU, AU + 1], ["row_ror:8"])
    g("v_and_b32 %s, 7, v0" % v(b))
    g("v_mov_b32 %s, s30" % v(AG + 3))
    g("s_cmp_eq_u32 s60, 2")
    g("s_cbranch_scc1 L_fb")
    g("s_mov_b32 s3, 0x07060503"); g("s_mov_b32 s4, 0x07060502"); g("s_mov_b32 s7, 0x07060501")
    for r in (AG, AG + 1, AU, AU + 1): g("v_add_u32 %s, 0x80, %s" % (v(r), v(r)))
    g("v_perm_b32 %s, %s, %s, s7" % (v(AG + 2), v(AG + 1), v(AU + 1)))
    g("v_perm_b32 %s, %s, %s, s4" % (v(AG + 1), v(AU), v(AU + 1)))
    g("v_perm_b32 %s, %s, %s, s3" % (v(AG), v(AG), v(AU + 1)))
    g("v_lshlrev_b32 %s, 6, %s" % (v(b), v(b)))
    g("s_lshr_b32 s4, s61, 2"); g("s_mul_i32 s4, s4, %d" % CSA); g("s_and_b32 s5, s61, 3"); g("s_lshl_b32 s5, s5, 11"); g("s_add_u32 s4, s4, s5")
    g("s_lshl_b32 s5, s62, 9"); g("s_add_u32 s4, s4, s5"); g("s_add_u32 s4, s4, %d" % WS_FA)
    if fm in (5, 6, 8): g("s_branch L_nofp")
    g("s_branch L_fs")
    g.lab("L_fb")
    g("v_add_f32 %s, %s, %s" % (v(AG), v(AG), v(AU))); g("v_add_f32 %s, %s, %s" % (v(AG + 1), v(AG + 1), v(AU + 1)))
    g("v_mov_b32 %s, 0" % v(AG + 2))
    g("v_mul_u32_u24 %s, %d, %s" % (v(b), CSB, v(b)))
    g("s_mul_i32 s4, s25, %d" % (8 * CSB)); g("s_lshl_b32 s5, s61, 6"); g("s_add_u32 s4, s4, s5"); g("s_add_u32 s4, s4, %d" % WS_FB)
    if fm in (5, 6, 7): g("s_branch L_nofp")
    g.lab("L_fs")
    g("v_lshl_add_u32 %s, v1, 4, %s" % (v(b), v(b)))
    g("s_mov_b32 exec_lo, 0x00ff00ff"); g("s_mov_b32 exec_hi, 0x00ff00ff")
    g("buffer_store_dwordx4 %s, %s, s[20:23], s4 offen sc1" % (v(AG, 4), v(b)))
    g("s_mov_b64 exec, -1")
    g.lab("L_nofp")
    if o["dn"]:
        g.srd(8, 54, 32 << 20, hx(o["dbase"] << 20))
        g("s_mul_i32 s4, s2, %d" % (o["dn"] * 1024 + 128))
        for j in range(o["dn"]):
            g("buffer_load_dwordx4 v[56:59], v3, s[8:11], s4 offen %s" % ["sc1", "", "sc0 sc1", "sc1 nt", "sc0", "nt"][o["dmod"]])
            g("s_add_u32 s4, s4, 1024")
        g("s_waitcnt vmcnt(0)")
    if o["dpoll"]:
        if not o["dwho"]: g("s_cmp_ge_u32 s26, 8"); g("s_cbranch_scc1 L_dp")
        g("s_mul_i32 s4, s2, %d" % o["dstr"]); g("s_add_u32 s4, s4, %d" % o["doff"])
        if o["dst"]:
            g("v_mov_b32 v59, 0")
            g("buffer_store_dwordx4 v[56:59], v3, s[20:23], s4 offen sc1")
        g.poll("L_dq", ["buffer_load_dwordx4 v[56:59], v3, s[20:23], s4 offen %s" % ["sc1", "", "sc0 sc1", "sc1 nt", "sc0"][o["dmod"]]], [59], o["gsleep"], lim=o["dpoll"] - 1)
        g.lab("L_dp")
    g("s_cmp_ge_u32 s26, 8")
    g("s_cbranch_scc1 L_nofc")
    E = 56
    g("v_mov_b32 %s, 0" % v(E)); g("v_mov_b32 %s, 0" % v(E + 1)); g("v_mov_b32 %s, s30" % v(E + 3))
    if not (o["noffn"] or fm == 2):
        g("s_mul_i32 s4, s28, %d" % CSB); g("s_add_u32 s4, s4, %d" % WS_FB)
        g("s_mov_b64 exec, 0x0fffffff")
        g.poll("L_pb", ["buffer_load_dwordx4 %s, v3, s[20:23], s4 offen sc1" % v(E, 4)], [E + 3], o["gsleep"], lim={9: -1, 10: 0x40000}.get(fm, plim))
        g("s_mov_b64 exec, -1")
    g.red_dpp("v_add_f32", [E, E + 1], ["row_ror:4", "row_ror:8"])
    g.red_swap("v_add_f32", [E, E + 1], [a, b])
    g.rbf([(E, E + 1)], c_)
    g("s_mov_b32 s7, %s" % hx(f2u(-LOG2E)))
    g("v_mul_f32 %s, s7, %s" % (v(a), v(E))); g("v_mul_f32 %s, s7, %s" % (v(b), v(E + 1)))
    g("v_exp_f32 %s, %s" % (v(a), v(a))); g("v_exp_f32 %s, %s" % (v(b), v(b)))
    g("v_lshlrev_b32 %s, 16, %s" % (v(E + 2), v(TT + 2)))
    g("v_add_f32 %s, 1.0, %s" % (v(a), v(a))); g("v_add_f32 %s, 1.0, %s" % (v(b), v(b)))
    g("v_rcp_f32 %s, %s" % (v(a), v(a))); g("v_rcp_f32 %s, %s" % (v(b), v(b)))
    g("v_and_b32 %s, 0xffff0000, %s" % (v(E + 3), v(TT + 2)))
    g("v_mul_f32 %s, %s, %s" % (v(E), v(E), v(a))); g("v_mul_f32 %s, %s, %s" % (v(E + 1), v(E + 1), v(b)))
    g.rbf([(E, E + 1)], c_)
    g("v_add_u32 %s, %d, v3" % (v(a), GA))
    g("s_mov_b64 exec, 15")
    g("ds_write_b128 %s, %s" % (v(a), v(E, 4)))
    g("s_mov_b64 exec, -1")
    g.lab("L_nofc")
    g.stamp(12)
    if o["ts"] in (0, 3): g.write_stamps([8, 9, 10, 11, 12, 13])
    g("s_waitcnt vmcnt(0) lgkmcnt(0)")
    if o["reh"]:
        g("v_lshrrev_b32 v1, 4, v0"); g("v_and_b32 v2, 15, v0")
        tail_addr()
        g.srd(16, 50, 0)
        g.srd(20, 54, 0)
        g("s_mov_b32 s30, 0")
        g("s_branch L_tail")
    g.lab("L_end")
    g("s_endpgm")

    out = HEADER + "; @launch grid=(256,1,1) block=(320,1,1) lds=%d\n" % LDS_BYTES
    out += '.amdgcn_target "amdgcn-amd-amdhsa--gfx950"\n.text\n.globl %s_kernel\n.p2align 8\n.type %s_kernel,@function\n%s_kernel:\n' % (KNAME, KNAME, KNAME)
    MODS = ["nt", "", "sc1 nt", "sc0 nt", "sc0 sc1 nt", "sc1", "sc0"]
    for i_, l_ in enumerate(g.L):
        if l_.endswith(" nt lds") and ("s[8:11]" in l_ or ("s[12:15]" in l_ and "offset:" in l_)): g.L[i_] = l_[:-6] + MODS[o["smod"]] + " lds"
        elif l_.endswith(" nt lds") and "s[44:47]" in l_: g.L[i_] = l_[:-6] + MODS[o["womod"]] + " lds"
        elif l_.endswith("s4 offen nt") and "v[56:59]" not in l_: g.L[i_] = l_[:-2] + MODS[o["fmod"]]
    out += "\n".join(g.L) + "\n"
    out += """.section .rodata,"a"
.p2align 6
.amdhsa_kernel %s_kernel
  .amdhsa_next_free_vgpr %d
  .amdhsa_next_free_sgpr 100
  .amdhsa_accum_offset %d
  .amdhsa_group_segment_fixed_size 0
  .amdhsa_kernarg_size 96
  .amdhsa_user_sgpr_count 2
  .amdhsa_user_sgpr_kernarg_segment_ptr 1
  .amdhsa_system_sgpr_workgroup_id_x 1
.end_amdhsa_kernel
""" % (KNAME, NV, NV)
    return out

if __name__ == "__main__":
    import hazcheck
    names = []
    for spec in sys.argv[1:]:
        parts = spec.split(",")
        fn = parts[0]
        opts = {}
        for p in parts[1:]:
            k, x = p.split("=")
            opts[k] = int(x)
        txt = gen(**opts)
        nb = hazcheck.check(txt)
        assert nb == 0, "hazards found"
        open(fn, "w").write(txt)
        names.append(fn)
    print(" ".join(names))
```

```python
import sys, struct, math
KNAME = "recurrent_scan__gqa_block_cached__geglu_ffn__decode"

def f2u(x): return struct.unpack("<I", struct.pack("<f", x))[0]
def hx(x): return "0x%x" % (x & 0xffffffff)
def v(n, c=1): return "v%d" % n if c == 1 else "v[%d:%d]" % (n, n + c - 1)
def s(n, c=1): return "s%d" % n if c == 1 else "s[%d:%d]" % (n, n + c - 1)

STAGE = 131072
XN = 147456
QA = 148480
ML = 149504
GA = 150016
TAGA = 150144
OA = 150272
HA = 150528
COMB = 151552
LDS_BYTES = 163840
WS_EPOCH = 0
WS_Q = 0x30000
WS_CNT = 0x8000
WS_B1 = 0x100000
WS_B2 = 0x200000
WS_FA = 0x300000
WS_FB = 0x380000
WS_SIZE = 0x400000
STAMP_OFF = 256 << 20
LOG2E = math.log2(math.e)

HEADER = """; Kernarg layout for this problem (96 bytes, ptrs only, base s[0:1]):
"""

class G:
    def __init__(self, **o):
        self.L = []
        self.o = dict(stamps=0, D=5, rot=1572864, noffn=0, auxprio=3, reh=1, round=1, wqnt=1, wqrot=0,
                      pad1=128, pad2=128, S=30, fsleep=8, b0=3, qsleep=2, wqmode=0, ffnlate=1, nowo=0, ack=1, cstride=4096, ts=0, thr=5, ffnmode=0, womode=3, dynthr=6, N=28, thk=5556, thv=5556, cpoll=8, sprio=0, fprio=0, sw=0, fthr=0, tailmode=0, stm=0, gsleep=8, dpoll=0, dmod=0, dwho=0, dst=0, doff=0x300000, dstr=1152, dn=0, dbase=8, smod=0, fmod=0, womod=0, dN=0, thw=5556, wopos=0, RS=4, pqs=8, qfull=0, nib=1)
        for k in o: assert k in self.o, k
        self.o.update(o)
    def __call__(self, x): self.L.append("    " + x)
    def lab(self, x): self.L.append(x + ":")
    def c(self, x): self.L.append("    ; " + x)
    def nop(self, n):
        while n > 0:
            k = min(n, 16); self("s_nop %d" % (k - 1)); n -= k
    def stamp(self, i):
        if self.o["stamps"]: self("s_memrealtime %s" % s(64 + 2 * i, 2))
    def write_stamps(self, idx):
        if not self.o["stamps"]: return
        self("s_waitcnt lgkmcnt(0)")
        self("s_lshl_b32 s3, s2, 7")
        self("s_add_u32 s3, s3, %d" % STAMP_OFF)
        self("v_mov_b32 v1, s3")
        for i in idx:
            self("v_mov_b32 v2, %s" % s(64 + 2 * i)); self("v_mov_b32 v3, %s" % s(65 + 2 * i))
            self("global_store_dwordx2 v1, v[2:3], s[54:55] offset:%d" % (8 * i))
        if 0 in idx:
            self("s_getreg_b32 s3, hwreg(HW_REG_XCC_ID)")
            self("v_mov_b32 v2, s3"); self("v_mov_b32 v3, s95")
            self("global_store_dwordx2 v1, v[2:3], s[54:55] offset:120")
    def srd(self, d, base, size, add=None):
        if add is None:
            self("s_mov_b32 %s, %s" % (s(d), s(base))); self("s_mov_b32 %s, %s" % (s(d + 1), s(base + 1)))
        else:
            self("s_add_u32 %s, %s, %s" % (s(d), s(base), add)); self("s_addc_u32 %s, %s, 0" % (s(d + 1), s(base + 1)))
        self("s_mov_b32 %s, %s" % (s(d + 2), size if isinstance(size, str) else hx(size))); self("s_mov_b32 %s, 0x20000" % s(d + 3))
    def red_dpp(self, op, rs, ctrls):
        for ct in ctrls:
            self.nop(max(0, 2 - (len(rs) - 1)))
            for r in rs: self("%s_dpp %s, %s, %s %s row_mask:0xf bank_mask:0xf" % (op, v(r), v(r), v(r), ct))
    def red_swap(self, op, rs, ts):
        for sw in ("v_permlane16_swap_b32", "v_permlane32_swap_b32"):
            for r, t in zip(rs, ts): self("v_mov_b32 %s, %s" % (v(t), v(r)))
            self.nop(max(0, 2 - (len(rs) - 1)))
            for r, t in zip(rs, ts): self("%s %s, %s" % (sw, v(t), v(r)))
            for r, t in zip(rs, ts): self("%s %s, %s, %s" % (op, v(r), v(t), v(r)))
    def red_wave(self, op, rs, ts):
        self.red_dpp(op, rs, ["quad_perm:[1,0,3,2]", "quad_perm:[2,3,0,1]", "row_half_mirror", "row_mirror"])
        self.red_swap(op, rs, ts)
    def tswap(self, sw, pairs):
        self.nop(2)
        for a, b in pairs: self("%s %s, %s" % (sw, v(a), v(b)))
        for a, b in pairs: self("v_add_f32 %s, %s, %s" % (v(a), v(a), v(b)))
    def rbf(self, pairs, t):
        for a, b in pairs:
            self("v_cvt_pk_bf16_f32 %s, %s, %s" % (v(t), v(a), v(b)))
            self("v_lshlrev_b32 %s, 16, %s" % (v(a), v(t)))
            if b != a: self("v_and_b32 %s, 0xffff0000, %s" % (v(b), v(t)))
    def tstamp(self, i):
        if self.o["ts"] == 1: self.stamp(i)
    def poll(self, name, loads, tagregs, sleep=0, st=None, first=None, lim=0x40000):
        if lim < 0: return
        self("s_mov_b32 s31, 0x%x" % lim)
        if self.o["ack"] or first: self("s_waitcnt vmcnt(0)")
        if st is not None: self.tstamp(st)
        if first:
            for l in loads + first: self(l)
            self("s_branch %s_w" % name)
        self.lab(name)
        for l in loads: self(l)
        if first: self.lab(name + "_w")
        self("s_waitcnt vmcnt(0)")
        self("v_cmp_ne_u32 vcc, s30, %s" % v(tagregs[0]))
        for k, t in enumerate(tagregs[1:]):
            self("v_cmp_ne_u32 %s, s30, %s" % (s(96 + 2 * (k & 1), 2), v(t)))
            if k & 1 or k == len(tagregs) - 2:
                for kk in range(k & ~1, k + 1): self("s_or_b64 vcc, vcc, %s" % s(96 + 2 * (kk & 1), 2))
        self("s_cbranch_vccz %s_done" % name)
        if sleep: self("s_sleep %d" % sleep)
        self("s_sub_u32 s31, s31, 1")
        self("s_cbranch_scc0 %s" % name)
        self.lab(name + "_done")

def gen(**opts):
    g = G(**opts); o = g.o
    CS1 = 8192 + o["pad1"]; CS2 = 4096 + o["pad2"]; CSA = 8192 + 128; CSB = 512 + 128
    g("s_cmp_ge_u32 s2, 256")
    g("s_cbranch_scc1 L_end")
    g("s_load_dwordx16 s[32:47], s[0:1], 0")
    g("s_load_dwordx8 s[48:55], s[0:1], 64")
    g.stamp(0)
    g("v_lshrrev_b32 v1, 6, v0")
    g("v_and_b32 v0, 63, v0")
    g("v_readfirstlane_b32 s24, v1")
    g("s_lshr_b32 s25, s2, 5")
    g("s_and_b32 s26, s2, 31")
    g("v_lshrrev_b32 v1, 4, v0")
    g("v_and_b32 v2, 15, v0")
    g("s_lshl_b32 s28, s25, 3"); g("s_add_u32 s28, s28, s26")
    g("s_cmp_eq_u32 s24, 4")
    g("s_cbranch_scc1 L_aux")
    KS, VS, KA, VA, TK = 4, 8, 10, 14, 22
    QF, F, VF, S, P = 24, 40, 56, 72, 76
    M, LS, AL, NM, T0, T1, T2, CA = 78, 79, 80, 81, 82, 83, 84, 85
    SG = 120
    O, WO = 88, 120
    CW, MW, CR, MR, H1A, P1A, OW, OR, H2A, P2A, GR, OUTA, WS_, WR = range(184, 198)
    NV = 224
    def tail_addr():
        g("v_and_b32 v3, 3, v0")
        g("s_lshl_b32 s3, s24, 11"); g("s_add_u32 s3, s3, %d" % COMB)
        g("v_lshlrev_b32 %s, 9, v3" % v(CW)); g("v_lshl_or_b32 %s, v1, 4, %s" % (v(CW), v(CW))); g("v_add_u32 %s, s3, %s" % (v(CW), v(CW)))
        g("s_lshl_b32 s3, s24, 2"); g("s_add_u32 s3, s3, %d" % ML)
        g("v_lshl_add_u32 %s, v3, 6, s3" % v(MW))
        g("s_lshl_b32 s3, s24, 9"); g("s_add_u32 s3, s3, %d" % COMB)
        g("v_and_b32 %s, 31, v0" % v(CR)); g("v_lshl_add_u32 %s, %s, 4, s3" % (v(CR), v(CR)))
        g("s_lshl_b32 s3, s24, 6"); g("s_add_u32 s3, s3, %d" % ML); g("v_mov_b32 %s, s3" % v(MR))
        g("s_lshl_b32 s3, s25, 2"); g("s_add_u32 s3, s3, s24"); g("s_mul_i32 s3, s3, %d" % (2 * CS1))
        g("s_lshl_b32 s7, s26, 8"); g("s_add_u32 s3, s3, s7"); g("s_add_u32 s3, s3, %d" % WS_B1)
        g("v_and_b32 %s, 1, v1" % v(H1A)); g("v_mul_u32_u24 %s, %d, %s" % (v(H1A), CS1, v(H1A)))
        g("v_lshl_add_u32 %s, v2, 4, %s" % (v(H1A), v(H1A))); g("v_add_u32 %s, s3, %s" % (v(H1A), v(H1A)))
        g("s_mul_i32 s3, s28, %d" % CS1); g("s_lshl_b32 s7, s24, 6"); g("s_add_u32 s3, s3, s7"); g("s_add_u32 s3, s3, %d" % WS_B1)
        g("v_lshrrev_b32 %s, 2, v0" % v(H2A))
        g("v_lshlrev_b32 %s, 9, %s" % (v(P1A), v(H2A))); g("v_lshl_or_b32 %s, v3, 4, %s" % (v(P1A), v(P1A))); g("v_add_u32 %s, s3, %s" % (v(P1A), v(P1A)))
        g("s_lshl_b32 s3, s24, 3"); g("s_add_u32 s3, s3, %d" % OA)
        g("v_lshl_add_u32 %s, v3, 5, s3" % v(OW))
        g("v_lshlrev_b32 %s, 5, v1" % v(OR)); g("v_add_u32 %s, %d, %s" % (v(OR), OA, v(OR)))
        g("v_lshrrev_b32 %s, 2, v0" % v(WR)); g("v_and_b32 %s, 3, %s" % (v(WR + 1), v(WR)))
        g("v_lshlrev_b32 %s, 8, %s" % (v(WR), v(WR))); g("v_lshl_or_b32 %s, %s, 6, %s" % (v(WR), v(WR + 1), v(WR)))
        g("v_lshl_or_b32 %s, v3, 4, %s" % (v(WR), v(WR)))
        g("s_lshl_b32 s3, s24, 15"); g("s_add_u32 s3, s3, 0x4000"); g("v_add_u32 %s, s3, %s" % (v(WR), v(WR)))
        for a_ in range(1, 4): g("v_xor_b32 %s, %d, %s" % (v(WR + a_), 64 * a_, v(WR)))
        g("s_mul_i32 s3, s24, %d" % (16 * CS2)); g("s_lshl_b32 s7, s28, 6"); g("s_add_u32 s3, s3, s7"); g("s_add_u32 s3, s3, %d" % WS_B2)
        g("v_mul_u32_u24 %s, %d, %s" % (v(H2A), CS2, v(H2A))); g("v_lshl_add_u32 %s, v3, 4, %s" % (v(H2A), v(H2A))); g("v_add_u32 %s, s3, %s" % (v(H2A), v(H2A)))
        g("s_mul_i32 s3, s28, %d" % CS2); g("s_lshl_b32 s7, s24, 4"); g("s_add_u32 s3, s3, s7"); g("s_add_u32 s3, s3, %d" % WS_B2)
        g("v_lshl_add_u32 %s, v0, 6, s3" % v(P2A))
        g("s_lshr_b32 s3, s24, 1"); g("s_lshl_b32 s3, s3, 4"); g("s_and_b32 s7, s24, 1"); g("s_lshl_b32 s7, s7, 2")
        g("s_add_u32 s3, s3, s7"); g("s_add_u32 s3, s3, %d" % GA); g("v_mov_b32 %s, s3" % v(GR))
        g("s_lshl_b32 s3, s28, 4"); g("s_lshl_b32 s7, s24, 1"); g("s_add_u32 s3, s3, s7"); g("v_mov_b32 %s, s3" % v(OUTA))
        g("s_mov_b32 s6, %s" % hx(f2u(LOG2E)))
    g("v_xor_b32 v3, v1, v2")
    g("v_lshlrev_b32 v3, 4, v3")
    g("v_lshl_or_b32 %s, v1, 8, v3" % v(KS))
    for u in range(1, 4): g("v_xor_b32 %s, %d, %s" % (v(KS + u), 64 * u, v(KS)))
    g("v_lshlrev_b32 v3, 1, v1")
    g("v_xor_b32 v3, v3, v2")
    g("v_lshlrev_b32 v3, 4, v3")
    g("v_lshl_or_b32 %s, v1, 8, v3" % v(VS))
    g("v_xor_b32 %s, 0x80, %s" % (v(VS + 1), v(VS)))
    NP = 4; SS = o["S"]; D = o["D"]; TH = o["thr"]; N = o["N"]
    dN = o["dN"]; NC = N - dN
    assert N % 4 == 0 and 12 <= N <= 30 and SS == N + 2 and dN in (0, 2, 4)
    PA = 86
    g("s_lshl_b32 s27, s24, 12")
    g("s_mul_i32 s3, s25, %d" % o["rot"])
    g("s_add_u32 s27, s27, s3")
    g("s_lshl_b32 s5, s26, 14"); g("s_add_u32 s5, s5, s27")
    g("s_lshl_b32 s29, s24, 15")
    g("s_lshl_b32 s3, s25, 24")
    g("s_waitcnt lgkmcnt(0)")
    g.srd(8, 34, 1 << 24, "s3")
    g.srd(12, 36, 1 << 24, "s3")
    g.srd(20, 54, WS_SIZE)
    if o["b0"] == 1: g("s_barrier")
    cnt = [0]
    def throttle():
        k = cnt[0]; cnt[0] += 1
        if k >= D: g("s_waitcnt vmcnt(%d)" % (D - 1))
        return k >= D
    g("s_mov_b32 s92, s5")
    def kload(u): g("buffer_load_dwordx4 %s, s[8:11], s4 offen offset:%d nt lds" % (v(KS + u), u * 1024))
    def vload(u): g("buffer_load_dwordx4 %s, s[12:15], s4 offen offset:%d nt lds" % (v(VS + (u & 1)), u * 1024))
    for t_ in range(8):
        g("s_and_b32 s4, s5, 0xffffff")
        g("s_add_u32 m0, s29, %d" % (4096 * (t_ >> 1) + 0x4000 * (t_ & 1)))
        g("s_add_u32 s5, s5, 0x80000")
        for u in range(4):
            if cnt[0] == D:
                for n in range(32): g("v_mov_b32 %s, 0" % v(O + n))
                g("v_mov_b32 %s, 0xff7fffff" % v(M))
                g("v_mov_b32 %s, 0" % v(LS))
                tail_addr()
                g("s_mul_i32 s3, s25, %d" % NP); g("s_add_u32 s3, s3, s24"); g("s_mul_i32 s3, s3, %d" % o["cstride"]); g("s_add_u32 s3, s3, %d" % WS_CNT)
                g("v_mov_b32 v3, s3"); g("v_mov_b32 %s, 0x7ffffff0" % v(CA))
                g("v_cmp_eq_u32 vcc, 0, v0")
                g("s_and_b32 s3, s28, 63"); g("s_lshl_b32 s7, s3, 16")
                g("v_cndmask_b32 %s, %s, v3, vcc" % (v(CA), v(CA)))
                g("v_lshlrev_b32 v3, 2, v1"); g("v_xor_b32 v3, v3, v2"); g("v_lshlrev_b32 v3, 4, v3")
                g("v_lshl_or_b32 v3, v1, 10, v3"); g("s_lshl_b32 s3, s24, 8"); g("v_add_u32 %s, s3, v3" % v(WS_))
                g.srd(44, 40, 65536, "s7")
                g.srd(16, 50, 1024)
                g("v_and_b32 v3, 3, v0"); g("v_lshlrev_b32 v3, 5, v3"); g("v_lshl_or_b32 v3, v1, 3, v3")
                g("s_lshl_b32 s3, s24, 12"); g("s_add_u32 s3, s3, %d" % STAGE); g("v_add_u32 %s, s3, v3" % v(PA))
            throttle()
            kload(u)
        if t_ == 0:
            g("v_xor_b32 v3, v1, v2")
            g("v_lshlrev_b32 v3, 4, v3")
            g("v_lshl_or_b32 v3, v2, 8, v3")
            g("v_add_u32 %s, s29, v3" % v(KA))
            for k in range(1, 4): g("v_xor_b32 %s, %d, %s" % (v(KA + k), 64 * k, v(KA)))
            g("v_lshrrev_b32 v3, 2, v0")
            g("v_and_b32 %s, 7, v3" % v(T0))
            g("v_lshlrev_b32 %s, 5, %s" % (v(T0), v(T0)))
            g("v_lshl_or_b32 v3, v3, 8, %s" % v(T0))
            g("v_and_b32 %s, 3, v0" % v(T0))
            g("v_lshl_or_b32 v3, %s, 3, v3" % v(T0))
            g("v_add_u32 %s, s29, v3" % v(VA))
            for n in range(1, 8): g("v_xor_b32 %s, %d, %s" % (v(VA + n), 32 * n, v(VA)))
            if o["b0"] >= 2: g("s_barrier")
    g("v_and_b32 v3, 3, v0")
    g("v_lshlrev_b32 v3, 8, v3")
    g("v_lshl_or_b32 v3, v1, 4, v3")
    g("v_add_u32 v3, %d, v3" % QA)
    g("v_mov_b32 %s, %d" % (v(T2), TAGA))
    g("s_mov_b32 s56, %s" % hx(f2u(128.0 ** -0.5))); g("s_mov_b32 s57, s56")
    g("s_mov_b32 s58, 0")
    g("s_mov_b32 s59, s29")
    g("s_mov_b32 s63, 4")
    def tm(n): return (((1 << n) - 1) << (n - 8)) | (0b1010 << (2 * n - 8))
    g("s_mov_b32 s40, %s" % hx(tm(N))); g("s_mov_b32 s41, %s" % hx(tm(N) >> 32))
    g("s_cmp_lt_u32 s26, 8")
    g("s_cselect_b32 s61, %d, %d" % (NC, N))
    g("s_cselect_b32 s40, %s, s40" % hx(tm(NC))); g("s_cselect_b32 s41, %s, s41" % hx(tm(NC) >> 32))
    g("s_mov_b32 s60, s61")
    g("s_and_b32 s62, s61, 2"); g("s_lshl_b32 s62, s62, 12")
    if dN & 2:
        for n in range(8): g("v_xor_b32 %s, s62, %s" % (v(VA + n), v(VA + n)))
    g("s_mov_b32 s95, s61")
    if o["sprio"]: g("s_setprio %d" % o["sprio"])
    g.stamp(1)
    g("s_mov_b32 s31, 0x400000")
    g.lab("L_wq")
    g("ds_read_b64 %s, %s" % (v(T0, 2), v(T2)))
    g("s_waitcnt lgkmcnt(0)")
    g("v_readfirstlane_b32 s3, %s" % v(T1))
    g("v_readfirstlane_b32 s30, %s" % v(T0))
    g("s_cmp_lg_u32 s3, 0")
    g("s_cbranch_scc1 L_wq_done")
    if o["qsleep"]: g("s_sleep %d" % o["qsleep"])
    g("s_sub_u32 s31, s31, 1")
    g("s_cbranch_scc0 L_wq")
    g.lab("L_wq_done")
    for k in range(4): g("ds_read_b128 %s, v3 offset:%d" % (v(QF + 4 * k, 4), 64 * k))
    g.stamp(2)
    g("s_waitcnt lgkmcnt(0)")
    def refill(nm, th, atomic):
        g("s_bitcmp1_b32 s40, 0")
        g("s_cbranch_scc1 L_%sv" % nm)
        g("s_and_b32 s4, s5, 0xffffff"); g("s_add_u32 s5, s5, 0x80000")
        th = [th] * 4 if th < 10 else [int(c) for c in str(th)]
        for u in range(4): g("s_waitcnt vmcnt(%d)" % (th[u] - 1)); kload(u)
        g("s_branch L_%sd" % nm)
        g.lab("L_%sv" % nm)
        g("s_and_b32 s4, s92, 0xffffff"); g("s_add_u32 s92, s92, 0x80000")
        if atomic:
            g("s_cmp_lg_u64 s[40:41], 1")
            g("s_cbranch_scc1 L_%sn" % nm)
            g("v_mov_b32 %s, 1" % v(TK))
            g("buffer_atomic_add %s, %s, s[20:23], 0 offen sc0" % (v(TK), v(CA)))
            g.lab("L_%sn" % nm)
        for u in range(4): g("s_waitcnt vmcnt(%d)" % (th[u] - 1)); vload(u)
        g.lab("L_%sd" % nm)
        g("s_lshr_b64 s[40:41], s[40:41], 1")
    def unpack(a, b):
        g("v_lshlrev_b32 %s, 16, %s" % (v(S), v(a))); g("v_and_b32 %s, 0xffff0000, %s" % (v(S + 1), v(a)))
        g("v_lshlrev_b32 %s, 16, %s" % (v(S + 2), v(b))); g("v_and_b32 %s, 0xffff0000, %s" % (v(S + 3), v(b)))
    def midstamp(i, c):
        if o["ts"] == 2:
            g("s_cmp_lg_u32 s60, %d" % c); g("s_cbranch_scc1 L_ts%d" % i); g.stamp(i); g("s_waitcnt lgkmcnt(0)"); g.lab("L_ts%d" % i)
    g.lab("L_a")
    g("s_waitcnt vmcnt(12)")
    for k in range(4): g("ds_read_b128 %s, %s" % (v(F + 4 * k, 4), v(KA + k)))
    midstamp(8, N - 12)
    g("s_mov_b32 m0, s59")
    g("s_cmp_lg_u32 s58, 0")
    for k in range(4):
        g("s_waitcnt lgkmcnt(%d)" % (3 - k))
        g("v_mfma_f32_16x16x32_bf16 %s, %s, %s, %s" % (v(S, 4), v(F + 4 * k, 4), v(QF + 4 * k, 4), "0" if k == 0 else v(S, 4)))
    g("s_cbranch_scc1 L_aw")
    refill("a", o["thk"] or TH, False)
    g.lab("L_ai")
    g("s_add_u32 s3, s59, 0x1000"); g("s_xor_b32 s3, s3, s59"); g("s_and_b32 s3, s3, 0x3000")
    g("s_lshl_b32 s7, s58, 14"); g("s_or_b32 s3, s3, s7")
    g("s_cmp_lg_u32 s63, s58")
    g("s_cselect_b32 s7, 1, 0"); g("s_sub_u32 s63, s63, s58"); g("s_andn2_b32 s58, s7, s58")
    g("s_cselect_b32 s3, 0x4000, s3")
    g("v_cvt_pk_bf16_f32 %s, %s, %s" % (v(T0), v(S), v(S + 1)))
    g("v_cvt_pk_bf16_f32 %s, %s, %s" % (v(T1), v(S + 2), v(S + 3)))
    unpack(T0, T1)
    g("v_pk_mul_f32 %s, %s, s[56:57]" % (v(S, 2), v(S, 2)))
    g("v_pk_mul_f32 %s, %s, s[56:57]" % (v(S + 2, 2), v(S + 2, 2)))
    for k in range(4): g("v_xor_b32 %s, s3, %s" % (v(KA + k), v(KA + k)))
    g("v_cvt_pk_bf16_f32 %s, %s, %s" % (v(T0), v(S), v(S + 1)))
    g("v_cvt_pk_bf16_f32 %s, %s, %s" % (v(T1), v(S + 2), v(S + 3)))
    g("v_max3_f32 %s, %s, %s, %s" % (v(M), v(S), v(S + 1), v(M)))
    g("v_max3_f32 %s, %s, %s, %s" % (v(M), v(S + 2), v(S + 3), v(M)))
    g("s_mov_b32 exec_lo, 0x000f000f"); g("s_mov_b32 exec_hi, 0x000f000f")
    g("ds_write_b64 %s, %s" % (v(PA), v(T0, 2)))
    g("s_mov_b64 exec, -1")
    g("s_xor_b32 s59, s59, s3")
    g("v_add_u32 %s, 128, %s" % (v(PA), v(PA)))
    g("s_sub_u32 s60, s60, 1")
    g("s_cmp_lg_u32 s60, 0")
    g("s_cbranch_scc1 L_a")
    if o["ts"] == 2: g.stamp(9)
    g.red_swap("v_max_f32", [M], [T1])
    g("s_lshl_b32 s3, s61, 7")
    g("v_subrev_u32 %s, s3, %s" % (v(PA), v(PA)))
    g("v_cvt_pk_bf16_f32 %s, %s, %s" % (v(M), v(M), v(M)))
    g("s_mov_b32 s60, s61")
    if dN & 2:
        for k in range(4): g("v_xor_b32 %s, s62, %s" % (v(KA + k), v(KA + k)))
    g("v_lshlrev_b32 %s, 16, %s" % (v(M), v(M)))
    g("v_mul_f32 %s, s6, %s" % (v(NM), v(M)))
    g.lab("L_c")
    g("ds_read_b64 %s, %s" % (v(T0, 2), v(PA)))
    g("s_waitcnt vmcnt(12)")
    for n in range(8): g("ds_read_b64_tr_b16 %s, %s" % (v(VF + 2 * n, 2), v(VA + n)))
    midstamp(10, N // 2)
    g("s_mov_b32 m0, s59")
    g("s_add_u32 s3, s59, 0x1000"); g("s_xor_b32 s3, s3, s59"); g("s_and_b32 s3, s3, 0x3000")
    g("s_xor_b32 s59, s59, s3")
    g("v_add_u32 %s, 128, %s" % (v(PA), v(PA)))
    g("s_waitcnt lgkmcnt(8)")
    unpack(T0, T1)
    for e in range(4): g("v_fma_f32 %s, %s, s6, -%s" % (v(S + e), v(S + e), v(NM)))
    for e in range(4): g("v_exp_f32 %s, %s" % (v(S + e), v(S + e)))
    for n in range(8): g("v_xor_b32 %s, s3, %s" % (v(VA + n), v(VA + n)))
    g("v_cvt_pk_bf16_f32 %s, %s, %s" % (v(P), v(S), v(S + 1)))
    g("v_cvt_pk_bf16_f32 %s, %s, %s" % (v(P + 1), v(S + 2), v(S + 3)))
    g("v_add_f32 %s, %s, %s" % (v(T0), v(S), v(S + 1)))
    g("v_add_f32 %s, %s, %s" % (v(T1), v(S + 2), v(S + 3)))
    g("v_add_f32 %s, %s, %s" % (v(LS), v(LS), v(T0)))
    g("v_add_f32 %s, %s, %s" % (v(LS), v(LS), v(T1)))
    for n in range(8):
        g("s_waitcnt lgkmcnt(%d)" % (7 - n))
        g("v_mfma_f32_16x16x16_bf16 %s, %s, %s, %s" % (v(O + 4 * n, 4), v(VF + 2 * n, 2), v(P, 2), v(O + 4 * n, 4)))
    refill("c", o["thv"] or TH, True)
    g("s_sub_u32 s60, s60, 1")
    g("s_cmp_lg_u32 s60, 0")
    g("s_cbranch_scc1 L_c")
    if o["ts"] == 2: g.stamp(11)
    g.lab("L_loop")
    g("s_cmp_lg_u32 s58, 0")
    g("s_cbranch_scc1 L_k")
    g("s_waitcnt vmcnt(12)")
    g.lab("L_k")
    for k in range(4): g("ds_read_b128 %s, %s" % (v(F + 4 * k, 4), v(KA + k)))
    if o["stamps"]: g("s_add_u32 s95, s95, 1")
    g("s_mov_b32 m0, s59")
    g("s_cmp_lg_u32 s58, 0")
    for k in range(4):
        g("s_waitcnt lgkmcnt(%d)" % (3 - k))
        g("v_mfma_f32_16x16x32_bf16 %s, %s, %s, %s" % (v(S, 4), v(F + 4 * k, 4), v(QF + 4 * k, 4), "0" if k == 0 else v(S, 4)))
    g("s_cbranch_scc1 L_ki")
    g("s_waitcnt vmcnt(4)")
    g("v_readfirstlane_b32 s3, %s" % v(TK))
    if dN:
        g("s_and_b32 s7, s3, 7"); g("s_lshr_b32 s4, s3, 3"); g("s_lshl_b32 s4, s4, 5"); g("s_add_u32 s7, s7, s4"); g("s_add_u32 s7, s7, %d" % (32 * (SS - dN)))
        g("s_add_u32 s4, s3, %d" % (32 * SS - 8 * dN))
        g("s_cmp_lt_u32 s3, %d" % (8 * dN))
        g("s_cselect_b32 s3, s7, s4")
    else:
        g("s_add_u32 s3, s3, %d" % (32 * SS))
    g("s_cmp_ge_u32 s3, 1024")
    g("s_cbranch_scc1 L_last")
    g("s_lshl_b32 s3, s3, 14")
    g("s_add_u32 s3, s3, s27")
    g("s_and_b32 s4, s3, 0xffffff")
    DT = o["dynthr"]
    for u in range(4):
        if u + 4 > DT - 1: g("s_waitcnt vmcnt(%d)" % (DT - 1))
        kload(u)
    g.lab("L_ki")
    g.nop(7)
    if o["round"]:
        g("v_cvt_pk_bf16_f32 %s, %s, %s" % (v(T0), v(S), v(S + 1)))
        g("v_cvt_pk_bf16_f32 %s, %s, %s" % (v(T1), v(S + 2), v(S + 3)))
        g("v_lshlrev_b32 %s, 16, %s" % (v(S), v(T0))); g("v_and_b32 %s, 0xffff0000, %s" % (v(S + 1), v(T0)))
        g("v_lshlrev_b32 %s, 16, %s" % (v(S + 2), v(T1))); g("v_and_b32 %s, 0xffff0000, %s" % (v(S + 3), v(T1)))
    g("v_pk_mul_f32 %s, %s, s[56:57]" % (v(S, 2), v(S, 2)))
    g("v_pk_mul_f32 %s, %s, s[56:57]" % (v(S + 2, 2), v(S + 2, 2)))
    if o["round"]:
        g("v_cvt_pk_bf16_f32 %s, %s, %s" % (v(T0), v(S), v(S + 1)))
        g("v_cvt_pk_bf16_f32 %s, %s, %s" % (v(T1), v(S + 2), v(S + 3)))
        g("v_lshlrev_b32 %s, 16, %s" % (v(S), v(T0))); g("v_and_b32 %s, 0xffff0000, %s" % (v(S + 1), v(T0)))
        g("v_lshlrev_b32 %s, 16, %s" % (v(S + 2), v(T1))); g("v_and_b32 %s, 0xffff0000, %s" % (v(S + 3), v(T1)))
    g("v_max3_f32 %s, %s, %s, %s" % (v(T0), v(S), v(S + 1), v(S + 2)))
    g("v_max3_f32 %s, %s, %s, %s" % (v(T0), v(T0), v(S + 3), v(M)))
    g("v_cmp_gt_f32 vcc, %s, %s" % (v(T0), v(M)))
    g("s_cbranch_vccz L_ns")
    g.red_swap("v_max_f32", [T0], [T1])
    g("v_sub_f32 %s, %s, %s" % (v(AL), v(M), v(T0)))
    g("v_mul_f32 %s, s6, %s" % (v(NM), v(T0)))
    g("v_mul_f32 %s, s6, %s" % (v(AL), v(AL)))
    g("v_exp_f32 %s, %s" % (v(AL), v(AL)))
    g("v_mov_b32 %s, %s" % (v(M), v(T0)))
    g("v_mul_f32 %s, %s, %s" % (v(LS), v(AL), v(LS)))
    for n in range(32): g("v_mul_f32 %s, %s, %s" % (v(O + n), v(AL), v(O + n)))
    g.lab("L_ns")
    for e in range(4): g("v_fma_f32 %s, %s, s6, -%s" % (v(S + e), v(S + e), v(NM)))
    for e in range(4): g("v_exp_f32 %s, %s" % (v(S + e), v(S + e)))
    g("s_cmp_lg_u32 s58, 0")
    g("v_cvt_pk_bf16_f32 %s, %s, %s" % (v(P), v(S), v(S + 1)))
    g("v_cvt_pk_bf16_f32 %s, %s, %s" % (v(P + 1), v(S + 2), v(S + 3)))
    g("s_cbranch_scc1 L_vw")
    g("s_waitcnt vmcnt(12)")
    g.lab("L_v")
    for n in range(8): g("ds_read_b64_tr_b16 %s, %s offset:4096" % (v(VF + 2 * n, 2), v(VA + n)))
    g("s_add_u32 m0, s59, 4096")
    g("v_add_f32 %s, %s, %s" % (v(T0), v(S), v(S + 1)))
    g("v_add_f32 %s, %s, %s" % (v(T1), v(S + 2), v(S + 3)))
    g("v_add_f32 %s, %s, %s" % (v(LS), v(LS), v(T0)))
    g("v_add_f32 %s, %s, %s" % (v(LS), v(LS), v(T1)))
    g("s_cmp_lg_u32 s58, 0")
    for n in range(8):
        g("s_waitcnt lgkmcnt(%d)" % (7 - n))
        g("v_mfma_f32_16x16x16_bf16 %s, %s, %s, %s" % (v(O + 4 * n, 4), v(VF + 2 * n, 2), v(P, 2), v(O + 4 * n, 4)))
    g("s_cbranch_scc1 L_vs")
    g("v_mov_b32 %s, 1" % v(TK))
    g("buffer_atomic_add %s, %s, s[20:23], 0 offen sc0" % (v(TK), v(CA)))
    for u in range(4):
        g("s_waitcnt vmcnt(%d)" % DT)
        vload(u)
    g("s_movk_i32 s3, 0x2000")
    g.lab("L_sw")
    for r in list(range(KA, KA + 4)) + list(range(VA, VA + 8)): g("v_xor_b32 %s, s3, %s" % (v(r), v(r)))
    g("s_xor_b32 s59, s59, s3")
    g("s_branch L_loop")
    g.lab("L_aw")
    g("s_cmp_ge_u32 s26, %d" % (0 if o["nowo"] or o["womode"] == 4 else 8))
    g("s_cbranch_scc1 L_ai")
    g("s_bfe_u32 s4, s59, 0x2000c")
    if o["womode"]:
        g("s_cmp_ge_u32 s4, %d" % (4 - o["womode"])); g("s_cbranch_scc1 L_ai")
    g("s_lshl_b32 s4, s4, 14")
    for u in range(4):
        if u: g("s_add_u32 s4, s4, 3072")
        g("s_waitcnt vmcnt(%d)" % (int(str(o["thw"])[u]) - 1))
        g("buffer_load_dwordx4 %s, s[44:47], s4 offen offset:%d nt lds" % (v(WS_), u * 1024))
    g("s_branch L_ai")
    g.lab("L_last")
    g("s_mov_b32 s58, 1"); g("s_mov_b32 s60, 1")
    g("s_branch L_ki")
    g.lab("L_vw")
    g("s_cmp_lg_u32 s60, 2")
    g("s_cbranch_scc1 L_v")
    g("s_waitcnt vmcnt(0)")
    g("s_branch L_v")
    g.lab("L_vs")
    g("s_movk_i32 s3, 0x2000")
    g("s_cmp_eq_u32 s60, 1")
    g("s_mov_b32 s60, 2")
    g("s_cbranch_scc1 L_sw")
    def wo_late(lab):
        g("s_cmp_ge_u32 s26, 8")
        g("s_cbranch_scc1 %s" % lab)
        for p in range(4 - o["womode"], 4):
            g("s_add_u32 m0, s29, %d" % (0x4000 + 4096 * p))
            for u in range(4):
                g("s_mov_b32 s4, %d" % (16384 * p + 3072 * u))
                g("buffer_load_dwordx4 %s, s[44:47], s4 offen offset:%d nt lds" % (v(WS_), u * 1024))
    if o["womode"] and o["wopos"] == 0: wo_late("L_tail")
    g.lab("L_tail")
    g.stamp(3)
    g.red_swap("v_add_f32", [LS], [T1])
    g("s_mov_b32 exec_lo, 0x000f000f"); g("s_mov_b32 exec_hi, 0x000f000f")
    for n in range(8): g("ds_write_b128 %s, %s offset:%d" % (v(CW), v(O + 4 * n, 4), 64 * n))
    g("ds_write2_b32 %s, %s, %s offset0:0 offset1:8" % (v(MW), v(M), v(LS)))
    g("s_mov_b64 exec, -1")
    g("s_cmp_eq_u32 s24, 4")
    g("s_waitcnt lgkmcnt(0)")
    g("s_cbranch_scc1 L_nb2")
    g("s_barrier")
    if o["womode"] and o["wopos"] == 1: wo_late("L_nb2")
    g.lab("L_nb2")
    g.stamp(4)
    A = 24
    g("ds_read_b128 %s, %s" % (v(A, 4), v(MR)))
    g("ds_read_b128 %s, %s offset:32" % (v(A + 4, 4), v(MR)))
    for w in range(4): g("ds_read_b128 %s, %s offset:%d" % (v(A + 8 + 4 * w, 4), v(CR), 2048 * w))
    GG = 4
    g("ds_read2_b32 %s, %s offset0:0 offset1:8" % (v(GG, 2), v(GR)))
    g("ds_read2_b32 %s, %s offset0:2 offset1:10" % (v(GG + 2, 2), v(GR)))
    R = 48
    g("v_mov_b32 %s, s30" % v(R + 3))
    g("s_waitcnt lgkmcnt(7)")
    g("v_max3_f32 %s, %s, %s, %s" % (v(T0), v(A), v(A + 1), v(A + 2)))
    g("v_max_f32 %s, %s, %s" % (v(T0), v(T0), v(A + 3)))
    for w in range(4): g("v_sub_f32 %s, %s, %s" % (v(A + w), v(A + w), v(T0)))
    for w in range(4): g("v_mul_f32 %s, s6, %s" % (v(A + w), v(A + w)))
    for w in range(4): g("v_exp_f32 %s, %s" % (v(A + w), v(A + w)))
    g("s_waitcnt lgkmcnt(5)")
    g("v_mul_f32 %s, %s, %s" % (v(T1), v(A), v(A + 4)))
    for w in range(1, 4): g("v_fmac_f32 %s, %s, %s" % (v(T1), v(A + w), v(A + 4 + w)))
    for e in range(4): g("v_mul_f32 %s, %s, %s" % (v(A + 8 + e), v(A), v(A + 8 + e)))
    g("v_rcp_f32 %s, %s" % (v(T2), v(T1)))
    g("v_log_f32 %s, %s" % (v(R + 2), v(T1)))
    for w in range(1, 4):
        g("s_waitcnt lgkmcnt(%d)" % (5 - w))
        for e in range(4): g("v_fmac_f32 %s, %s, %s" % (v(A + 8 + e), v(A + w), v(A + 8 + 4 * w + e)))
    g("v_fmac_f32 %s, s6, %s" % (v(R + 2), v(T0)))
    for e in range(4): g("v_mul_f32 %s, %s, %s" % (v(A + 8 + e), v(T2), v(A + 8 + e)))
    g("v_cvt_pk_bf16_f32 %s, %s, %s" % (v(R), v(A + 8), v(A + 9)))
    g("v_cvt_pk_bf16_f32 %s, %s, %s" % (v(R + 1), v(A + 10), v(A + 11)))
    g("s_mov_b32 exec_hi, 0")
    if o["tailmode"] == 2: g("s_mov_b32 exec_lo, 0x00ff00ff")
    if o["tailmode"] == 3: g("s_mov_b32 exec_lo, 0x000f000f")
    if o["tailmode"] != 1: g("buffer_store_dwordx4 %s, %s, s[20:23], 0 offen sc1" % (v(R, 4), v(H1A)))
    if o["tailmode"] >= 2: g("s_mov_b32 exec_lo, -1")
    g("s_mov_b32 exec_hi, -1")
    g.tstamp(8)
    if o["ts"] == 1:
        for i in (9, 10, 11, 12, 13): g.stamp(i)
    g("s_cmp_ge_u32 s26, 8")
    g("s_cbranch_scc1 L_fin")
    B = 56
    g.poll("L_p1", ["buffer_load_dwordx4 %s, %s, s[20:23], 0 offen offset:%d sc1" % (v(B + 4 * u, 4), v(P1A), 256 * u) for u in range(2)],
           [B + 3, B + 7], st=9, lim=(0 if o["tailmode"] else 0x40000),
           first=["ds_read_b64_tr_b16 %s, %s offset:%d" % (v(WO + 16 * t + 2 * n, 2), v(WR + (n >> 1)), 4096 * t + 8 * (n & 1)) for t in range(4) for n in range(8)])
    g.stamp(5)
    g("v_max_f32 %s, %s, %s" % (v(T0), v(B + 2), v(B + 6)))
    U = 64
    for u in range(2):
        for e in range(2):
            g("v_lshlrev_b32 %s, 16, %s" % (v(U + 4 * u + 2 * e), v(B + 4 * u + e)))
            g("v_and_b32 %s, 0xffff0000, %s" % (v(U + 4 * u + 2 * e + 1), v(B + 4 * u + e)))
    g.red_dpp("v_max_f32", [T0], ["row_ror:4", "row_ror:8"])
    g.red_swap("v_max_f32", [T0], [T1])
    for u in range(2): g("v_sub_f32 %s, %s, %s" % (v(B + 4 * u + 2), v(B + 4 * u + 2), v(T0)))
    for u in range(2): g("v_exp_f32 %s, %s" % (v(B + 4 * u + 2), v(B + 4 * u + 2)))
    g("s_nop 0")
    for e in range(4): g("v_mul_f32 %s, %s, %s" % (v(U + e), v(B + 2), v(U + e)))
    g("v_add_f32 %s, %s, %s" % (v(B), v(B + 2), v(B + 6)))
    for e in range(4): g("v_fmac_f32 %s, %s, %s" % (v(U + e), v(B + 6), v(U + 4 + e)))
    rs = [B, U, U + 1, U + 2, U + 3]
    g.red_dpp("v_add_f32", rs, ["row_ror:4", "row_ror:8"])
    g.red_swap("v_add_f32", rs, [B + 1, U + 4, U + 5, U + 6, U + 7])
    g("v_rcp_f32 %s, %s" % (v(B), v(B)))
    g("s_cmp_eq_u32 s24, 4")
    for e in range(4): g("v_mul_f32 %s, %s, %s" % (v(U + e), v(B), v(U + e)))
    g("v_cvt_pk_bf16_f32 %s, %s, %s" % (v(U), v(U), v(U + 1)))
    g("v_cvt_pk_bf16_f32 %s, %s, %s" % (v(U + 1), v(U + 2), v(U + 3)))
    g("s_mov_b64 exec, 15")
    g("ds_write_b64 %s, %s" % (v(OW), v(U, 2)))
    g("s_mov_b64 exec, -1")
    AC, AX = 48, 40
    def acc(n): return AC + n if n < 2 else AX + n
    g("v_mov_b32 %s, 0" % v(AC + 2))
    g("s_waitcnt lgkmcnt(0)")
    g.tstamp(10)
    g("s_cbranch_scc1 L_nb3")
    g("s_barrier")
    g.lab("L_nb3")
    g.tstamp(11)
    g("ds_read_b128 %s, %s" % (v(U, 4), v(OR)))
    g("ds_read_b128 %s, %s offset:16" % (v(U + 4, 4), v(OR)))
    for t in range(4):
        if t % 2 == 0: g("s_waitcnt lgkmcnt(%d)" % (1 - t // 2))
        for hh in range(2):
            for n in range(8):
                g("v_dot2_f32_bf16 %s, %s, %s, %s" % (v(acc(n)), v(WO + 16 * t + 2 * n + hh), v(U + 2 * t + hh), "0" if t == 0 and hh == 0 else v(acc(n))))
    g.tswap("v_permlane32_swap_b32", [(acc(n), acc(n + 4)) for n in range(4)])
    g.tswap("v_permlane16_swap_b32", [(acc(n), acc(n + 2)) for n in range(2)])
    g("buffer_store_dwordx4 %s, %s, s[20:23], 0 offen sc1" % (v(AC, 4), v(H2A)))
    g.tstamp(12)
    g.poll("L_p2", ["buffer_load_dwordx4 %s, %s, s[20:23], 0 offen sc1" % (v(B, 4), v(P2A))], [B + 3], st=13, lim=(0 if o["tailmode"] else 0x40000))
    g.stamp(6)
    R0, R1 = B, B + 1
    g.red_wave("v_add_f32", [R0, R1], [T0, T1])
    g.rbf([(R0, R1)], T0)
    g("v_mul_f32 %s, %s, %s" % (v(R0), v(R0), v(GG)))
    g("v_mul_f32 %s, %s, %s" % (v(R1), v(R1), v(GG + 1)))
    g.rbf([(R0, R1)], T0)
    g("v_add_f32 %s, %s, %s" % (v(R0), v(R0), v(GG + 2)))
    g("v_add_f32 %s, %s, %s" % (v(R1), v(R1), v(GG + 3)))
    g("v_cvt_pk_bf16_f32 %s, %s, %s" % (v(R0), v(R0), v(R1)))
    g("s_mov_b64 exec, 1")
    g("buffer_store_short %s, %s, s[16:19], 0 offen" % (v(R0), v(OUTA)))
    g("buffer_store_short_d16_hi %s, %s, s[16:19], 0 offen offset:8" % (v(R0), v(OUTA)))
    g("s_or_b32 s3, s2, s24")
    g("s_cbranch_scc1 L_noep")
    g("buffer_store_dword %s, off, s[20:23], 0 offset:%d sc1" % (v(AC + 3), WS_EPOCH))
    g.lab("L_noep")
    g("s_mov_b64 exec, -1")
    if o["stamps"]:
        g("s_branch L_fin2")
    g.lab("L_fin")
    if o["stamps"]:
        g.stamp(5); g.stamp(6)
        g.lab("L_fin2")
        g.stamp(7)
        g("s_cmp_lg_u32 s24, %d" % o["sw"])
        g("s_cbranch_scc1 L_fin3")
        g.write_stamps([0, 1, 2, 3, 4, 5, 6, 7] + ([8, 9, 10, 11, 12, 13] if o["ts"] in (1, 2) else []))
        g.lab("L_fin3")
    g("s_waitcnt vmcnt(0)")
    g("s_endpgm")

    g.lab("L_aux")
    if o["auxprio"]: g("s_setprio %d" % o["auxprio"])
    X, XF, TT = 4, 8, 16
    g("v_lshlrev_b32 v3, 4, v0")
    if o["RS"] == 1:
        if o["wqrot"]: g("s_add_u32 s3, s26, s25"); g("s_and_b32 s3, s3, 7")
        else: g("s_and_b32 s3, s26, 7")
        g("s_lshl_b32 s3, s3, 6")
        g("s_lshr_b32 s7, s26, 3"); g("s_lshl_b32 s7, s7, 4"); g("s_add_u32 s27, s3, s7")
        g("s_lshl_b32 s3, s25, 9"); g("s_add_u32 s3, s3, s27"); g("s_lshl_b32 s3, s3, 1")
        g("v_lshrrev_b32 %s, 1, v0" % v(TT)); g("v_lshlrev_b32 %s, 13, %s" % (v(TT), v(TT)))
        g("v_and_b32 %s, 1, v0" % v(TT + 1)); g("v_lshl_or_b32 %s, %s, 4, %s" % (v(TT), v(TT + 1), v(TT)))
        g("v_add_u32 %s, s3, %s" % (v(TT), v(TT)))
    RS = o["RS"]
    if RS > 1:
        assert o["ffnlate"] and o["wqmode"] == 0
        lg = RS.bit_length() - 1
        g("s_and_b32 s3, s26, 7"); g("s_lshl_b32 s27, s3, 6")
        g("s_lshr_b32 s63, s26, 3")
        if RS == 2:
            g("s_and_b32 s7, s63, 1"); g("s_lshl_b32 s7, s7, 5"); g("s_add_u32 s27, s27, s7"); g("s_lshr_b32 s63, s63, 1")
        g("s_lshl_b32 s3, s25, 9"); g("s_add_u32 s3, s3, s27"); g("s_lshl_b32 s3, s3, 1")
        g("s_lshl_b32 s7, s63, %d" % (22 - lg)); g("s_add_u32 s3, s3, s7")
        g("v_lshrrev_b32 %s, %d, v0" % (v(TT), 1 + lg)); g("v_lshlrev_b32 %s, 13, %s" % (v(TT), v(TT)))
        g("v_and_b32 %s, %d, v0" % (v(TT + 1), 2 * RS - 1))
        if RS == 2: g("v_lshrrev_b32 %s, 4, v0" % v(TT + 8)); g("v_and_b32 %s, 2, %s" % (v(TT + 8), v(TT + 8)))
        else: g("v_lshrrev_b32 %s, 3, v0" % v(TT + 8)); g("v_and_b32 %s, 2, %s" % (v(TT + 8), v(TT + 8)))
        g("v_xor_b32 %s, %s, %s" % (v(TT + 1), v(TT + 1), v(TT + 8)))
        g("v_lshl_or_b32 %s, %s, 4, %s" % (v(TT), v(TT + 1), v(TT)))
        g("v_add_u32 %s, s3, %s" % (v(TT), v(TT)))
        if RS == 4: g("v_xor_b32 %s, 64, %s" % (v(TT + 8), v(TT)))
    if o["wqmode"] == 1:
        g("s_lshl_b32 s3, s2, 14"); g("v_add_u32 %s, s3, v3" % v(TT))
    if o["wqmode"] == 2:
        g("s_and_b32 s3, s2, 63"); g("s_lshl_b32 s3, s3, 7"); g("s_lshr_b32 s7, s2, 6"); g("s_lshl_b32 s7, s7, 20"); g("s_add_u32 s3, s3, s7")
        g("v_lshrrev_b32 %s, 3, v0" % v(TT)); g("v_lshlrev_b32 %s, 13, %s" % (v(TT), v(TT)))
        g("v_and_b32 %s, 7, v0" % v(TT + 1)); g("v_lshl_or_b32 %s, %s, 4, %s" % (v(TT), v(TT + 1), v(TT)))
        g("v_add_u32 %s, s3, %s" % (v(TT), v(TT)))
    if o["wqmode"] == 3:
        g("s_and_b32 s3, s2, 127"); g("s_and_b32 s7, s3, 7"); g("s_lshr_b32 s3, s3, 4"); g("s_lshl_b32 s3, s3, 3"); g("s_add_u32 s3, s3, s7"); g("s_lshl_b32 s3, s3, 7")
        g("s_bfe_u32 s7, s2, 0x10003"); g("s_lshl_b32 s7, s7, 6"); g("s_add_u32 s3, s3, s7")
        g("s_lshr_b32 s7, s2, 7"); g("s_lshl_b32 s7, s7, 21"); g("s_add_u32 s3, s3, s7")
        g("v_lshrrev_b32 %s, 2, v0" % v(TT)); g("v_lshlrev_b32 %s, 13, %s" % (v(TT), v(TT)))
        g("v_and_b32 %s, 3, v0" % v(TT + 1)); g("v_lshl_or_b32 %s, %s, 4, %s" % (v(TT), v(TT + 1), v(TT)))
        g("v_add_u32 %s, s3, %s" % (v(TT), v(TT)))
    g("v_mov_b32 %s, %d" % (v(TT + 2), TAGA)); g("v_mov_b32 %s, 0" % v(TT + 3))
    g("ds_write_b32 %s, %s offset:4" % (v(TT + 2), v(TT + 3)))
    g("s_waitcnt lgkmcnt(0)")
    if o["ts"] == 3: g.stamp(11)
    if o["b0"] == 3: g("s_barrier")
    g.srd(8, 32, 1024)
    g.srd(12, 38, 512 * 8192)
    g.srd(20, 54, WS_SIZE)
    g("buffer_load_dwordx4 %s, v3, s[8:11], 0 offen" % v(X, 4))
    g("buffer_load_dword %s, off, s[20:23], 0 offset:%d sc1" % (v(TT + 1), WS_EPOCH))
    g("s_mov_b32 s4, 0")
    for u in range(16):
        g("s_mov_b32 m0, %d" % (STAGE + u * 1024))
        if u: g("s_add_u32 s4, s4, %d" % ((0x40000 // RS, 1024, 0x10000, 0x20000)[o["wqmode"]]))
        else: g("s_nop 0")
        g("buffer_load_dwordx4 %s, s[12:15], s4 offen%s lds" % (v(TT + 8 if RS == 4 and u & 1 else TT), " nt" if o["wqnt"] else ""))
    if o["b0"] != 3: g("s_barrier")
    g("v_and_b32 %s, 3, v0" % v(TT + 2)); g("s_lshl_b32 s3, s28, 4"); g("v_lshl_add_u32 %s, %s, 2, s3" % (v(TT + 2), v(TT + 2)))
    g("buffer_load_dword %s, %s, s[8:11], 0 offen" % (v(TT + 2), v(TT + 2)))
    g("s_mul_i32 s3, s25, %d" % (NP * o["cstride"])); g("s_add_u32 s3, s3, %d" % WS_CNT)
    g("v_mul_u32_u24 %s, %d, v0" % (v(TT + 3), o["cstride"])); g("v_add_u32 %s, s3, %s" % (v(TT + 3), v(TT + 3))); g("v_mov_b32 %s, 0" % v(TT + 4))
    g("s_cmp_eq_u32 s26, 0"); g("s_cselect_b32 vcc_lo, %d, 0" % ((1 << NP) - 1)); g("s_mov_b32 vcc_hi, 0")
    g("v_mov_b32 %s, 0x7ffffff0" % v(TT + 5))
    g("v_cndmask_b32 %s, %s, %s, vcc" % (v(TT + 3), v(TT + 5), v(TT + 3)))
    g("buffer_store_dword %s, %s, s[20:23], 0 offen sc1" % (v(TT + 4), v(TT + 3)))
    g("s_waitcnt vmcnt(18)")
    g.stamp(13)
    g("v_readfirstlane_b32 s30, %s" % v(TT + 1))
    for e in range(4):
        g("v_lshlrev_b32 %s, 16, %s" % (v(XF + 2 * e), v(X + e)))
        g("v_and_b32 %s, 0xffff0000, %s" % (v(XF + 2 * e + 1), v(X + e)))
    g("s_mul_i32 s30, s30, 0x9e3779b1")
    g("s_add_u32 s30, s30, 0x7f4a7c15")
    a, b, c_ = TT + 5, TT + 6, TT + 7
    g("v_add_f32 %s, %s, %s" % (v(a), v(XF), v(XF + 1)))
    for e in range(2, 8): g("v_add_f32 %s, %s, %s" % (v(a), v(a), v(XF + e)))
    g.red_wave("v_add_f32", [a], [b])
    g("v_mul_f32 %s, %s, %s" % (v(a), hx(f2u(1.0 / 512)), v(a)))
    g("v_sub_f32 %s, %s, %s" % (v(c_), v(XF), v(a)))
    g("v_mul_f32 %s, %s, %s" % (v(b), v(c_), v(c_)))
    for e in range(1, 8):
        g("v_sub_f32 %s, %s, %s" % (v(c_), v(XF + e), v(a)))
        g("v_fmac_f32 %s, %s, %s" % (v(b), v(c_), v(c_)))
    g.red_wave("v_add_f32", [b], [c_])
    g("v_mul_f32 %s, %s, %s" % (v(b), hx(f2u(1.0 / 512)), v(b)))
    g.rbf([(a, b)], c_)
    g("v_add_f32 %s, %s, %s" % (v(b), hx(f2u(1e-5)), v(b)))
    g.rbf([(b, b)], c_)
    g("v_sqrt_f32 %s, %s" % (v(b), v(b)))
    for e in range(8): g("v_sub_f32 %s, %s, %s" % (v(XF + e), v(XF + e), v(a)))
    g.rbf([(b, b)], c_)
    g("v_rcp_f32 %s, %s" % (v(a), v(b)))
    g.rbf([(XF + 2 * e, XF + 2 * e + 1) for e in range(4)], c_)
    for e in range(8):
        g("v_mul_f32 %s, %s, %s" % (v(c_), v(XF + e), v(a)))
        g("v_fma_f32 %s, -%s, %s, %s" % (v(XF + e), v(c_), v(b), v(XF + e)))
        g("v_fma_f32 %s, %s, %s, %s" % (v(XF + e), v(XF + e), v(a), v(c_)))
    for e in range(4): g("v_cvt_pk_bf16_f32 %s, %s, %s" % (v(X + e), v(XF + 2 * e), v(XF + 2 * e + 1)))
    g("v_add_u32 %s, %d, v3" % (v(a), XN))
    g("ds_write_b128 %s, %s" % (v(a), v(X, 4)))
    W1, W2 = 96, 160
    fm = o["ffnmode"]
    def ffn_loads():
        g("v_lshrrev_b32 %s, 3, v0" % v(a)); g("v_and_b32 %s, 7, v0" % v(b))
        g("s_cmp_eq_u32 s60, 2")
        g("s_cbranch_scc1 L_rb")
        g.srd(8, 44, 512 * 3584)
        g.srd(16, 46, 512 * 3584)
        g("s_mul_i32 s3, s62, %d" % (128 * 3584)); g("s_lshl_b32 s7, s61, 7"); g("s_add_u32 s3, s3, s7")
        g("s_movk_i32 s7, 3584")
        g("s_branch L_rj")
        g.lab("L_rb")
        g.srd(8, 48, 1792 * 1024)
        g.srd(16, 48, 1792 * 1024 - 128 * 1024, "0x20000")
        g("s_lshl_b32 s3, s61, 18"); g("s_lshl_b32 s7, s25, 7"); g("s_add_u32 s3, s3, s7")
        g("s_movk_i32 s7, 1024")
        g.lab("L_rj")
        g("v_lshlrev_b32 %s, 1, %s" % (v(a), v(a))); g("v_mul_u32_u24 %s, s7, %s" % (v(c_), v(a)))
        g("v_lshl_add_u32 %s, %s, 4, %s" % (v(c_), v(b), v(c_))); g("v_add_u32 %s, s3, %s" % (v(c_), v(c_)))
        g("v_add_u32 %s, s7, %s" % (v(a), v(c_)))
        g("s_lshl_b32 s7, s7, 4")
        g("s_mov_b32 s4, 0")
        for k in range(8):
            if k: g("s_add_u32 s4, s4, s7")
            for i in range(2):
                g("buffer_load_dwordx4 %s, %s, s[8:11], s4 offen nt" % (v(W1 + 8 * k + 4 * i, 4), v(a if i else c_)))
                g("buffer_load_dwordx4 %s, %s, s[16:19], s4 offen nt" % (v(W2 + 8 * k + 4 * i, 4), v(a if i else c_)))
    g("s_mov_b32 s60, 0")
    if not o["noffn"]:
        g("s_sub_u32 s61, s26, 22"); g("s_cmp_lt_u32 s61, 7"); g("s_cselect_b32 s60, 2, 0")
        g("s_sub_u32 s3, s26, 8"); g("s_cmp_lt_u32 s3, 14")
        g("s_cbranch_scc0 L_nra")
        g("s_mul_i32 s7, s25, 14"); g("s_add_u32 s3, s3, s7")
        g("s_mov_b32 s60, 1"); g("s_lshr_b32 s61, s3, 2"); g("s_and_b32 s62, s3, 3")
        g.lab("L_nra")
    if o["ffnlate"]:
        if RS == 1: g("s_waitcnt vmcnt(0)")
    else:
        g("s_cmp_eq_u32 s60, 0")
        g("s_cbranch_scc1 L_nofl")
        ffn_loads()
        g("s_waitcnt vmcnt(32)")
        g("s_branch L_fl")
        g.lab("L_nofl")
        g("s_waitcnt vmcnt(0)")
        g.lab("L_fl")
    if RS == 1:
        XA, WA, Dq = 24, 25, 28
        FB = 32
        g("v_lshlrev_b32 %s, 4, v1" % v(XA)); g("v_add_u32 %s, %d, %s" % (v(XA), XN, v(XA)))
        g("v_lshrrev_b32 %s, 2, v2" % v(a))
        g("v_lshl_add_u32 %s, v1, 3, %s" % (v(a), v(a)))
        g("v_and_b32 %s, 3, v0" % v(b))
        g("v_lshlrev_b32 %s, 5, %s" % (v(WA), v(a)))
        g("v_lshl_or_b32 %s, %s, 3, %s" % (v(WA), v(b), v(WA)))
        g("v_add_u32 %s, %d, %s" % (v(WA), STAGE, v(WA)))
        def rd(grp):
            for k in range(4):
                t = 4 * grp + k; r0 = FB + 32 * (grp & 1) + 8 * k
                g("ds_read_b128 %s, %s offset:%d" % (v(r0, 4), v(XA), 64 * t))
                g("ds_read_b64_tr_b16 %s, %s offset:%d" % (v(r0 + 4, 2), v(WA), 1024 * t))
                g("ds_read_b64_tr_b16 %s, %s offset:%d" % (v(r0 + 6, 2), v(WA), 1024 * t + 128))
        g("s_waitcnt lgkmcnt(0)")
        g.stamp(8)
        rd(0)
        for grp in range(4):
            g("s_waitcnt lgkmcnt(0)")
            if grp < 3: rd(grp + 1)
            for k in range(4):
                r0 = FB + 32 * (grp & 1) + 8 * k
                g("v_mfma_f32_16x16x32_bf16 %s, %s, %s, %s" % (v(Dq, 4), v(r0 + 4, 4), v(r0, 4), "0" if grp == 0 and k == 0 else v(Dq, 4)))
        g("s_lshl_b32 s3, s25, 11"); g("s_add_u32 s4, s3, %d" % WS_Q)
        g("s_lshl_b32 s3, s27, 2"); g("s_add_u32 s3, s3, s4")
        g("v_lshlrev_b32 %s, 4, v1" % v(a))
        g("v_mov_b32 %s, s30" % v(FB + 1)); g("v_mov_b32 %s, s30" % v(FB + 3))
        g.nop(2)
        g("v_cvt_pk_bf16_f32 %s, %s, %s" % (v(FB), v(Dq), v(Dq + 1)))
        g("v_cvt_pk_bf16_f32 %s, %s, %s" % (v(FB + 2), v(Dq + 2), v(Dq + 3)))
        g("s_mov_b32 exec_lo, 0x00010001"); g("s_mov_b32 exec_hi, 0x00010001")
        g("buffer_store_dwordx4 %s, %s, s[20:23], s3 offen sc1" % (v(FB, 4), v(a)))
        g("s_mov_b64 exec, -1")
        g.stamp(9)
        QB = 40
        g.poll("L_pq", ["buffer_load_dwordx4 %s, v3, s[20:23], s4 offen offset:%d sc1" % (v(QB + 4 * u, 4), 1024 * u) for u in range(2)],
               [QB + 1, QB + 3, QB + 5, QB + 7])
        g.stamp(10)
        g("v_lshlrev_b32 %s, 3, v0" % v(a)); g("v_add_u32 %s, %d, %s" % (v(a), QA, v(a)))
        g("v_mov_b32 %s, %s" % (v(QB + 1), v(QB + 2))); g("v_mov_b32 %s, %s" % (v(QB + 5), v(QB + 6)))
        g("v_mov_b32 %s, %d" % (v(b), TAGA))
        g("ds_write_b64 %s, %s" % (v(a), v(QB, 2)))
        g("ds_write_b64 %s, %s offset:512" % (v(a), v(QB + 4, 2)))
        g("v_mov_b32 %s, s30" % v(QB + 2)); g("v_mov_b32 %s, 1" % v(QB + 3))
        g("ds_write_b64 %s, %s" % (v(b), v(QB + 2, 2)))
    else:
        XA, WA, Dq, XF_, WF = 24, 25, 32, 48, 96
        KS_ = 16 // RS; pitch = 32 * RS
        g("s_lshl_b32 s3, s63, %d" % (10 - lg)); g("s_add_u32 s3, s3, %d" % XN)
        g("v_lshl_add_u32 %s, v1, 4, s3" % v(XA))
        g("v_lshrrev_b32 %s, 2, v2" % v(a))
        g("v_lshl_add_u32 %s, v1, 3, %s" % (v(c_), v(a)))
        g("v_and_b32 %s, 3, v0" % v(b))
        g("v_lshlrev_b32 %s, %d, %s" % (v(WA), 5 + lg, v(c_)))
        g("v_lshl_or_b32 %s, %s, 3, %s" % (v(WA), v(b), v(WA)))
        g("v_and_b32 %s, 1, v1" % v(b))
        if RS == 4: g("v_lshrrev_b32 %s, 1, %s" % (v(a), v(a))); g("v_lshl_or_b32 %s, %s, 1, %s" % (v(b), v(b), v(a)))
        g("v_lshl_or_b32 %s, %s, 5, %s" % (v(WA), v(b), v(WA)))
        g("v_add_u32 %s, %d, %s" % (v(WA), STAGE, v(WA)))
        for ct in range(1, RS): g("v_xor_b32 %s, %d, %s" % (v(WA + ct), 32 * ct, v(WA)))
        g("s_waitcnt lgkmcnt(0)")
        for k in range(KS_): g("ds_read_b128 %s, %s offset:%d" % (v(XF_ + 4 * k, 4), v(XA), 64 * k))
        QF_ = o["qfull"]
        g("s_mul_i32 s4, s25, %d" % ((2048 << QF_) * RS)); g("s_add_u32 s4, s4, %d" % WS_Q)
        g("s_lshl_b32 s3, s63, %d" % (11 + QF_)); g("s_add_u32 s3, s3, s4"); g("s_lshl_b32 s7, s27, %d" % (2 + QF_)); g("s_add_u32 s3, s3, s7")
        MK = [40, 34, 36, 42]
        if QF_:
            g("v_lshrrev_b32 %s, 1, v2" % v(b)); g("v_and_b32 %s, 1, v2" % v(c_))
            g("v_lshlrev_b32 %s, 5, v1" % v(a)); g("v_lshl_or_b32 %s, %s, 7, %s" % (v(a), v(b), v(a))); g("v_lshl_or_b32 %s, %s, 4, %s" % (v(a), v(c_), v(a)))
            for ct in range(1, RS): g("v_cmp_eq_u32 %s, %d, %s" % (s(MK[ct], 2), ct, v(b)))
            g("v_cmp_eq_u32 %s, 1, %s" % (s(MK[0], 2), v(c_)))
        else:
            if not o["nib"]:
                g("v_lshlrev_b32 %s, 4, v1" % v(a)); g("v_lshl_or_b32 %s, v2, 6, %s" % (v(a), v(a)))
                g("s_mov_b32 s56, 0x07060503"); g("s_mov_b32 s57, 0x07060502"); g("s_mov_b32 s58, 0x07060501")
            for ct in range(1, RS): g("v_cmp_eq_u32 %s, %d, v2" % (s(MK[ct], 2), ct))
            NP_ = NC_ = 80
            if o["nib"]:
                assert RS == 4
                g("v_lshlrev_b32 %s, 6, v1" % v(a)); g("v_lshl_or_b32 %s, v2, 4, %s" % (v(a), v(a)))
                g("s_mul_i32 s59, s30, 0x85ebca6b"); g("s_xor_b32 s59, s59, 0x5a5aa5a5"); g("s_mov_b32 s56, -16")
                g("v_and_b32 %s, 2, v0" % v(NC_ + 2)); g("v_and_b32 %s, 1, v0" % v(NC_ + 1))
                g("v_cmp_eq_u32 vcc, 2, %s" % v(NC_ + 2))
                g("v_mov_b32 %s, s30" % v(c_)); g("v_mov_b32 %s, s59" % v(b))
                g("v_lshlrev_b32 %s, 4, %s" % (v(NC_ + 1), v(NC_ + 1)))
                g("v_cndmask_b32 %s, %s, %s, vcc" % (v(NC_), v(c_), v(b)))
                g("v_lshrrev_b32 %s, %s, %s" % (v(NC_), v(NC_ + 1), v(NC_)))
                for e in (3, 2, 1, 0): g("v_bfe_u32 %s, %s, %d, 4" % (v(NC_ + e), v(NC_), 4 * e))
        g("s_waitcnt vmcnt(0) lgkmcnt(0)")
        g.stamp(8)
        seq = [(k, ct) for k in range(KS_) for ct in range(RS)]
        def rd2(j):
            k, ct = seq[j]
            g("ds_read_b64_tr_b16 %s, %s offset:%d" % (v(WF + 4 * j, 2), v(WA + ct), 32 * pitch * k))
            g("ds_read_b64_tr_b16 %s, %s offset:%d" % (v(WF + 4 * j + 2, 2), v(WA + ct), 32 * pitch * k + 4 * pitch))
        AH = 6
        for j in range(AH): rd2(j)
        for j in range(16):
            if j + AH < 16: rd2(j + AH)
            g("s_waitcnt lgkmcnt(%d)" % (2 * min(AH, 15 - j)))
            k, ct = seq[j]
            g("v_mfma_f32_16x16x32_bf16 %s, %s, %s, %s" % (v(Dq + 4 * ct, 4), v(WF + 4 * j, 4), v(XF_ + 4 * k, 4), "0" if k == 0 else v(Dq + 4 * ct, 4)))
        g.nop(8 if RS == 2 else 5)
        for ct in range(1, RS):
            for e in range(4): g("v_cndmask_b32 %s, %s, %s, %s" % (v(Dq + e), v(Dq + e), v(Dq + 4 * ct + e), s(MK[ct], 2)))
        if QF_:
            for e in range(2): g("v_cndmask_b32 %s, %s, %s, %s" % (v(Dq + e), v(Dq + e), v(Dq + 2 + e), s(MK[0], 2)))
        elif o["nib"]:
            for e in range(4): g("v_add_u32 %s, 8, %s" % (v(Dq + e), v(Dq + e)))
            for e in range(4): g("v_and_or_b32 %s, %s, s56, %s" % (v(Dq + e), v(Dq + e), v(NP_ + e)))
        else:
            for e in range(4): g("v_add_u32 %s, 0x80, %s" % (v(Dq + e), v(Dq + e)))
            for e in range(3): g("v_perm_b32 %s, %s, %s, %s" % (v(Dq + e), v(Dq + e), v(Dq + 3), s(56 + e)))
        if QF_ or not o["nib"]: g("v_mov_b32 %s, s30" % v(Dq + 3))
        m16 = (1 << (RS << QF_)) - 1
        g("s_mov_b32 exec_lo, %s" % hx(m16 | m16 << 16)); g("s_mov_b32 exec_hi, %s" % hx(m16 | m16 << 16))
        g("buffer_store_dwordx4 %s, %s, s[20:23], s3 offen sc1" % (v(Dq, 4), v(a)))
        g("s_mov_b64 exec, -1")
        g.stamp(9)
        if QF_:
            QB = 48; NL = 4 * RS
            sb = ["s4", "s5", "s7", "s63"]
            for h in range(1, RS): g("s_add_u32 %s, s4, %d" % (sb[h], 4096 * h))
            g("v_lshlrev_b32 %s, 2, v0" % v(a)); g("v_add_u32 %s, %d, %s" % (v(a), QA, v(a)))
            g("v_mov_b32 %s, %d" % (v(b), TAGA))
            g("v_mov_b32 %s, s30" % v(Dq)); g("v_mov_b32 %s, 1" % v(Dq + 1))
            g.poll("L_pq", ["buffer_load_dwordx4 %s, v3, s[20:23], %s offen offset:%d sc1" % (v(QB + 4 * u, 4), sb[u >> 2], 1024 * (u & 3)) for u in range(NL)],
                   [QB + 4 * u + 3 for u in range(NL)], o["pqs"])
            g.stamp(10)
            st = 16
            while st < 16 * RS:
                for r0 in range(QB, QB + 16 * RS, 2 * st):
                    for j in range(4):
                        for e in range(2): g("v_add_f32 %s, %s, %s" % (v(r0 + 4 * j + e), v(r0 + 4 * j + e), v(r0 + st + 4 * j + e)))
                st *= 2
            for j in range(4): g("v_cvt_pk_bf16_f32 %s, %s, %s" % (v(QB + 4 * j), v(QB + 4 * j), v(QB + 4 * j + 1)))
            g("ds_write2st64_b32 %s, %s, %s offset0:0 offset1:1" % (v(a), v(QB), v(QB + 4)))
            g("ds_write2st64_b32 %s, %s, %s offset0:2 offset1:3" % (v(a), v(QB + 8), v(QB + 12)))
        else:
            QB = 48
            g("s_add_u32 s5, s4, 4096")
            if o["nib"]:
                g("v_and_b32 %s, 3, v0" % v(b)); g("v_lshlrev_b32 %s, 5, %s" % (v(b), v(b))); g("v_lshl_or_b32 %s, v1, 7, %s" % (v(b), v(b)))
                g("v_bfe_u32 %s, v0, 2, 2" % v(a)); g("v_lshl_or_b32 %s, %s, 3, %s" % (v(a), v(a), v(b))); g("v_add_u32 %s, %d, %s" % (v(a), QA, v(a)))
            else:
                g("s_mov_b32 s56, 0x04000c0c"); g("s_mov_b32 s57, 0x0706000c"); g("s_mov_b32 s58, 0xffffff00")
                g("v_lshlrev_b32 %s, 3, v0" % v(a)); g("v_add_u32 %s, %d, %s" % (v(a), QA, v(a)))
            g("v_mov_b32 %s, %d" % (v(b), TAGA))
            g("v_mov_b32 %s, s30" % v(Dq)); g("v_mov_b32 %s, 1" % v(Dq + 1))
            lds_ = ["buffer_load_dwordx4 %s, v3, s[20:23], %s offen offset:%d sc1" % (v(QB + 4 * u, 4), "s4" if u < 4 else "s5", 1024 * (u & 3)) for u in range(2 * RS)]
            if o["nib"]:
                g("s_mov_b32 s31, 0x40000")
                g("s_waitcnt vmcnt(0)")
                g.lab("L_pq")
                for l_ in lds_: g(l_)
                for u in range(2 * RS):
                    g("s_waitcnt vmcnt(%d)" % (2 * RS - 1 - u))
                    for e in range(4): g("v_xor_b32 %s, %s, %s" % (v(QB + 4 * u + e), v(NC_ + e), v(QB + 4 * u + e)))
                    if u == 0: g("v_or_b32 %s, %s, %s" % (v(c_), v(QB), v(QB + 1)))
                    else: g("v_or3_b32 %s, %s, %s, %s" % (v(c_), v(QB + 4 * u), v(QB + 4 * u + 1), v(c_)))
                    g("v_or3_b32 %s, %s, %s, %s" % (v(c_), v(QB + 4 * u + 2), v(QB + 4 * u + 3), v(c_)))
                g("v_and_b32 %s, 15, %s" % (v(c_), v(c_)))
                g("v_cmp_ne_u32 vcc, 0, %s" % v(c_))
                g("s_cbranch_vccz L_pq_done")
                if o["pqs"]: g("s_sleep %d" % o["pqs"])
                g("s_sub_u32 s31, s31, 1")
                g("s_cbranch_scc0 L_pq")
                g.lab("L_pq_done")
            else: g.poll("L_pq", lds_, [QB + 4 * u + 3 for u in range(2 * RS)], o["pqs"])
            g.stamp(10)
            for u in range(0 if o["nib"] else 2 * RS):
                r = QB + 4 * u
                g("v_perm_b32 %s, %s, %s, s56" % (v(r + 3), v(r), v(r + 1)))
                g("v_perm_b32 %s, %s, %s, s57" % (v(r + 3), v(r + 3), v(r + 2)))
                for e in range(3): g("v_and_b32 %s, s58, %s" % (v(r + e), v(r + e)))
            st = 8
            while st < 8 * RS:
                for r0 in range(QB, QB + 8 * RS, 2 * st):
                    for e in range(8): g("v_add_f32 %s, %s, %s" % (v(r0 + e), v(r0 + e), v(r0 + st + e)))
                st *= 2
            for e in range(4): g("v_cvt_pk_bf16_f32 %s, %s, %s" % (v(QB + e), v(QB + 2 * e), v(QB + 2 * e + 1)))
            g("ds_write_b64 %s, %s" % (v(a), v(QB, 2)))
            g("ds_write_b64 %s, %s offset:512" % (v(a), v(QB + 2, 2)))
        g("ds_write_b64 %s, %s" % (v(b), v(Dq, 2)))
    if o["fprio"] >= 0: g("s_setprio %d" % o["fprio"])
    g("s_cmp_eq_u32 s60, 0")
    g("s_cbranch_scc1 L_nofp")
    if fm == 2: g("s_branch L_nofp")
    XP, XQ, AG, AU, PT = 24, 32, 40, 48, 56
    if o["ffnlate"]: ffn_loads()
    g("v_lshrrev_b32 %s, 3, v0" % v(a)); g("v_lshlrev_b32 %s, 2, %s" % (v(a), v(a)))
    g("s_lshl_b32 s3, s62, 8"); g("s_add_u32 s3, s3, %d" % XN); g("s_mov_b32 s7, s3")
    g("s_cmp_eq_u32 s60, 1")
    g("s_cbranch_scc1 L_fc")
    g("s_mul_i32 s4, s61, %d" % CSA); g("s_add_u32 s4, s4, %d" % WS_FA)
    g("s_add_u32 s5, s4, 4096")
    FA_ = 56
    plim = {4: -1, 5: 2, 6: -1, 7: -1, 8: -1, 10: -1}.get(fm, 0x40000)
    if o["cpoll"]:
        g("v_lshlrev_b32 %s, 9, v0" % v(b))
        g("s_mov_b64 exec, 0xffff")
        g.poll("L_pc", ["buffer_load_dwordx4 %s, %s, s[20:23], s4 offen offset:496 sc1" % (v(FA_, 4), v(b))], [FA_ + 3], o["cpoll"], lim=plim)
        g("s_mov_b64 exec, -1")
    g.poll("L_pa", ["buffer_load_dwordx4 %s, v3, s[20:23], %s offen offset:%d sc1" % (v(FA_ + 4 * u, 4), "s4" if u < 4 else "s5", 1024 * (u & 3)) for u in range(8)],
           [FA_ + 4 * u + 3 for u in range(8)], o["fsleep"], lim=plim)
    if o["ts"] != 3: g.stamp(11)
    g("s_mov_b32 s3, 0x04000c0c"); g("s_mov_b32 s7, 0x0706000c")
    for u in range(8):
        r = FA_ + 4 * u
        g("v_perm_b32 %s, %s, %s, s3" % (v(r + 3), v(r), v(r + 1)))
        g("v_perm_b32 %s, %s, %s, s7" % (v(r + 3), v(r + 3), v(r + 2)))
        for e in range(3): g("v_and_b32 %s, 0xffffff00, %s" % (v(r + e), v(r + e)))
    for cb in range(4):
        for e in range(4): g("v_add_f32 %s, %s, %s" % (v(FA_ + 8 * cb + e), v(FA_ + 8 * cb + e), v(FA_ + 8 * cb + 4 + e)))
    g.tswap("v_permlane32_swap_b32", [(FA_ + 8 * cb + e, FA_ + 8 * cb + 16 + e) for cb in range(2) for e in range(4)])
    GT = [FA_, FA_ + 2, FA_ + 8, FA_ + 10]; UP = [x + 1 for x in GT]; E = [FA_ + 4, FA_ + 5, FA_ + 6, FA_ + 7]
    g.rbf(list(zip(GT, UP)), c_)
    k1 = -2.0 * math.sqrt(2.0 / math.pi) * LOG2E
    for j in range(4): g("v_mul_f32 %s, %s, %s" % (v(E[j]), v(GT[j]), v(GT[j])))
    for j in range(4): g("v_mul_f32 %s, %s, %s" % (v(E[j]), hx(f2u(0.044715)), v(E[j])))
    for j in range(4): g("v_add_f32 %s, 1.0, %s" % (v(E[j]), v(E[j])))
    for j in range(4): g("v_mul_f32 %s, %s, %s" % (v(E[j]), v(E[j]), v(GT[j])))
    for j in range(4): g("v_mul_f32 %s, %s, %s" % (v(E[j]), hx(f2u(k1)), v(E[j])))
    for j in range(4): g("v_exp_f32 %s, %s" % (v(E[j]), v(E[j])))
    for j in range(4): g("v_add_f32 %s, 1.0, %s" % (v(E[j]), v(E[j])))
    for j in range(4): g("v_rcp_f32 %s, %s" % (v(E[j]), v(E[j])))
    for j in range(4): g("v_mul_f32 %s, %s, %s" % (v(E[j]), v(E[j]), v(GT[j])))
    g.rbf([(E[0], E[1]), (E[2], E[3])], c_)
    for j in range(4): g("v_mul_f32 %s, %s, %s" % (v(E[j]), v(E[j]), v(UP[j])))
    g("v_cvt_pk_bf16_f32 %s, %s, %s" % (v(E[0]), v(E[0]), v(E[1])))
    g("v_cvt_pk_bf16_f32 %s, %s, %s" % (v(E[2]), v(E[2]), v(E[3])))
    g("v_lshrrev_b32 %s, 5, v0" % v(c_)); g("v_and_b32 %s, 31, v0" % v(b)); g("v_lshlrev_b32 %s, 2, %s" % (v(b), v(b)))
    g("v_lshl_add_u32 %s, %s, 8, %s" % (v(c_), v(c_), v(b))); g("v_add_u32 %s, %d, %s" % (v(c_), HA, v(c_)))
    g("ds_write2_b32 %s, %s, %s offset0:0 offset1:32" % (v(c_), v(E[0]), v(E[2])))
    g("s_mov_b32 s3, %d" % HA); g("s_mov_b32 s7, %d" % (HA + 256))
    g.lab("L_fc")
    g("v_add_u32 %s, s3, %s" % (v(b), v(a))); g("v_add_u32 %s, s7, %s" % (v(c_), v(a)))
    for k in range(8): g("ds_read_b32 %s, %s offset:%d" % (v(XP + k), v(b), 32 * k))
    for k in range(8): g("ds_read_b32 %s, %s offset:%d" % (v(XQ + k), v(c_), 32 * k))
    for e in range(16): g("v_mov_b32 %s, 0" % v(AG + e))
    g("s_mov_b32 s3, 0x05040100"); g("s_mov_b32 s7, 0x07060302")
    def pairs(W, ACC, XPr):
        for k in range(8):
            for e in range(4):
                ra, rb_ = W + 8 * k + e, W + 8 * k + 4 + e
                g("v_perm_b32 %s, %s, %s, s3" % (v(PT + 2 * (e & 1)), v(rb_), v(ra)))
                g("v_perm_b32 %s, %s, %s, s7" % (v(PT + 2 * (e & 1) + 1), v(rb_), v(ra)))
                g("v_dot2_f32_bf16 %s, %s, %s, %s" % (v(ACC + 2 * e), v(PT + 2 * (e & 1)), v(XPr + k), v(ACC + 2 * e)))
                g("v_dot2_f32_bf16 %s, %s, %s, %s" % (v(ACC + 2 * e + 1), v(PT + 2 * (e & 1) + 1), v(XPr + k), v(ACC + 2 * e + 1)))
    g("s_waitcnt vmcnt(0) lgkmcnt(0)")
    pairs(W1, AG, XP)
    pairs(W2, AU, XQ)
    g.nop(1)
    g.tswap("v_permlane32_swap_b32", [(AG + c, AG + c + 4) for c in range(4)] + [(AU + c, AU + c + 4) for c in range(4)])
    g.tswap("v_permlane16_swap_b32", [(AG + c, AG + c + 2) for c in range(2)] + [(AU + c, AU + c + 2) for c in range(2)])
    g.red_dpp("v_add_f32", [AG, AG + 1, AU, AU + 1], ["row_ror:8"])
    g("v_and_b32 %s, 7, v0" % v(b))
    g("v_mov_b32 %s, s30" % v(AG + 3))
    g("s_cmp_eq_u32 s60, 2")
    g("s_cbranch_scc1 L_fb")
    g("s_mov_b32 s3, 0x07060503"); g("s_mov_b32 s4, 0x07060502"); g("s_mov_b32 s7, 0x07060501")
    for r in (AG, AG + 1, AU, AU + 1): g("v_add_u32 %s, 0x80, %s" % (v(r), v(r)))
    g("v_perm_b32 %s, %s, %s, s7" % (v(AG + 2), v(AG + 1), v(AU + 1)))
    g("v_perm_b32 %s, %s, %s, s4" % (v(AG + 1), v(AU), v(AU + 1)))
    g("v_perm_b32 %s, %s, %s, s3" % (v(AG), v(AG), v(AU + 1)))
    g("v_lshlrev_b32 %s, 6, %s" % (v(b), v(b)))
    g("s_lshr_b32 s4, s61, 2"); g("s_mul_i32 s4, s4, %d" % CSA); g("s_and_b32 s5, s61, 3"); g("s_lshl_b32 s5, s5, 11"); g("s_add_u32 s4, s4, s5")
    g("s_lshl_b32 s5, s62, 9"); g("s_add_u32 s4, s4, s5"); g("s_add_u32 s4, s4, %d" % WS_FA)
    if fm in (5, 6, 8): g("s_branch L_nofp")
    g("s_branch L_fs")
    g.lab("L_fb")
    g("v_add_f32 %s, %s, %s" % (v(AG), v(AG), v(AU))); g("v_add_f32 %s, %s, %s" % (v(AG + 1), v(AG + 1), v(AU + 1)))
    g("v_mov_b32 %s, 0" % v(AG + 2))
    g("v_mul_u32_u24 %s, %d, %s" % (v(b), CSB, v(b)))
    g("s_mul_i32 s4, s25, %d" % (8 * CSB)); g("s_lshl_b32 s5, s61, 6"); g("s_add_u32 s4, s4, s5"); g("s_add_u32 s4, s4, %d" % WS_FB)
    if fm in (5, 6, 7): g("s_branch L_nofp")
    g.lab("L_fs")
    g("v_lshl_add_u32 %s, v1, 4, %s" % (v(b), v(b)))
    g("s_mov_b32 exec_lo, 0x00ff00ff"); g("s_mov_b32 exec_hi, 0x00ff00ff")
    g("buffer_store_dwordx4 %s, %s, s[20:23], s4 offen sc1" % (v(AG, 4), v(b)))
    g("s_mov_b64 exec, -1")
    g.lab("L_nofp")
    if o["dn"]:
        g.srd(8, 54, 32 << 20, hx(o["dbase"] << 20))
        g("s_mul_i32 s4, s2, %d" % (o["dn"] * 1024 + 128))
        for j in range(o["dn"]):
            g("buffer_load_dwordx4 v[56:59], v3, s[8:11], s4 offen %s" % ["sc1", "", "sc0 sc1", "sc1 nt", "sc0", "nt"][o["dmod"]])
            g("s_add_u32 s4, s4, 1024")
        g("s_waitcnt vmcnt(0)")
    if o["dpoll"]:
        if not o["dwho"]: g("s_cmp_ge_u32 s26, 8"); g("s_cbranch_scc1 L_dp")
        g("s_mul_i32 s4, s2, %d" % o["dstr"]); g("s_add_u32 s4, s4, %d" % o["doff"])
        if o["dst"]:
            g("v_mov_b32 v59, 0")
            g("buffer_store_dwordx4 v[56:59], v3, s[20:23], s4 offen sc1")
        g.poll("L_dq", ["buffer_load_dwordx4 v[56:59], v3, s[20:23], s4 offen %s" % ["sc1", "", "sc0 sc1", "sc1 nt", "sc0"][o["dmod"]]], [59], o["gsleep"], lim=o["dpoll"] - 1)
        g.lab("L_dp")
    g("s_cmp_ge_u32 s26, 8")
    g("s_cbranch_scc1 L_nofc")
    E = 56
    g("v_mov_b32 %s, 0" % v(E)); g("v_mov_b32 %s, 0" % v(E + 1)); g("v_mov_b32 %s, s30" % v(E + 3))
    if not (o["noffn"] or fm == 2):
        g("s_mul_i32 s4, s28, %d" % CSB); g("s_add_u32 s4, s4, %d" % WS_FB)
        g("s_mov_b64 exec, 0x0fffffff")
        g.poll("L_pb", ["buffer_load_dwordx4 %s, v3, s[20:23], s4 offen sc1" % v(E, 4)], [E + 3], o["gsleep"], lim={9: -1, 10: 0x40000}.get(fm, plim))
        g("s_mov_b64 exec, -1")
    g.red_dpp("v_add_f32", [E, E + 1], ["row_ror:4", "row_ror:8"])
    g.red_swap("v_add_f32", [E, E + 1], [a, b])
    g.rbf([(E, E + 1)], c_)
    g("s_mov_b32 s7, %s" % hx(f2u(-LOG2E)))
    g("v_mul_f32 %s, s7, %s" % (v(a), v(E))); g("v_mul_f32 %s, s7, %s" % (v(b), v(E + 1)))
    g("v_exp_f32 %s, %s" % (v(a), v(a))); g("v_exp_f32 %s, %s" % (v(b), v(b)))
    g("v_lshlrev_b32 %s, 16, %s" % (v(E + 2), v(TT + 2)))
    g("v_add_f32 %s, 1.0, %s" % (v(a), v(a))); g("v_add_f32 %s, 1.0, %s" % (v(b), v(b)))
    g("v_rcp_f32 %s, %s" % (v(a), v(a))); g("v_rcp_f32 %s, %s" % (v(b), v(b)))
    g("v_and_b32 %s, 0xffff0000, %s" % (v(E + 3), v(TT + 2)))
    g("v_mul_f32 %s, %s, %s" % (v(E), v(E), v(a))); g("v_mul_f32 %s, %s, %s" % (v(E + 1), v(E + 1), v(b)))
    g.rbf([(E, E + 1)], c_)
    g("v_add_u32 %s, %d, v3" % (v(a), GA))
    g("s_mov_b64 exec, 15")
    g("ds_write_b128 %s, %s" % (v(a), v(E, 4)))
    g("s_mov_b64 exec, -1")
    g.lab("L_nofc")
    g.stamp(12)
    if o["ts"] in (0, 3): g.write_stamps([8, 9, 10, 11, 12, 13])
    g("s_waitcnt vmcnt(0) lgkmcnt(0)")
    if o["reh"]:
        g("v_lshrrev_b32 v1, 4, v0"); g("v_and_b32 v2, 15, v0")
        tail_addr()
        g.srd(16, 50, 0)
        g.srd(20, 54, 0)
        g("s_mov_b32 s30, 0")
        g("s_branch L_tail")
    g.lab("L_end")
    g("s_endpgm")

    out = HEADER + "; @launch grid=(256,1,1) block=(320,1,1) lds=%d\n" % LDS_BYTES
    out += '.amdgcn_target "amdgcn-amd-amdhsa--gfx950"\n.text\n.globl %s_kernel\n.p2align 8\n.type %s_kernel,@function\n%s_kernel:\n' % (KNAME, KNAME, KNAME)
    MODS = ["nt", "", "sc1 nt", "sc0 nt", "sc0 sc1 nt", "sc1", "sc0"]
    for i_, l_ in enumerate(g.L):
        if l_.endswith(" nt lds") and ("s[8:11]" in l_ or ("s[12:15]" in l_ and "offset:" in l_)): g.L[i_] = l_[:-6] + MODS[o["smod"]] + " lds"
        elif l_.endswith(" nt lds") and "s[44:47]" in l_: g.L[i_] = l_[:-6] + MODS[o["womod"]] + " lds"
        elif l_.endswith("s4 offen nt") and "v[56:59]" not in l_: g.L[i_] = l_[:-2] + MODS[o["fmod"]]
    out += "\n".join(g.L) + "\n"
    out += """.section .rodata,"a"
.p2align 6
.amdhsa_kernel %s_kernel
  .amdhsa_next_free_vgpr %d
  .amdhsa_next_free_sgpr 100
  .amdhsa_accum_offset %d
  .amdhsa_group_segment_fixed_size 0
  .amdhsa_kernarg_size 96
  .amdhsa_user_sgpr_count 2
  .amdhsa_user_sgpr_kernarg_segment_ptr 1
  .amdhsa_system_sgpr_workgroup_id_x 1
.end_amdhsa_kernel
""" % (KNAME, NV, NV)
    return out

if __name__ == "__main__":
    import hazcheck
    names = []
    for spec in sys.argv[1:]:
        parts = spec.split(",")
        fn = parts[0]
        opts = {}
        for p in parts[1:]:
            k, x = p.split("=")
            opts[k] = int(x)
        txt = gen(**opts)
        nb = hazcheck.check(txt)
        assert nb == 0, "hazards found"
        open(fn, "w").write(txt)
        names.append(fn)
    print(" ".join(names))
```

```python
import sys, struct, math
KNAME = "recurrent_scan__gqa_block_cached__geglu_ffn__decode"

def f2u(x): return struct.unpack("<I", struct.pack("<f", x))[0]
def hx(x): return "0x%x" % (x & 0xffffffff)
def v(n, c=1): return "v%d" % n if c == 1 else "v[%d:%d]" % (n, n + c - 1)
def s(n, c=1): return "s%d" % n if c == 1 else "s[%d:%d]" % (n, n + c - 1)

STAGE = 131072
XN = 147456
QA = 148480
ML = 149504
GA = 150016
TAGA = 150144
OA = 150272
HA = 150528
COMB = 151552
LDS_BYTES = 163840
WS_EPOCH = 0
WS_Q = 0x30000
WS_CNT = 0x8000
WS_B1 = 0x100000
WS_B2 = 0x200000
WS_FA = 0x300000
WS_FB = 0x380000
WS_SIZE = 0x400000
STAMP_OFF = 256 << 20
LOG2E = math.log2(math.e)

HEADER = """; Kernarg layout for this problem (96 bytes, ptrs only, base s[0:1]):
"""

class G:
    def __init__(self, **o):
        self.L = []
        self.o = dict(stamps=0, D=5, rot=1572864, noffn=0, auxprio=3, reh=0, round=1, wqnt=1, wqrot=0,
                      pad1=128, pad2=128, S=30, fsleep=2, b0=3, qsleep=2, wqmode=0, ffnlate=1, nowo=0, ack=1, cstride=4096, ts=0, thr=5, ffnmode=0, womode=3, dynthr=6, N=28, thk=5556, thv=5556, cpoll=8, sprio=0, fprio=0, sw=0, fthr=0, tailmode=0, stm=0, gsleep=2, dpoll=0, dmod=0, dwho=0, dst=0, doff=0x300000, dstr=1152, dn=0, dbase=8, smod=0, fmod=0, womod=0, dN=0, thw=5556, wopos=0, RS=4, pqs=8, qfull=0, nib=1, epearly=1, omod=0, endw=1, colx=1, noout=0, pret=0, pre1=0, pre2=0, h2w=0, h2k=4, gmap=0, h1s=1, lx=0, lthr=16, lthv=0, md=1, tr1=1, lsl=1, cs=1, late=1, tx=64, tc=1, bt=1, ft=1, tsl=2, csl=0, mf=1, ka=3, kb=5, kf=1, mprio=0)
        for k in o: assert k in self.o, k
        self.o.update(o)
    def __call__(self, x): self.L.append("    " + x)
    def lab(self, x): self.L.append(x + ":")
    def c(self, x): self.L.append("    ; " + x)
    def nop(self, n):
        while n > 0:
            k = min(n, 16); self("s_nop %d" % (k - 1)); n -= k
    def stamp(self, i):
        if self.o["stamps"] == 1 or (self.o["stamps"] == 2 and i == 0): self("s_memrealtime %s" % s(64 + 2 * i, 2))
    def write_stamps(self, idx):
        if not self.o["stamps"]: return
        self("s_waitcnt lgkmcnt(0)")
        self("s_lshl_b32 s3, s2, 7")
        self("s_add_u32 s3, s3, %d" % STAMP_OFF)
        self("v_mov_b32 v1, s3")
        for i in idx:
            self("v_mov_b32 v2, %s" % s(64 + 2 * i)); self("v_mov_b32 v3, %s" % s(65 + 2 * i))
            self("global_store_dwordx2 v1, v[2:3], s[54:55] offset:%d%s" % (8 * i, " sc1" if self.o["stamps"] == 2 else ""))
        if 0 in idx and self.o["stamps"] == 1:
            self("s_getreg_b32 s3, hwreg(HW_REG_XCC_ID)")
            self("v_mov_b32 v2, s3"); self("v_mov_b32 v3, s95")
            self("global_store_dwordx2 v1, v[2:3], s[54:55] offset:120")
    def srd(self, d, base, size, add=None):
        if add is None:
            self("s_mov_b32 %s, %s" % (s(d), s(base))); self("s_mov_b32 %s, %s" % (s(d + 1), s(base + 1)))
        else:
            self("s_add_u32 %s, %s, %s" % (s(d), s(base), add)); self("s_addc_u32 %s, %s, 0" % (s(d + 1), s(base + 1)))
        self("s_mov_b32 %s, %s" % (s(d + 2), size if isinstance(size, str) else hx(size))); self("s_mov_b32 %s, 0x20000" % s(d + 3))
    def red_dpp(self, op, rs, ctrls):
        for ct in ctrls:
            self.nop(max(0, 2 - (len(rs) - 1)))
            for r in rs: self("%s_dpp %s, %s, %s %s row_mask:0xf bank_mask:0xf" % (op, v(r), v(r), v(r), ct))
    def red_swap(self, op, rs, ts):
        for sw in ("v_permlane16_swap_b32", "v_permlane32_swap_b32"):
            for r, t in zip(rs, ts): self("v_mov_b32 %s, %s" % (v(t), v(r)))
            self.nop(max(0, 2 - (len(rs) - 1)))
            for r, t in zip(rs, ts): self("%s %s, %s" % (sw, v(t), v(r)))
            for r, t in zip(rs, ts): self("%s %s, %s, %s" % (op, v(r), v(t), v(r)))
    def red_wave(self, op, rs, ts):
        self.red_dpp(op, rs, ["quad_perm:[1,0,3,2]", "quad_perm:[2,3,0,1]", "row_half_mirror", "row_mirror"])
        self.red_swap(op, rs, ts)
    def tswap(self, sw, pairs):
        self.nop(2)
        for a, b in pairs: self("%s %s, %s" % (sw, v(a), v(b)))
        for a, b in pairs: self("v_add_f32 %s, %s, %s" % (v(a), v(a), v(b)))
    def rbf(self, pairs, t):
        for a, b in pairs:
            self("v_cvt_pk_bf16_f32 %s, %s, %s" % (v(t), v(a), v(b)))
            self("v_lshlrev_b32 %s, 16, %s" % (v(a), v(t)))
            if b != a: self("v_and_b32 %s, 0xffff0000, %s" % (v(b), v(t)))
    def tstamp(self, i):
        if self.o["ts"] == 1: self.stamp(i)
    def poll(self, name, loads, tagregs, sleep=0, st=None, first=None, lim=0x40000):
        if lim < 0: return
        self("s_mov_b32 s31, 0x%x" % lim)
        if self.o["ack"] or first: self("s_waitcnt vmcnt(0)")
        if st is not None: self.tstamp(st)
        if first:
            for l in loads + first: self(l)
            self("s_branch %s_w" % name)
        self.lab(name)
        for l in loads: self(l)
        if first: self.lab(name + "_w")
        self("s_waitcnt vmcnt(0)")
        self("v_cmp_ne_u32 vcc, s30, %s" % v(tagregs[0]))
        for k, t in enumerate(tagregs[1:]):
            self("v_cmp_ne_u32 %s, s30, %s" % (s(96 + 2 * (k & 1), 2), v(t)))
            if k & 1 or k == len(tagregs) - 2:
                for kk in range(k & ~1, k + 1): self("s_or_b64 vcc, vcc, %s" % s(96 + 2 * (kk & 1), 2))
        self("s_cbranch_vccz %s_done" % name)
        if sleep: self("s_sleep %d" % sleep)
        self("s_sub_u32 s31, s31, 1")
        self("s_cbranch_scc0 %s" % name)
        self.lab(name + "_done")

def gen(**opts):
    g = G(**opts); o = g.o
    CS1 = 8192 + o["pad1"]; CS2 = 4096 + o["pad2"]; CSA = 8192 + 128; CSB = 512 + 128
    HK = o["h2k"]; LK = max(HK, 1).bit_length() - 1
    if HK: CS2 = 2048 * HK + o["pad2"]; CSB = 512 * HK + 128
    GX = 149888
    MF = o["mf"]
    if MF: assert HK == 4 and o["cs"] and o["RS"] == 4 and o["nib"]; CSB = 1024 + 128
    g("s_cmp_ge_u32 s2, 256")
    g("s_cbranch_scc1 L_end")
    g("s_load_dwordx16 s[32:47], s[0:1], 0")
    g("s_load_dwordx8 s[48:55], s[0:1], 64")
    g.stamp(0)
    g("v_lshrrev_b32 v1, 6, v0")
    g("v_and_b32 v0, 63, v0")
    g("v_readfirstlane_b32 s24, v1")
    if o["gmap"]: g("s_and_b32 s25, s2, 7"); g("s_lshr_b32 s26, s2, 3")
    else:
        g("s_lshr_b32 s25, s2, 5")
        g("s_and_b32 s26, s2, 31")
    g("v_lshrrev_b32 v1, 4, v0")
    g("v_and_b32 v2, 15, v0")
    g("s_lshl_b32 s28, s25, 3"); g("s_add_u32 s28, s28, s26")
    if HK:
        g("s_lshl_b32 s93, s26, %d" % (3 - LK)); g("s_lshr_b32 s3, s25, %d" % LK); g("s_add_u32 s93, s93, s3")
        g("s_and_b32 s3, s25, %d" % (HK - 1)); g("s_cselect_b32 s93, 64, s93")
        g("s_cmp_ge_u32 s26, 8"); g("s_cselect_b32 s93, 64, s93")
    elif o["colx"]: g("s_lshl_b32 s93, s26, 3"); g("s_add_u32 s93, s93, s25")
    else: g("s_mov_b32 s93, s28")
    g("s_cmp_eq_u32 s24, 4")
    g("s_cbranch_scc1 L_aux")
    KS, VS, KA, VA, TK = 4, 8, 10, 14, 22
    QF, F, VF, S, P = 24, 40, 56, 72, 76
    M, LS, AL, NM, T0, T1, T2, CA = 78, 79, 80, 81, 82, 83, 84, 85
    SG = 120
    O, WO = 88, 120
    CW, MW, CR, MR, H1A, P1A, OW, OR, H2A, P2A, GR, OUTA, WS_, WR = range(184, 198)
    MKW, MKR = 201, 203
    CNA, ONE, CNV = 207, 208, 209
    CN2, CN3, TRG, GF, UPF = 16, 20, 24, 28, 32
    CS = o["cs"]; LATE = o["late"]
    assert not (LATE and not (CS and HK)) and not (CS and o["reh"])
    def arrive(off):
        g("s_mov_b64 exec, 1")
        g("ds_add_u32 %s, %s offset:%d" % (v(CNA), v(ONE), off))
        g("s_mov_b64 exec, -1")
    def await_(name, off, val, reads, slp, ad=None, cv=None, lim=0x400000):
        ad = CNA if ad is None else ad; cv = CNV if cv is None else cv
        g("s_mov_b32 s31, 0x%x" % lim)
        g("ds_read_b32 %s, %s offset:%d" % (v(cv), v(ad), off))
        for r in reads: g(r)
        g("s_waitcnt lgkmcnt(%d)" % len(reads))
        g("v_readfirstlane_b32 s3, %s" % v(cv))
        g("s_cmp_ge_u32 s3, %s" % val)
        g("s_cbranch_scc1 %s_ok" % name)
        g.lab(name)
        if slp: g("s_sleep %d" % slp)
        g("ds_read_b32 %s, %s offset:%d" % (v(cv), v(ad), off))
        g("s_sub_u32 s31, s31, 1")
        g("s_cselect_b32 s7, 0x7fffffff, 0")
        g("s_waitcnt lgkmcnt(0)")
        g("v_readfirstlane_b32 s3, %s" % v(cv))
        g("s_or_b32 s3, s3, s7")
        g("s_cmp_ge_u32 s3, %s" % val)
        g("s_cbranch_scc0 %s" % name)
        for r in reads: g(r)
        g.lab(name + "_ok")
    NV = 224
    def tail_addr():
        g("v_and_b32 v3, 3, v0")
        g("s_lshl_b32 s3, s24, 11"); g("s_add_u32 s3, s3, %d" % COMB)
        g("v_lshlrev_b32 %s, 9, v3" % v(CW)); g("v_lshl_or_b32 %s, v1, 4, %s" % (v(CW), v(CW))); g("v_add_u32 %s, s3, %s" % (v(CW), v(CW)))
        g("s_lshl_b32 s3, s24, 2"); g("s_add_u32 s3, s3, %d" % ML)
        g("v_lshl_add_u32 %s, v3, 6, s3" % v(MW))
        g("s_lshl_b32 s3, s24, 9"); g("s_add_u32 s3, s3, %d" % COMB)
        g("v_and_b32 %s, 31, v0" % v(CR)); g("v_lshl_add_u32 %s, %s, 4, s3" % (v(CR), v(CR)))
        g("s_lshl_b32 s3, s24, 6"); g("s_add_u32 s3, s3, %d" % ML); g("v_mov_b32 %s, s3" % v(MR))
        g("s_lshl_b32 s3, s25, 2"); g("s_add_u32 s3, s3, s24"); g("s_mul_i32 s3, s3, %d" % (2 * CS1))
        g("s_lshl_b32 s7, s26, 8"); g("s_add_u32 s3, s3, s7"); g("s_add_u32 s3, s3, %d" % WS_B1)
        g("v_and_b32 %s, 1, v1" % v(H1A)); g("v_mul_u32_u24 %s, %d, %s" % (v(H1A), CS1, v(H1A)))
        g("v_lshl_add_u32 %s, v2, 4, %s" % (v(H1A), v(H1A))); g("v_add_u32 %s, s3, %s" % (v(H1A), v(H1A)))
        g("s_mul_i32 s3, s28, %d" % CS1); g("s_lshl_b32 s7, s24, 6"); g("s_add_u32 s3, s3, s7"); g("s_add_u32 s3, s3, %d" % WS_B1)
        g("v_lshrrev_b32 %s, 2, v0" % v(H2A))
        g("v_lshlrev_b32 %s, 9, %s" % (v(P1A), v(H2A))); g("v_lshl_or_b32 %s, v3, 4, %s" % (v(P1A), v(P1A))); g("v_add_u32 %s, s3, %s" % (v(P1A), v(P1A)))
        g("s_lshl_b32 s3, s24, 3"); g("s_add_u32 s3, s3, %d" % OA)
        g("v_lshl_add_u32 %s, v3, 5, s3" % v(OW))
        if o["tr1"]: g("v_lshl_add_u32 %s, v1, 1, %s" % (v(OW), v(OW)))
        g("v_lshlrev_b32 %s, 5, v1" % v(OR)); g("v_add_u32 %s, %d, %s" % (v(OR), OA, v(OR)))
        g("v_lshrrev_b32 %s, 2, v0" % v(WR)); g("v_and_b32 %s, 3, %s" % (v(WR + 1), v(WR)))
        g("v_lshlrev_b32 %s, 8, %s" % (v(WR), v(WR))); g("v_lshl_or_b32 %s, %s, 6, %s" % (v(WR), v(WR + 1), v(WR)))
        g("v_lshl_or_b32 %s, v3, 4, %s" % (v(WR), v(WR)))
        g("s_lshl_b32 s3, s24, 15"); g("s_add_u32 s3, s3, 0x4000"); g("v_add_u32 %s, s3, %s" % (v(WR), v(WR)))
        for a_ in range(1, 4): g("v_xor_b32 %s, %d, %s" % (v(WR + a_), 64 * a_, v(WR)))
        if HK:
            g("s_mul_i32 s3, s24, %d" % (16 // HK * CS2)); g("s_lshl_b32 s7, s28, %d" % (5 + LK)); g("s_add_u32 s3, s3, s7"); g("s_add_u32 s3, s3, %d" % WS_B2)
            g("v_lshrrev_b32 %s, %d, v0" % (v(H2A), 2 + LK)); g("v_mul_u32_u24 %s, %d, %s" % (v(H2A), CS2, v(H2A)))
            g("v_and_b32 %s, %d, v0" % (v(P2A), 4 * HK - 1)); g("v_lshl_add_u32 %s, %s, 3, %s" % (v(H2A), v(P2A), v(H2A))); g("v_add_u32 %s, s3, %s" % (v(H2A), v(H2A)))
        else:
            g("s_mul_i32 s3, s24, %d" % (16 * CS2)); g("s_lshl_b32 s7, s28, 6"); g("s_add_u32 s3, s3, s7"); g("s_add_u32 s3, s3, %d" % WS_B2)
            g("v_mul_u32_u24 %s, %d, %s" % (v(H2A), CS2, v(H2A))); g("v_lshl_add_u32 %s, v3, 4, %s" % (v(H2A), v(H2A))); g("v_add_u32 %s, s3, %s" % (v(H2A), v(H2A)))
        if HK:
            g("s_mul_i32 s3, s93, %d" % CS2); g("s_add_u32 s3, s3, %d" % WS_B2)
            g("v_lshl_add_u32 %s, v0, 4, s3" % v(P2A))
            g("v_and_b32 %s, %d, v0" % (v(GR), 2 * HK - 1)); g("v_lshrrev_b32 %s, 5, v0" % v(OUTA)); g("v_lshl_or_b32 %s, %s, 1, %s" % (v(GR), v(GR), v(OUTA)))
            g("v_and_b32 %s, 3, %s" % (v(OUTA), v(GR))); g("v_lshrrev_b32 %s, 2, %s" % (v(GR), v(GR))); g("v_lshl_or_b32 %s, %s, 3, %s" % (v(GR), v(GR), v(OUTA)))
            g("v_and_b32 %s, 1, v1" % v(OUTA)); g("v_lshl_or_b32 %s, %s, 2, %s" % (v(GR), v(OUTA), v(GR)))
            g("s_lshl_b32 s3, s93, %d" % (4 + LK)); g("v_lshl_add_u32 %s, %s, 1, s3" % (v(OUTA), v(GR)))
            g("v_lshlrev_b32 %s, 2, %s" % (v(GR), v(GR))); g("v_add_u32 %s, %d, %s" % (v(GR), GX, v(GR)))
        elif o["h2w"]:
            g("s_mul_i32 s3, s93, %d" % CS2); g("s_add_u32 s3, s3, %d" % WS_B2)
            g("v_lshl_add_u32 %s, v0, 4, s3" % v(P2A))
            g("v_and_b32 %s, 2, v0" % v(GR)); g("v_lshlrev_b32 %s, 3, %s" % (v(GR), v(GR)))
            g("v_and_b32 %s, 1, v0" % v(OUTA)); g("v_lshl_or_b32 %s, %s, 2, %s" % (v(GR), v(OUTA), v(GR))); g("v_add_u32 %s, %d, %s" % (v(GR), GA, v(GR)))
            g("s_lshl_b32 s3, s93, 4"); g("v_lshl_add_u32 %s, v3, 1, s3" % v(OUTA))
        else:
            g("s_mul_i32 s3, s93, %d" % CS2); g("s_lshl_b32 s7, s24, 4"); g("s_add_u32 s3, s3, s7"); g("s_add_u32 s3, s3, %d" % WS_B2)
            g("v_lshl_add_u32 %s, v0, 6, s3" % v(P2A))
            g("s_lshr_b32 s3, s24, 1"); g("s_lshl_b32 s3, s3, 4"); g("s_and_b32 s7, s24, 1"); g("s_lshl_b32 s7, s7, 2")
            g("s_add_u32 s3, s3, s7"); g("s_add_u32 s3, s3, %d" % GA); g("v_mov_b32 %s, s3" % v(GR))
            g("s_lshl_b32 s3, s93, 4"); g("s_lshl_b32 s7, s24, 1"); g("s_add_u32 s3, s3, s7"); g("v_mov_b32 %s, s3" % v(OUTA))
        g("s_mov_b32 s6, %s" % hx(f2u(LOG2E)))
    g("v_xor_b32 v3, v1, v2")
    g("v_lshlrev_b32 v3, 4, v3")
    g("v_lshl_or_b32 %s, v1, 8, v3" % v(KS))
    for u in range(1, 4): g("v_xor_b32 %s, %d, %s" % (v(KS + u), 64 * u, v(KS)))
    g("v_lshlrev_b32 v3, 1, v1")
    g("v_xor_b32 v3, v3, v2")
    g("v_lshlrev_b32 v3, 4, v3")
    g("v_lshl_or_b32 %s, v1, 8, v3" % v(VS))
    g("v_xor_b32 %s, 0x80, %s" % (v(VS + 1), v(VS)))
    NP = 4; SS = o["S"]; D = o["D"]; TH = o["thr"]; N = o["N"]
    dN = o["dN"]; NC = N - dN
    assert N % 4 == 0 and 12 <= N <= 30 and SS == N + 2 and dN in (0, 2, 4)
    PA = 86
    g("s_lshl_b32 s27, s24, 12")
    g("s_mul_i32 s3, s25, %d" % o["rot"])
    g("s_add_u32 s27, s27, s3")
    g("s_lshl_b32 s5, s26, 14"); g("s_add_u32 s5, s5, s27")
    g("s_lshl_b32 s29, s24, 15")
    g("s_lshl_b32 s3, s25, 24")
    if o["ts"] == 4: g.stamp(8)
    g("s_waitcnt lgkmcnt(0)")
    if o["ts"] == 4: g.stamp(9)
    g.srd(8, 34, 1 << 24, "s3")
    g.srd(12, 36, 1 << 24, "s3")
    g.srd(20, 54, WS_SIZE)
    if o["b0"] == 1: g("s_barrier")
    cnt = [0]
    def throttle():
        k = cnt[0]; cnt[0] += 1
        if k >= D: g("s_waitcnt vmcnt(%d)" % (D - 1))
        return k >= D
    g("s_mov_b32 s92, s5")
    def kload(u): g("buffer_load_dwordx4 %s, s[8:11], s4 offen offset:%d nt lds" % (v(KS + u), u * 1024))
    def vload(u): g("buffer_load_dwordx4 %s, s[12:15], s4 offen offset:%d nt lds" % (v(VS + (u & 1)), u * 1024))
    for t_ in range(8):
        g("s_and_b32 s4, s5, 0xffffff")
        g("s_add_u32 m0, s29, %d" % (4096 * (t_ >> 1) + 0x4000 * (t_ & 1)))
        g("s_add_u32 s5, s5, 0x80000")
        for u in range(4):
            if cnt[0] == D:
                for n in range(32): g("v_mov_b32 %s, 0" % v(O + n))
                g("v_mov_b32 %s, 0xff7fffff" % v(M))
                g("v_mov_b32 %s, 0" % v(LS))
                tail_addr()
                g("s_mul_i32 s3, s25, %d" % NP); g("s_add_u32 s3, s3, s24"); g("s_mul_i32 s3, s3, %d" % o["cstride"]); g("s_add_u32 s3, s3, %d" % WS_CNT)
                g("v_mov_b32 v3, s3"); g("v_mov_b32 %s, 0x7ffffff0" % v(CA))
                g("v_cmp_eq_u32 vcc, 0, v0")
                g("s_and_b32 s3, s28, 63"); g("s_lshl_b32 s7, s3, 16")
                g("v_cndmask_b32 %s, %s, v3, vcc" % (v(CA), v(CA)))
                g("v_lshlrev_b32 v3, 2, v1"); g("v_xor_b32 v3, v3, v2"); g("v_lshlrev_b32 v3, 4, v3")
                g("v_lshl_or_b32 v3, v1, 10, v3"); g("s_lshl_b32 s3, s24, 8"); g("v_add_u32 %s, s3, v3" % v(WS_))
                g.srd(44, 40, 65536, "s7")
                g.srd(16, 50, 1024)
                g("v_and_b32 v3, 3, v0"); g("v_lshlrev_b32 v3, 5, v3"); g("v_lshl_or_b32 v3, v1, 3, v3")
                g("s_lshl_b32 s3, s24, 12"); g("s_add_u32 s3, s3, %d" % STAGE); g("v_add_u32 %s, s3, v3" % v(PA))
            if throttle() and o["ts"] == 4 and cnt[0] in (D + 1, D + 2, D + 5): g.stamp({D + 1: 11, D + 2: 12, D + 5: 13}[cnt[0]])
            kload(u)
            if o["ts"] == 4 and cnt[0] == 1: g.stamp(10)
        if t_ == 0:
            g("v_xor_b32 v3, v1, v2")
            g("v_lshlrev_b32 v3, 4, v3")
            g("v_lshl_or_b32 v3, v2, 8, v3")
            g("v_add_u32 %s, s29, v3" % v(KA))
            for k in range(1, 4): g("v_xor_b32 %s, %d, %s" % (v(KA + k), 64 * k, v(KA)))
            g("v_lshrrev_b32 v3, 2, v0")
            g("v_and_b32 %s, 7, v3" % v(T0))
            g("v_lshlrev_b32 %s, 5, %s" % (v(T0), v(T0)))
            g("v_lshl_or_b32 v3, v3, 8, %s" % v(T0))
            g("v_and_b32 %s, 3, v0" % v(T0))
            g("v_lshl_or_b32 v3, %s, 3, v3" % v(T0))
            g("v_add_u32 %s, s29, v3" % v(VA))
            for n in range(1, 8): g("v_xor_b32 %s, %d, %s" % (v(VA + n), 32 * n, v(VA)))
            if o["b0"] >= 2: g("s_barrier")
    g("v_and_b32 v3, 3, v0")
    g("v_lshlrev_b32 v3, 8, v3")
    g("v_lshl_or_b32 v3, v1, 4, v3")
    g("v_add_u32 v3, %d, v3" % QA)
    g("v_mov_b32 %s, %d" % (v(T2), TAGA))
    if CS: g("v_mov_b32 %s, %d" % (v(CNA), TAGA)); g("v_mov_b32 %s, 1" % v(ONE))
    g("s_mov_b32 s56, %s" % hx(f2u(128.0 ** -0.5))); g("s_mov_b32 s57, s56")
    g("s_mov_b32 s58, 0")
    g("s_mov_b32 s59, s29")
    g("s_mov_b32 s63, 4")
    def tm(n): return (((1 << n) - 1) << (n - 8)) | (0b1010 << (2 * n - 8))
    g("s_mov_b32 s40, %s" % hx(tm(N))); g("s_mov_b32 s41, %s" % hx(tm(N) >> 32))
    g("s_cmp_lt_u32 s26, 8")
    g("s_cselect_b32 s61, %d, %d" % (NC, N))
    g("s_cselect_b32 s40, %s, s40" % hx(tm(NC))); g("s_cselect_b32 s41, %s, s41" % hx(tm(NC) >> 32))
    g("s_mov_b32 s60, s61")
    g("s_and_b32 s62, s61, 2"); g("s_lshl_b32 s62, s62, 12")
    if dN & 2:
        for n in range(8): g("v_xor_b32 %s, s62, %s" % (v(VA + n), v(VA + n)))
    g("s_mov_b32 s95, s61")
    if o["sprio"]: g("s_setprio %d" % o["sprio"])
    g.stamp(1)
    g("s_mov_b32 s31, 0x400000")
    g.lab("L_wq")
    g("ds_read_b64 %s, %s" % (v(T0, 2), v(T2)))
    g("s_waitcnt lgkmcnt(0)")
    g("v_readfirstlane_b32 s3, %s" % v(T1))
    g("v_readfirstlane_b32 s30, %s" % v(T0))
    g("s_cmp_lg_u32 s3, 0")
    g("s_cbranch_scc1 L_wq_done")
    if o["qsleep"]: g("s_sleep %d" % o["qsleep"])
    g("s_sub_u32 s31, s31, 1")
    g("s_cbranch_scc0 L_wq")
    g.lab("L_wq_done")
    for k in range(4): g("ds_read_b128 %s, v3 offset:%d" % (v(QF + 4 * k, 4), 64 * k))
    if HK:
        g("s_mul_i32 s3, s30, 0x85ebca6b"); g("s_xor_b32 s3, s3, 0x5a5aa5a5")
        g("v_mov_b32 %s, s30" % v(T0)); g("v_mov_b32 %s, s3" % v(T1))
        g("v_and_b32 %s, 4, v0" % v(MKW)); g("v_cmp_eq_u32 vcc, 4, %s" % v(MKW))
        g("v_and_b32 %s, 3, v0" % v(MKW + 1)); g("v_lshlrev_b32 %s, 3, %s" % (v(MKW + 1), v(MKW + 1)))
        g("v_cndmask_b32 %s, %s, %s, vcc" % (v(MKW), v(T0), v(T1)))
        g("v_and_b32 %s, 2, v0" % v(MKR)); g("v_cmp_eq_u32 vcc, 2, %s" % v(MKR))
        g("v_lshrrev_b32 %s, %s, %s" % (v(MKW), v(MKW + 1), v(MKW))); g("v_lshrrev_b32 %s, 4, %s" % (v(MKW + 1), v(MKW)))
        g("v_and_b32 %s, 1, v0" % v(MKR + 1)); g("v_lshlrev_b32 %s, 4, %s" % (v(MKR + 1), v(MKR + 1)))
        g("v_cndmask_b32 %s, %s, %s, vcc" % (v(MKR), v(T0), v(T1)))
        g("v_lshrrev_b32 %s, %s, %s" % (v(MKR), v(MKR + 1), v(MKR)))
        for e in (3, 2, 1, 0): g("v_bfe_u32 %s, %s, %d, 4" % (v(MKR + e), v(MKR), 4 * e))
    g.stamp(2)
    g("s_waitcnt lgkmcnt(0)")
    def refill(nm, th, atomic):
        g("s_bitcmp1_b32 s40, 0")
        g("s_cbranch_scc1 L_%sv" % nm)
        g("s_and_b32 s4, s5, 0xffffff"); g("s_add_u32 s5, s5, 0x80000")
        th = [th] * 4 if th < 10 else [int(c) for c in str(th)]
        for u in range(4): g("s_waitcnt vmcnt(%d)" % (th[u] - 1)); kload(u)
        g("s_branch L_%sd" % nm)
        g.lab("L_%sv" % nm)
        g("s_and_b32 s4, s92, 0xffffff"); g("s_add_u32 s92, s92, 0x80000")
        if atomic:
            g("s_cmp_lg_u64 s[40:41], 1")
            g("s_cbranch_scc1 L_%sn" % nm)
            g("v_mov_b32 %s, 1" % v(TK))
            g("buffer_atomic_add %s, %s, s[20:23], 0 offen sc0" % (v(TK), v(CA)))
            g.lab("L_%sn" % nm)
        for u in range(4): g("s_waitcnt vmcnt(%d)" % (th[u] - 1)); vload(u)
        g.lab("L_%sd" % nm)
        g("s_lshr_b64 s[40:41], s[40:41], 1")
    def unpack(a, b):
        g("v_lshlrev_b32 %s, 16, %s" % (v(S), v(a))); g("v_and_b32 %s, 0xffff0000, %s" % (v(S + 1), v(a)))
        g("v_lshlrev_b32 %s, 16, %s" % (v(S + 2), v(b))); g("v_and_b32 %s, 0xffff0000, %s" % (v(S + 3), v(b)))
    def midstamp(i, c):
        if o["ts"] == 2:
            g("s_cmp_lg_u32 s60, %d" % c); g("s_cbranch_scc1 L_ts%d" % i); g.stamp(i); g("s_waitcnt lgkmcnt(0)"); g.lab("L_ts%d" % i)
    g.lab("L_a")
    g("s_waitcnt vmcnt(12)")
    for k in range(4): g("ds_read_b128 %s, %s" % (v(F + 4 * k, 4), v(KA + k)))
    midstamp(8, N - 12)
    g("s_mov_b32 m0, s59")
    g("s_cmp_lg_u32 s58, 0")
    for k in range(4):
        g("s_waitcnt lgkmcnt(%d)" % (3 - k))
        g("v_mfma_f32_16x16x32_bf16 %s, %s, %s, %s" % (v(S, 4), v(F + 4 * k, 4), v(QF + 4 * k, 4), "0" if k == 0 else v(S, 4)))
    g("s_cbranch_scc1 L_aw")
    refill("a", o["thk"] or TH, False)
    g.lab("L_ai")
    g("s_add_u32 s3, s59, 0x1000"); g("s_xor_b32 s3, s3, s59"); g("s_and_b32 s3, s3, 0x3000")
    g("s_lshl_b32 s7, s58, 14"); g("s_or_b32 s3, s3, s7")
    g("s_cmp_lg_u32 s63, s58")
    g("s_cselect_b32 s7, 1, 0"); g("s_sub_u32 s63, s63, s58"); g("s_andn2_b32 s58, s7, s58")
    g("s_cselect_b32 s3, 0x4000, s3")
    g("v_cvt_pk_bf16_f32 %s, %s, %s" % (v(T0), v(S), v(S + 1)))
    g("v_cvt_pk_bf16_f32 %s, %s, %s" % (v(T1), v(S + 2), v(S + 3)))
    unpack(T0, T1)
    g("v_pk_mul_f32 %s, %s, s[56:57]" % (v(S, 2), v(S, 2)))
    g("v_pk_mul_f32 %s, %s, s[56:57]" % (v(S + 2, 2), v(S + 2, 2)))
    for k in range(4): g("v_xor_b32 %s, s3, %s" % (v(KA + k), v(KA + k)))
    g("v_cvt_pk_bf16_f32 %s, %s, %s" % (v(T0), v(S), v(S + 1)))
    g("v_cvt_pk_bf16_f32 %s, %s, %s" % (v(T1), v(S + 2), v(S + 3)))
    g("v_max3_f32 %s, %s, %s, %s" % (v(M), v(S), v(S + 1), v(M)))
    g("v_max3_f32 %s, %s, %s, %s" % (v(M), v(S + 2), v(S + 3), v(M)))
    g("s_mov_b32 exec_lo, 0x000f000f"); g("s_mov_b32 exec_hi, 0x000f000f")
    g("ds_write_b64 %s, %s" % (v(PA), v(T0, 2)))
    g("s_mov_b64 exec, -1")
    g("s_xor_b32 s59, s59, s3")
    g("v_add_u32 %s, 128, %s" % (v(PA), v(PA)))
    g("s_sub_u32 s60, s60, 1")
    g("s_cmp_lg_u32 s60, 0")
    g("s_cbranch_scc1 L_a")
    if o["ts"] == 2: g.stamp(9)
    if MF: arrive(UPF)
    g.red_swap("v_max_f32", [M], [T1])
    g("s_lshl_b32 s3, s61, 7")
    g("v_subrev_u32 %s, s3, %s" % (v(PA), v(PA)))
    g("v_cvt_pk_bf16_f32 %s, %s, %s" % (v(M), v(M), v(M)))
    g("s_mov_b32 s60, s61")
    if dN & 2:
        for k in range(4): g("v_xor_b32 %s, s62, %s" % (v(KA + k), v(KA + k)))
    g("v_lshlrev_b32 %s, 16, %s" % (v(M), v(M)))
    g("v_mul_f32 %s, s6, %s" % (v(NM), v(M)))
    g.lab("L_c")
    g("ds_read_b64 %s, %s" % (v(T0, 2), v(PA)))
    g("s_waitcnt vmcnt(12)")
    for n in range(8): g("ds_read_b64_tr_b16 %s, %s" % (v(VF + 2 * n, 2), v(VA + n)))
    midstamp(10, N // 2)
    g("s_mov_b32 m0, s59")
    g("s_add_u32 s3, s59, 0x1000"); g("s_xor_b32 s3, s3, s59"); g("s_and_b32 s3, s3, 0x3000")
    g("s_xor_b32 s59, s59, s3")
    g("v_add_u32 %s, 128, %s" % (v(PA), v(PA)))
    g("s_waitcnt lgkmcnt(8)")
    unpack(T0, T1)
    for e in range(4): g("v_fma_f32 %s, %s, s6, -%s" % (v(S + e), v(S + e), v(NM)))
    for e in range(4): g("v_exp_f32 %s, %s" % (v(S + e), v(S + e)))
    for n in range(8): g("v_xor_b32 %s, s3, %s" % (v(VA + n), v(VA + n)))
    g("v_cvt_pk_bf16_f32 %s, %s, %s" % (v(P), v(S), v(S + 1)))
    g("v_cvt_pk_bf16_f32 %s, %s, %s" % (v(P + 1), v(S + 2), v(S + 3)))
    g("v_add_f32 %s, %s, %s" % (v(T0), v(S), v(S + 1)))
    g("v_add_f32 %s, %s, %s" % (v(T1), v(S + 2), v(S + 3)))
    g("v_add_f32 %s, %s, %s" % (v(LS), v(LS), v(T0)))
    g("v_add_f32 %s, %s, %s" % (v(LS), v(LS), v(T1)))
    for n in range(8):
        g("s_waitcnt lgkmcnt(%d)" % (7 - n))
        g("v_mfma_f32_16x16x16_bf16 %s, %s, %s, %s" % (v(O + 4 * n, 4), v(VF + 2 * n, 2), v(P, 2), v(O + 4 * n, 4)))
    refill("c", o["thv"] or TH, True)
    if LATE == 2:
        g("s_cmp_lg_u32 s60, %d" % o["tc"]); g("s_cbranch_scc1 L_ct")
        arrive(TRG)
        g.lab("L_ct")
    g("s_sub_u32 s60, s60, 1")
    g("s_cmp_lg_u32 s60, 0")
    g("s_cbranch_scc1 L_c")
    if o["ts"] == 2: g.stamp(11)
    g.lab("L_loop")
    g("s_cmp_lg_u32 s58, 0")
    g("s_cbranch_scc1 L_k")
    g("s_waitcnt vmcnt(12)")
    g.lab("L_k")
    for k in range(4): g("ds_read_b128 %s, %s" % (v(F + 4 * k, 4), v(KA + k)))
    if o["stamps"] == 1: g("s_add_u32 s95, s95, 1")
    g("s_mov_b32 m0, s59")
    g("s_cmp_lg_u32 s58, 0")
    for k in range(4):
        g("s_waitcnt lgkmcnt(%d)" % (3 - k))
        g("v_mfma_f32_16x16x32_bf16 %s, %s, %s, %s" % (v(S, 4), v(F + 4 * k, 4), v(QF + 4 * k, 4), "0" if k == 0 else v(S, 4)))
    g("s_cbranch_scc1 L_ki")
    g("s_waitcnt vmcnt(4)")
    g("v_readfirstlane_b32 s3, %s" % v(TK))
    if LATE == 1:
        g("s_cmp_lt_u32 s3, %d" % o["tx"]); g("s_cbranch_scc1 L_kt")
        arrive(TRG)
        g.lab("L_kt")
    if dN:
        g("s_and_b32 s7, s3, 7"); g("s_lshr_b32 s4, s3, 3"); g("s_lshl_b32 s4, s4, 5"); g("s_add_u32 s7, s7, s4"); g("s_add_u32 s7, s7, %d" % (32 * (SS - dN)))
        g("s_add_u32 s4, s3, %d" % (32 * SS - 8 * dN))
        g("s_cmp_lt_u32 s3, %d" % (8 * dN))
        g("s_cselect_b32 s3, s7, s4")
    else:
        g("s_add_u32 s3, s3, %d" % (32 * SS))
    g("s_cmp_ge_u32 s3, 1024")
    g("s_cbranch_scc1 L_last")
    if o["lx"]: g("s_cmp_ge_u32 s3, %d" % (1024 - o["lx"])); g("s_cselect_b32 s94, 1, 0")
    g("s_lshl_b32 s3, s3, 14")
    g("s_add_u32 s3, s3, s27")
    g("s_and_b32 s4, s3, 0xffffff")
    DT = o["dynthr"]
    if o["lx"]: g("s_cmp_lg_u32 s94, 0"); g("s_cbranch_scc1 L_kf")
    for u in range(4):
        if u + 4 > DT - 1: g("s_waitcnt vmcnt(%d)" % (DT - 1))
        kload(u)
    g.lab("L_ki")
    g.nop(7)
    if o["round"]:
        g("v_cvt_pk_bf16_f32 %s, %s, %s" % (v(T0), v(S), v(S + 1)))
        g("v_cvt_pk_bf16_f32 %s, %s, %s" % (v(T1), v(S + 2), v(S + 3)))
        g("v_lshlrev_b32 %s, 16, %s" % (v(S), v(T0))); g("v_and_b32 %s, 0xffff0000, %s" % (v(S + 1), v(T0)))
        g("v_lshlrev_b32 %s, 16, %s" % (v(S + 2), v(T1))); g("v_and_b32 %s, 0xffff0000, %s" % (v(S + 3), v(T1)))
    g("v_pk_mul_f32 %s, %s, s[56:57]" % (v(S, 2), v(S, 2)))
    g("v_pk_mul_f32 %s, %s, s[56:57]" % (v(S + 2, 2), v(S + 2, 2)))
    if o["round"]:
        g("v_cvt_pk_bf16_f32 %s, %s, %s" % (v(T0), v(S), v(S + 1)))
        g("v_cvt_pk_bf16_f32 %s, %s, %s" % (v(T1), v(S + 2), v(S + 3)))
        g("v_lshlrev_b32 %s, 16, %s" % (v(S), v(T0))); g("v_and_b32 %s, 0xffff0000, %s" % (v(S + 1), v(T0)))
        g("v_lshlrev_b32 %s, 16, %s" % (v(S + 2), v(T1))); g("v_and_b32 %s, 0xffff0000, %s" % (v(S + 3), v(T1)))
    g("v_max3_f32 %s, %s, %s, %s" % (v(T0), v(S), v(S + 1), v(S + 2)))
    g("v_max3_f32 %s, %s, %s, %s" % (v(T0), v(T0), v(S + 3), v(M)))
    g("v_cmp_gt_f32 vcc, %s, %s" % (v(T0), v(M)))
    g("s_cbranch_vccz L_ns")
    g.red_swap("v_max_f32", [T0], [T1])
    g("v_sub_f32 %s, %s, %s" % (v(AL), v(M), v(T0)))
    g("v_mul_f32 %s, s6, %s" % (v(NM), v(T0)))
    g("v_mul_f32 %s, s6, %s" % (v(AL), v(AL)))
    g("v_exp_f32 %s, %s" % (v(AL), v(AL)))
    g("v_mov_b32 %s, %s" % (v(M), v(T0)))
    g("v_mul_f32 %s, %s, %s" % (v(LS), v(AL), v(LS)))
    for n in range(32): g("v_mul_f32 %s, %s, %s" % (v(O + n), v(AL), v(O + n)))
    g.lab("L_ns")
    for e in range(4): g("v_fma_f32 %s, %s, s6, -%s" % (v(S + e), v(S + e), v(NM)))
    for e in range(4): g("v_exp_f32 %s, %s" % (v(S + e), v(S + e)))
    g("s_cmp_lg_u32 s58, 0")
    g("v_cvt_pk_bf16_f32 %s, %s, %s" % (v(P), v(S), v(S + 1)))
    g("v_cvt_pk_bf16_f32 %s, %s, %s" % (v(P + 1), v(S + 2), v(S + 3)))
    g("s_cbranch_scc1 L_vw")
    g("s_waitcnt vmcnt(12)")
    g.lab("L_v")
    for n in range(8): g("ds_read_b64_tr_b16 %s, %s offset:4096" % (v(VF + 2 * n, 2), v(VA + n)))
    g("s_add_u32 m0, s59, 4096")
    g("v_add_f32 %s, %s, %s" % (v(T0), v(S), v(S + 1)))
    g("v_add_f32 %s, %s, %s" % (v(T1), v(S + 2), v(S + 3)))
    g("v_add_f32 %s, %s, %s" % (v(LS), v(LS), v(T0)))
    g("v_add_f32 %s, %s, %s" % (v(LS), v(LS), v(T1)))
    g("s_cmp_lg_u32 s58, 0")
    for n in range(8):
        g("s_waitcnt lgkmcnt(%d)" % (7 - n))
        g("v_mfma_f32_16x16x16_bf16 %s, %s, %s, %s" % (v(O + 4 * n, 4), v(VF + 2 * n, 2), v(P, 2), v(O + 4 * n, 4)))
    g("s_cbranch_scc1 L_vs")
    g("v_mov_b32 %s, 1" % v(TK))
    g("buffer_atomic_add %s, %s, s[20:23], 0 offen sc0" % (v(TK), v(CA)))
    if o["lx"]: g("s_cmp_lg_u32 s94, 0"); g("s_cbranch_scc1 L_vf")
    for u in range(4):
        g("s_waitcnt vmcnt(%d)" % DT)
        vload(u)
    g.lab("L_vi")
    g("s_movk_i32 s3, 0x2000")
    g.lab("L_sw")
    for r in list(range(KA, KA + 4)) + list(range(VA, VA + 8)): g("v_xor_b32 %s, s3, %s" % (v(r), v(r)))
    g("s_xor_b32 s59, s59, s3")
    g("s_branch L_loop")
    if o["lx"]:
        g.lab("L_kf")
        for u in range(4):
            if o["lthr"] < 16: g("s_waitcnt vmcnt(%d)" % (o["lthr"] - 1))
            kload(u)
        g("s_branch L_ki")
        g.lab("L_vf")
        for u in range(4):
            if (o["lthv"] or o["lthr"]) < 16: g("s_waitcnt vmcnt(%d)" % (o["lthv"] or o["lthr"]))
            vload(u)
        g("s_branch L_vi")
    g.lab("L_aw")
    g("s_cmp_ge_u32 s26, %d" % (0 if o["nowo"] or o["womode"] == 4 else 8))
    g("s_cbranch_scc1 L_ai")
    g("s_bfe_u32 s4, s59, 0x2000c")
    if o["womode"]:
        g("s_cmp_ge_u32 s4, %d" % (4 - o["womode"])); g("s_cbranch_scc1 L_ai")
    g("s_lshl_b32 s4, s4, 14")
    for u in range(4):
        if u: g("s_add_u32 s4, s4, 3072")
        g("s_waitcnt vmcnt(%d)" % (int(str(o["thw"])[u]) - 1))
        g("buffer_load_dwordx4 %s, s[44:47], s4 offen offset:%d nt lds" % (v(WS_), u * 1024))
    g("s_branch L_ai")
    g.lab("L_last")
    g("s_mov_b32 s58, 1"); g("s_mov_b32 s60, 1")
    g("s_branch L_ki")
    g.lab("L_vw")
    g("s_cmp_lg_u32 s60, 2")
    g("s_cbranch_scc1 L_v")
    g("s_waitcnt vmcnt(0)")
    g("s_branch L_v")
    g.lab("L_vs")
    g("s_movk_i32 s3, 0x2000")
    g("s_cmp_eq_u32 s60, 1")
    g("s_mov_b32 s60, 2")
    g("s_cbranch_scc1 L_sw")
    def wo_late(lab):
        if o["nowo"] == 2: return
        g("s_cmp_ge_u32 s26, 8")
        g("s_cbranch_scc1 %s" % lab)
        for p in range(4 - o["womode"], 4):
            g("s_add_u32 m0, s29, %d" % (0x4000 + 4096 * p))
            for u in range(4):
                g("s_mov_b32 s4, %d" % (16384 * p + 3072 * u))
                g("buffer_load_dwordx4 %s, s[44:47], s4 offen offset:%d nt lds" % (v(WS_), u * 1024))
    if o["womode"] and o["wopos"] == 0: wo_late("L_tail")
    g.lab("L_tail")
    g.stamp(3)
    if not o["lsl"]: g.red_swap("v_add_f32", [LS], [T1])
    g("s_mov_b32 exec_lo, 0x000f000f"); g("s_mov_b32 exec_hi, 0x000f000f")
    for n in range(8): g("ds_write_b128 %s, %s offset:%d" % (v(CW), v(O + 4 * n, 4), 64 * n))
    if o["lsl"]:
        g("s_mov_b64 exec, -1")
        g.red_swap("v_add_f32", [LS], [T1])
        g("s_mov_b64 exec, 15")
    g("ds_write2_b32 %s, %s, %s offset0:0 offset1:8" % (v(MW), v(M), v(LS)))
    g("s_mov_b64 exec, -1")
    if o["womode"] and o["wopos"] == 2:
        g("s_cmp_eq_u32 s24, 4"); g("s_cbranch_scc1 L_wl")
        wo_late("L_wl")
        g.lab("L_wl")
    A = 24; GG = 4
    rd2_ = ["ds_read_b128 %s, %s" % (v(A, 4), v(MR)), "ds_read_b128 %s, %s offset:32" % (v(A + 4, 4), v(MR))]
    rd2_ += ["ds_read_b128 %s, %s offset:%d" % (v(A + 8 + 4 * w, 4), v(CR), 2048 * w) for w in range(4)]
    if HK: rdg_ = ["ds_read_b32 %s, %s" % (v(GG), v(GR)), "ds_read_b32 %s, %s offset:128" % (v(GG + 2), v(GR))]
    else: rdg_ = ["ds_read2_b32 %s, %s offset0:0 offset1:8" % (v(GG, 2), v(GR)), "ds_read2_b32 %s, %s offset0:2 offset1:10" % (v(GG + 2, 2), v(GR))]
    XR = 0 if CS else 2
    if CS:
        arrive(CN2)
        await_("L_b2", CN2, 4, rd2_, o["csl"])
        g.stamp(4)
    else:
        g("s_cmp_eq_u32 s24, 4")
        g("s_waitcnt lgkmcnt(0)")
        g("s_cbranch_scc1 L_nb2")
        g("s_barrier")
        if o["womode"] and o["wopos"] == 1: wo_late("L_nb2")
        g.lab("L_nb2")
        g.stamp(4)
        for r_ in rd2_ + rdg_: g(r_)
    R = 48
    g("v_mov_b32 %s, s30" % v(R + 3))
    g("s_waitcnt lgkmcnt(%d)" % (5 + XR))
    g("v_max3_f32 %s, %s, %s, %s" % (v(T0), v(A), v(A + 1), v(A + 2)))
    g("v_max_f32 %s, %s, %s" % (v(T0), v(T0), v(A + 3)))
    for w in range(4): g("v_sub_f32 %s, %s, %s" % (v(A + w), v(A + w), v(T0)))
    for w in range(4): g("v_mul_f32 %s, s6, %s" % (v(A + w), v(A + w)))
    for w in range(4): g("v_exp_f32 %s, %s" % (v(A + w), v(A + w)))
    g("s_waitcnt lgkmcnt(%d)" % (3 + XR))
    g("v_mul_f32 %s, %s, %s" % (v(T1), v(A), v(A + 4)))
    for w in range(1, 4): g("v_fmac_f32 %s, %s, %s" % (v(T1), v(A + w), v(A + 4 + w)))
    for e in range(4): g("v_mul_f32 %s, %s, %s" % (v(A + 8 + e), v(A), v(A + 8 + e)))
    g("v_rcp_f32 %s, %s" % (v(T2), v(T1)))
    g("v_log_f32 %s, %s" % (v(R + 2), v(T1)))
    for w in range(1, 4):
        g("s_waitcnt lgkmcnt(%d)" % (3 + XR - w))
        for e in range(4): g("v_fmac_f32 %s, %s, %s" % (v(A + 8 + e), v(A + w), v(A + 8 + 4 * w + e)))
    g("v_fmac_f32 %s, s6, %s" % (v(R + 2), v(T0)))
    for e in range(4): g("v_mul_f32 %s, %s, %s" % (v(A + 8 + e), v(T2), v(A + 8 + e)))
    g("v_cvt_pk_bf16_f32 %s, %s, %s" % (v(R), v(A + 8), v(A + 9)))
    g("v_cvt_pk_bf16_f32 %s, %s, %s" % (v(R + 1), v(A + 10), v(A + 11)))
    g("s_mov_b32 exec_hi, 0")
    if o["tailmode"] == 2: g("s_mov_b32 exec_lo, 0x00ff00ff")
    if o["tailmode"] == 3: g("s_mov_b32 exec_lo, 0x000f000f")
    if o["tailmode"] != 1: g("buffer_store_dwordx4 %s, %s, s[20:23], 0 offen%s" % (v(R, 4), v(H1A), " sc1" if o["h1s"] else ""))
    if o["tailmode"] >= 2: g("s_mov_b32 exec_lo, -1")
    g("s_mov_b32 exec_hi, -1")
    g.tstamp(8)
    if o["ts"] == 1:
        for i in (9, 10, 11, 12, 13): g.stamp(i)
    g("s_cmp_ge_u32 s26, 8")
    g("s_cbranch_scc1 L_fin")
    B = 56
    g.poll("L_p1", ["buffer_load_dwordx4 %s, %s, s[20:23], 0 offen offset:%d sc1" % (v(B + 4 * u, 4), v(P1A), 256 * u) for u in range(2)],
           [B + 3, B + 7], st=9, lim=(0 if o["tailmode"] else 0x40000),
           first=["ds_read_b64_tr_b16 %s, %s offset:%d" % (v(WO + (8 * n + 2 * t if o["md"] else 16 * t + 2 * n), 2), v(WR + (n >> 1)), 4096 * t + 8 * (n & 1)) for t in range(4) for n in range(8)])
    g.stamp(5)
    g("v_max_f32 %s, %s, %s" % (v(T0), v(B + 2), v(B + 6)))
    U = 64
    def unp(u, e):
        g("v_lshlrev_b32 %s, 16, %s" % (v(U + 4 * u + 2 * e), v(B + 4 * u + e)))
        g("v_and_b32 %s, 0xffff0000, %s" % (v(U + 4 * u + 2 * e + 1), v(B + 4 * u + e)))
    if o["tr1"]:
        for e, ct in enumerate(["row_ror:4", "row_ror:8"]):
            unp(0, e); g("v_max_f32_dpp %s, %s, %s %s row_mask:0xf bank_mask:0xf" % (v(T0), v(T0), v(T0), ct))
        for e, sw in enumerate(["v_permlane16_swap_b32", "v_permlane32_swap_b32"]):
            g("v_mov_b32 %s, %s" % (v(T1), v(T0))); unp(1, e)
            g("%s %s, %s" % (sw, v(T1), v(T0))); g("v_max_f32 %s, %s, %s" % (v(T0), v(T1), v(T0)))
    else:
        for u in range(2):
            for e in range(2): unp(u, e)
        g.red_dpp("v_max_f32", [T0], ["row_ror:4", "row_ror:8"])
        g.red_swap("v_max_f32", [T0], [T1])
    for u in range(2): g("v_sub_f32 %s, %s, %s" % (v(B + 4 * u + 2), v(B + 4 * u + 2), v(T0)))
    for u in range(2): g("v_exp_f32 %s, %s" % (v(B + 4 * u + 2), v(B + 4 * u + 2)))
    g("s_nop 0")
    for e in range(4): g("v_mul_f32 %s, %s, %s" % (v(U + e), v(B + 2), v(U + e)))
    g("v_add_f32 %s, %s, %s" % (v(B), v(B + 2), v(B + 6)))
    for e in range(4): g("v_fmac_f32 %s, %s, %s" % (v(U + e), v(B + 6), v(U + 4 + e)))
    if o["tr1"]:
        g("v_mov_b32 %s, %s" % (v(B + 1), v(B)))
        g.nop(1)
        for a_, b_ in ((U, U + 2), (U + 1, U + 3), (B + 1, B)): g("v_permlane32_swap_b32 %s, %s" % (v(a_), v(b_)))
        g("v_add_f32 %s, %s, %s" % (v(U), v(U), v(U + 2)))
        g("v_add_f32 %s, %s, %s" % (v(U + 1), v(U + 1), v(U + 3)))
        g("v_add_f32 %s, %s, %s" % (v(B), v(B + 1), v(B)))
        g("v_mov_b32 %s, %s" % (v(B + 1), v(B)))
        g.nop(1)
        g("v_permlane16_swap_b32 %s, %s" % (v(U), v(U + 1)))
        g("v_permlane16_swap_b32 %s, %s" % (v(B + 1), v(B)))
        g("v_add_f32 %s, %s, %s" % (v(U), v(U), v(U + 1)))
        g("v_add_f32 %s, %s, %s" % (v(B), v(B + 1), v(B)))
        g.red_dpp("v_add_f32", [U, B], ["row_ror:4", "row_ror:8"])
        g("v_rcp_f32 %s, %s" % (v(B), v(B)))
        g("s_cmp_eq_u32 s24, 4")
        g("s_mov_b32 exec_lo, 0x000f000f"); g("s_mov_b32 exec_hi, 0x000f000f")
        g("v_mul_f32 %s, %s, %s" % (v(U), v(B), v(U)))
        g("v_cvt_pk_bf16_f32 %s, %s, %s" % (v(U), v(U), v(U)))
        g("ds_write_b16 %s, %s" % (v(OW), v(U)))
        g("s_mov_b64 exec, -1")
    else:
        rs = [B, U, U + 1, U + 2, U + 3]
        g.red_dpp("v_add_f32", rs, ["row_ror:4", "row_ror:8"])
        g.red_swap("v_add_f32", rs, [B + 1, U + 4, U + 5, U + 6, U + 7])
        g("v_rcp_f32 %s, %s" % (v(B), v(B)))
        g("s_cmp_eq_u32 s24, 4")
        for e in range(4): g("v_mul_f32 %s, %s, %s" % (v(U + e), v(B), v(U + e)))
        g("v_cvt_pk_bf16_f32 %s, %s, %s" % (v(U), v(U), v(U + 1)))
        g("v_cvt_pk_bf16_f32 %s, %s, %s" % (v(U + 1), v(U + 2), v(U + 3)))
        g("s_mov_b64 exec, 15")
        g("ds_write_b64 %s, %s" % (v(OW), v(U, 2)))
        g("s_mov_b64 exec, -1")
    AC, AX = 48, 40
    def acc(n): return AC + n if n < 2 else AX + n
    g("v_mov_b32 %s, 0" % v(AC + 2))
    rd3_ = ["ds_read_b128 %s, %s" % (v(U, 4), v(OR)), "ds_read_b128 %s, %s offset:16" % (v(U + 4, 4), v(OR))]
    if CS:
        g.tstamp(10)
        arrive(CN3)
        await_("L_b3", CN3, 4, rd3_, o["csl"])
        g.tstamp(11)
    else:
        g("s_waitcnt lgkmcnt(0)")
        g.tstamp(10)
        g("s_cbranch_scc1 L_nb3")
        g("s_barrier")
        g.lab("L_nb3")
        g.tstamp(11)
        for r_ in rd3_: g(r_)
    if o["md"]:
        for j in range(2):
            g("s_waitcnt lgkmcnt(%d)" % (1 - j))
            for n in range(8): g("v_mfma_f32_16x16x32_bf16 %s, %s, %s, %s" % (v(O + 4 * n, 4), v(U + 4 * j, 4), v(WO + 8 * n + 4 * j, 4), v(O + 4 * n, 4) if j else "0"))
        for n in range(8):
            if n == 0: g.nop(1)
            g("v_mov_b32_dpp %s, %s quad_perm:[0,1,2,3] row_mask:0x%x bank_mask:0xf" % (v(AC + (n & 1)), v(O + 4 * n), 1 << (n >> 1)))
    else:
        for t in range(4):
            if t % 2 == 0: g("s_waitcnt lgkmcnt(%d)" % (1 - t // 2))
            for hh in range(2):
                for n in range(8):
                    g("v_dot2_f32_bf16 %s, %s, %s, %s" % (v(acc(n)), v(WO + 16 * t + 2 * n + hh), v(U + 2 * t + hh), "0" if t == 0 and hh == 0 else v(acc(n))))
        g.tswap("v_permlane32_swap_b32", [(acc(n), acc(n + 4)) for n in range(4)])
        g.tswap("v_permlane16_swap_b32", [(acc(n), acc(n + 2)) for n in range(2)])
    if HK:
        for e in range(2): g("v_bfi_b32 %s, 15, %s, %s" % (v(AC + e), v(MKW + e), v(AC + e)))
        g("buffer_store_dwordx2 %s, %s, s[20:23], 0 offen sc1" % (v(AC, 2), v(H2A)))
    else: g("buffer_store_dwordx4 %s, %s, s[20:23], 0 offen sc1" % (v(AC, 4), v(H2A)))
    g.tstamp(12)
    R0, R1 = B, B + 1
    if HK:
        NL = 2 * HK; assert NL <= 8
        g("s_and_b32 s3, s24, 3")
        g("s_cbranch_scc1 L_fin")
        g("s_cmp_ge_u32 s93, 64")
        g("s_cbranch_scc1 L_fin")
        if CS:
            g("ds_read_b32 %s, %s offset:%d" % (v(CNV), v(CNA), GF))
            for r_ in rdg_: g(r_)
        g("s_mov_b32 s31, 0x40000")
        g("s_movk_i32 s4, 0x1000")
        if o["ack"]: g("s_waitcnt vmcnt(0)")
        g.tstamp(13)
        B2 = 88
        g.lab("L_p2")
        for u in range(NL): g("buffer_load_dwordx4 %s, %s, s[20:23], %s offen offset:%d sc1" % (v(B2 + 4 * u, 4), v(P2A), "0" if u < 4 else "s4", 1024 * (u & 3)))
        for u in range(NL):
            g("s_waitcnt vmcnt(%d)" % (NL - 1 - u))
            for e in range(4): g("v_xor_b32 %s, %s, %s" % (v(B2 + 4 * u + e), v(MKR + e), v(B2 + 4 * u + e)))
            if u == 0: g("v_or_b32 %s, %s, %s" % (v(T0), v(B2), v(B2 + 1)))
            else: g("v_or3_b32 %s, %s, %s, %s" % (v(T0), v(B2 + 4 * u), v(B2 + 4 * u + 1), v(T0)))
            g("v_or3_b32 %s, %s, %s, %s" % (v(T0), v(B2 + 4 * u + 2), v(B2 + 4 * u + 3), v(T0)))
            if u == 1:
                for e in (0, 2): g("v_pk_add_f32 %s, %s, %s" % (v(B + e, 2), v(B2 + e, 2), v(B2 + 4 + e, 2)))
            elif u:
                for e in (0, 2): g("v_pk_add_f32 %s, %s, %s" % (v(B + e, 2), v(B + e, 2), v(B2 + 4 * u + e, 2)))
        g("v_and_b32 %s, 15, %s" % (v(T0), v(T0)))
        g("v_cmp_ne_u32 vcc, 0, %s" % v(T0))
        g("s_cbranch_vccz L_p2_done")
        g("s_sub_u32 s31, s31, 1")
        g("s_cbranch_scc0 L_p2")
        g.lab("L_p2_done")
        g.stamp(6)
        g.tswap("v_permlane32_swap_b32", [(B, B + 2), (B + 1, B + 3)])
        g.tswap("v_permlane16_swap_b32", [(B, B + 1)])
        g.red_dpp("v_add_f32", [B], ["row_ror:8", "row_ror:4"][:3 - LK])
        if CS:
            g("s_waitcnt lgkmcnt(0)")
            g("v_readfirstlane_b32 s3, %s" % v(CNV))
            g("s_cmp_lg_u32 s3, 0")
            g("s_cbranch_scc1 L_gok")
            await_("L_g", GF, 1, rdg_, 0)
            g("s_waitcnt lgkmcnt(0)")
            g.lab("L_gok")
        g.rbf([(B, B)], T0)
        g("v_mul_f32 %s, %s, %s" % (v(B), v(B), v(GG)))
        g.rbf([(B, B)], T0)
        g("v_add_f32 %s, %s, %s" % (v(B), v(B), v(GG + 2)))
        g("v_cvt_pk_bf16_f32 %s, %s, %s" % (v(B), v(B), v(B)))
        m16 = (1 << (2 * HK)) - 1
        g("s_mov_b32 exec_lo, %s" % hx(m16 | m16 << 16)); g("s_mov_b32 exec_hi, %s" % hx(m16 | m16 << 16))
        g("buffer_store_short %s, %s, s[16:19], 0 offen" % (v(B), v(OUTA)))
    elif o["h2w"]:
        g("s_and_b32 s3, s24, 3")
        g("s_cbranch_scc1 L_fin")
        g.poll("L_p2", ["buffer_load_dwordx4 %s, %s, s[20:23], 0 offen offset:%d sc1" % (v(B + 4 * u, 4), v(P2A), 1024 * u) for u in range(4)],
               [B + 4 * u + 3 for u in range(4)], st=13, lim=(0 if o["tailmode"] else 0x40000))
        g.stamp(6)
        for e in range(2): g("v_add_f32 %s, %s, %s" % (v(B + e), v(B + e), v(B + 4 + e))); g("v_add_f32 %s, %s, %s" % (v(B + 8 + e), v(B + 8 + e), v(B + 12 + e)))
        for e in range(2): g("v_add_f32 %s, %s, %s" % (v(B + e), v(B + e), v(B + 8 + e)))
        g.red_dpp("v_add_f32", [R0, R1], ["row_ror:4", "row_ror:8"])
        g.red_swap("v_add_f32", [R0, R1], [T0, T1])
    else:
        g.poll("L_p2", ["buffer_load_dwordx4 %s, %s, s[20:23], 0 offen sc1" % (v(B, 4), v(P2A))], [B + 3], st=13, lim=(0 if o["tailmode"] else 0x40000))
        g.stamp(6)
        g.red_wave("v_add_f32", [R0, R1], [T0, T1])
    if not HK:
        g.rbf([(R0, R1)], T0)
        g("v_mul_f32 %s, %s, %s" % (v(R0), v(R0), v(GG)))
        g("v_mul_f32 %s, %s, %s" % (v(R1), v(R1), v(GG + 1)))
        g.rbf([(R0, R1)], T0)
        g("v_add_f32 %s, %s, %s" % (v(R0), v(R0), v(GG + 2)))
        g("v_add_f32 %s, %s, %s" % (v(R1), v(R1), v(GG + 3)))
        g("v_cvt_pk_bf16_f32 %s, %s, %s" % (v(R0), v(R0), v(R1)))
        g("s_mov_b64 exec, %d" % (15 if o["h2w"] else 1))
    OM = ["", " sc1", " sc0 sc1", " nt", " sc1 nt"][o["omod"]]
    if not o["noout"] and not HK:
        g("buffer_store_short %s, %s, s[16:19], 0 offen%s" % (v(R0), v(OUTA), OM))
        g("buffer_store_short_d16_hi %s, %s, s[16:19], 0 offen offset:8%s" % (v(R0), v(OUTA), OM))
    if not o["epearly"]:
        g("s_or_b32 s3, s2, s24")
        g("s_cbranch_scc1 L_noep")
        g("buffer_store_dword %s, off, s[20:23], 0 offset:%d sc1" % (v(AC + 3), WS_EPOCH))
        g.lab("L_noep")
    g("s_mov_b64 exec, -1")
    if o["stamps"] == 1:
        g("s_branch L_fin2")
    g.lab("L_fin")
    if o["stamps"] == 1:
        g.stamp(5); g.stamp(6)
        g.lab("L_fin2")
        g.stamp(7)
        g("s_cmp_lg_u32 s24, %d" % o["sw"])
        g("s_cbranch_scc1 L_fin3")
        g.write_stamps([0, 1, 2, 3, 4, 5, 6, 7] + ([8, 9, 10, 11, 12, 13] if o["ts"] in (1, 2, 4) else []))
        g.lab("L_fin3")
    if o["endw"]: g("s_waitcnt vmcnt(0)")
    g("s_endpgm")

    g.lab("L_aux")
    if o["auxprio"]: g("s_setprio %d" % o["auxprio"])
    X, XF, TT = 4, 8, 16
    g("v_lshlrev_b32 v3, 4, v0")
    if o["RS"] == 1:
        if o["wqrot"]: g("s_add_u32 s3, s26, s25"); g("s_and_b32 s3, s3, 7")
        else: g("s_and_b32 s3, s26, 7")
        g("s_lshl_b32 s3, s3, 6")
        g("s_lshr_b32 s7, s26, 3"); g("s_lshl_b32 s7, s7, 4"); g("s_add_u32 s27, s3, s7")
        g("s_lshl_b32 s3, s25, 9"); g("s_add_u32 s3, s3, s27"); g("s_lshl_b32 s3, s3, 1")
        g("v_lshrrev_b32 %s, 1, v0" % v(TT)); g("v_lshlrev_b32 %s, 13, %s" % (v(TT), v(TT)))
        g("v_and_b32 %s, 1, v0" % v(TT + 1)); g("v_lshl_or_b32 %s, %s, 4, %s" % (v(TT), v(TT + 1), v(TT)))
        g("v_add_u32 %s, s3, %s" % (v(TT), v(TT)))
    RS = o["RS"]
    if RS > 1:
        assert o["ffnlate"] and o["wqmode"] == 0
        lg = RS.bit_length() - 1
        g("s_and_b32 s3, s26, 7"); g("s_lshl_b32 s27, s3, 6")
        g("s_lshr_b32 s63, s26, 3")
        if RS == 2:
            g("s_and_b32 s7, s63, 1"); g("s_lshl_b32 s7, s7, 5"); g("s_add_u32 s27, s27, s7"); g("s_lshr_b32 s63, s63, 1")
        g("s_lshl_b32 s3, s25, 9"); g("s_add_u32 s3, s3, s27"); g("s_lshl_b32 s3, s3, 1")
        g("s_lshl_b32 s7, s63, %d" % (22 - lg)); g("s_add_u32 s3, s3, s7")
        g("v_lshrrev_b32 %s, %d, v0" % (v(TT), 1 + lg)); g("v_lshlrev_b32 %s, 13, %s" % (v(TT), v(TT)))
        g("v_and_b32 %s, %d, v0" % (v(TT + 1), 2 * RS - 1))
        if RS == 2: g("v_lshrrev_b32 %s, 4, v0" % v(TT + 8)); g("v_and_b32 %s, 2, %s" % (v(TT + 8), v(TT + 8)))
        else: g("v_lshrrev_b32 %s, 3, v0" % v(TT + 8)); g("v_and_b32 %s, 2, %s" % (v(TT + 8), v(TT + 8)))
        g("v_xor_b32 %s, %s, %s" % (v(TT + 1), v(TT + 1), v(TT + 8)))
        g("v_lshl_or_b32 %s, %s, 4, %s" % (v(TT), v(TT + 1), v(TT)))
        g("v_add_u32 %s, s3, %s" % (v(TT), v(TT)))
        if RS == 4: g("v_xor_b32 %s, 64, %s" % (v(TT + 8), v(TT)))
    if o["wqmode"] == 1:
        g("s_lshl_b32 s3, s2, 14"); g("v_add_u32 %s, s3, v3" % v(TT))
    if o["wqmode"] == 2:
        g("s_and_b32 s3, s2, 63"); g("s_lshl_b32 s3, s3, 7"); g("s_lshr_b32 s7, s2, 6"); g("s_lshl_b32 s7, s7, 20"); g("s_add_u32 s3, s3, s7")
        g("v_lshrrev_b32 %s, 3, v0" % v(TT)); g("v_lshlrev_b32 %s, 13, %s" % (v(TT), v(TT)))
        g("v_and_b32 %s, 7, v0" % v(TT + 1)); g("v_lshl_or_b32 %s, %s, 4, %s" % (v(TT), v(TT + 1), v(TT)))
        g("v_add_u32 %s, s3, %s" % (v(TT), v(TT)))
    if o["wqmode"] == 3:
        g("s_and_b32 s3, s2, 127"); g("s_and_b32 s7, s3, 7"); g("s_lshr_b32 s3, s3, 4"); g("s_lshl_b32 s3, s3, 3"); g("s_add_u32 s3, s3, s7"); g("s_lshl_b32 s3, s3, 7")
        g("s_bfe_u32 s7, s2, 0x10003"); g("s_lshl_b32 s7, s7, 6"); g("s_add_u32 s3, s3, s7")
        g("s_lshr_b32 s7, s2, 7"); g("s_lshl_b32 s7, s7, 21"); g("s_add_u32 s3, s3, s7")
        g("v_lshrrev_b32 %s, 2, v0" % v(TT)); g("v_lshlrev_b32 %s, 13, %s" % (v(TT), v(TT)))
        g("v_and_b32 %s, 3, v0" % v(TT + 1)); g("v_lshl_or_b32 %s, %s, 4, %s" % (v(TT), v(TT + 1), v(TT)))
        g("v_add_u32 %s, s3, %s" % (v(TT), v(TT)))
    g("v_mov_b32 %s, %d" % (v(TT + 2), TAGA)); g("v_mov_b32 %s, 0" % v(TT + 3))
    g("ds_write_b32 %s, %s offset:4" % (v(TT + 2), v(TT + 3)))
    if CS:
        g("ds_write2_b32 %s, %s, %s offset0:4 offset1:5" % (v(TT + 2), v(TT + 3), v(TT + 3)))
        g("ds_write2_b32 %s, %s, %s offset0:6 offset1:7" % (v(TT + 2), v(TT + 3), v(TT + 3)))
        g("ds_write_b32 %s, %s offset:32" % (v(TT + 2), v(TT + 3)))
    g("s_waitcnt lgkmcnt(0)")
    if o["ts"] == 3: g.stamp(11)
    if o["b0"] == 3: g("s_barrier")
    g.srd(8, 32, 1024)
    g.srd(12, 38, 512 * 8192)
    g.srd(20, 54, WS_SIZE)
    g("buffer_load_dwordx4 %s, v3, s[8:11], 0 offen" % v(X, 4))
    g("buffer_load_dword %s, off, s[20:23], 0 offset:%d sc1" % (v(TT + 1), WS_EPOCH))
    g("s_mov_b32 s4, 0")
    for u in range(16):
        g("s_mov_b32 m0, %d" % (STAGE + u * 1024))
        if u: g("s_add_u32 s4, s4, %d" % ((0x40000 // RS, 1024, 0x10000, 0x20000)[o["wqmode"]]))
        else: g("s_nop 0")
        g("buffer_load_dwordx4 %s, s[12:15], s4 offen%s lds" % (v(TT + 8 if RS == 4 and u & 1 else TT), " nt" if o["wqnt"] else ""))
    if o["b0"] != 3: g("s_barrier")
    g("v_and_b32 %s, %d, v0" % (v(TT + 2), 4 * max(HK, 1) - 1)); g("s_lshl_b32 s3, s93, %d" % (4 + LK)); g("v_lshl_add_u32 %s, %s, 2, s3" % (v(TT + 2), v(TT + 2)))
    g("buffer_load_dword %s, %s, s[8:11], 0 offen" % (v(TT + 2), v(TT + 2)))
    g("s_mul_i32 s3, s25, %d" % (NP * o["cstride"])); g("s_add_u32 s3, s3, %d" % WS_CNT)
    g("v_mul_u32_u24 %s, %d, v0" % (v(TT + 3), o["cstride"])); g("v_add_u32 %s, s3, %s" % (v(TT + 3), v(TT + 3))); g("v_mov_b32 %s, 0" % v(TT + 4))
    g("s_cmp_eq_u32 s26, 0"); g("s_cselect_b32 vcc_lo, %d, 0" % ((1 << NP) - 1)); g("s_mov_b32 vcc_hi, 0")
    g("v_mov_b32 %s, 0x7ffffff0" % v(TT + 5))
    g("v_cndmask_b32 %s, %s, %s, vcc" % (v(TT + 3), v(TT + 5), v(TT + 3)))
    g("buffer_store_dword %s, %s, s[20:23], 0 offen sc1" % (v(TT + 4), v(TT + 3)))
    g("s_waitcnt vmcnt(18)")
    g.stamp(13)
    g("v_readfirstlane_b32 s30, %s" % v(TT + 1))
    for e in range(4):
        g("v_lshlrev_b32 %s, 16, %s" % (v(XF + 2 * e), v(X + e)))
        g("v_and_b32 %s, 0xffff0000, %s" % (v(XF + 2 * e + 1), v(X + e)))
    g("s_mul_i32 s30, s30, 0x9e3779b1")
    g("s_add_u32 s30, s30, 0x7f4a7c15")
    a, b, c_ = TT + 5, TT + 6, TT + 7
    g("v_add_f32 %s, %s, %s" % (v(a), v(XF), v(XF + 1)))
    for e in range(2, 8): g("v_add_f32 %s, %s, %s" % (v(a), v(a), v(XF + e)))
    g.red_wave("v_add_f32", [a], [b])
    g("v_mul_f32 %s, %s, %s" % (v(a), hx(f2u(1.0 / 512)), v(a)))
    g("v_sub_f32 %s, %s, %s" % (v(c_), v(XF), v(a)))
    g("v_mul_f32 %s, %s, %s" % (v(b), v(c_), v(c_)))
    for e in range(1, 8):
        g("v_sub_f32 %s, %s, %s" % (v(c_), v(XF + e), v(a)))
        g("v_fmac_f32 %s, %s, %s" % (v(b), v(c_), v(c_)))
    g.red_wave("v_add_f32", [b], [c_])
    g("v_mul_f32 %s, %s, %s" % (v(b), hx(f2u(1.0 / 512)), v(b)))
    g.rbf([(a, b)], c_)
    g("v_add_f32 %s, %s, %s" % (v(b), hx(f2u(1e-5)), v(b)))
    g.rbf([(b, b)], c_)
    g("v_sqrt_f32 %s, %s" % (v(b), v(b)))
    for e in range(8): g("v_sub_f32 %s, %s, %s" % (v(XF + e), v(XF + e), v(a)))
    g.rbf([(b, b)], c_)
    g("v_rcp_f32 %s, %s" % (v(a), v(b)))
    g.rbf([(XF + 2 * e, XF + 2 * e + 1) for e in range(4)], c_)
    for e in range(8):
        g("v_mul_f32 %s, %s, %s" % (v(c_), v(XF + e), v(a)))
        g("v_fma_f32 %s, -%s, %s, %s" % (v(XF + e), v(c_), v(b), v(XF + e)))
        g("v_fma_f32 %s, %s, %s, %s" % (v(XF + e), v(XF + e), v(a), v(c_)))
    for e in range(4): g("v_cvt_pk_bf16_f32 %s, %s, %s" % (v(X + e), v(XF + 2 * e), v(XF + 2 * e + 1)))
    g("v_add_u32 %s, %d, v3" % (v(a), XN))
    g("ds_write_b128 %s, %s" % (v(a), v(X, 4)))
    W1, W2 = 96, 160
    fm = o["ffnmode"]
    def ffn_loads():
        g("v_lshrrev_b32 %s, 3, v0" % v(a)); g("v_and_b32 %s, 7, v0" % v(b))
        g("s_cmp_eq_u32 s60, 2")
        g("s_cbranch_scc1 L_rb")
        g.srd(8, 44, 512 * 3584)
        g.srd(16, 46, 512 * 3584)
        g("s_mul_i32 s3, s62, %d" % (128 * 3584)); g("s_lshl_b32 s7, s61, 7"); g("s_add_u32 s3, s3, s7")
        g("s_movk_i32 s7, 3584")
        g("s_branch L_rj")
        g.lab("L_rb")
        g.srd(8, 48, 1792 * 1024)
        g.srd(16, 48, 1792 * 1024 - 128 * 1024, "0x20000")
        g("s_lshl_b32 s3, s61, 18"); g("s_lshl_b32 s7, s25, 7"); g("s_add_u32 s3, s3, s7")
        g("s_movk_i32 s7, 1024")
        g.lab("L_rj")
        g("v_lshlrev_b32 %s, 1, %s" % (v(a), v(a))); g("v_mul_u32_u24 %s, s7, %s" % (v(c_), v(a)))
        g("v_lshl_add_u32 %s, %s, 4, %s" % (v(c_), v(b), v(c_))); g("v_add_u32 %s, s3, %s" % (v(c_), v(c_)))
        g("v_add_u32 %s, s7, %s" % (v(a), v(c_)))
        g("s_lshl_b32 s7, s7, 4")
        g("s_mov_b32 s4, 0")
        for k in range(8):
            if k: g("s_add_u32 s4, s4, s7")
            for i in range(2):
                g("buffer_load_dwordx4 %s, %s, s[8:11], s4 offen nt" % (v(W1 + 8 * k + 4 * i, 4), v(a if i else c_)))
                g("buffer_load_dwordx4 %s, %s, s[16:19], s4 offen nt" % (v(W2 + 8 * k + 4 * i, 4), v(a if i else c_)))
    g("s_mov_b32 s60, 0")
    if not o["noffn"]:
        g("s_sub_u32 s61, s26, 22"); g("s_cmp_lt_u32 s61, 7"); g("s_cselect_b32 s60, 2, 0")
        g("s_sub_u32 s3, s26, 8"); g("s_cmp_lt_u32 s3, 14")
        g("s_cbranch_scc0 L_nra")
        g("s_mul_i32 s7, s25, 14"); g("s_add_u32 s3, s3, s7")
        g("s_mov_b32 s60, 1"); g("s_lshr_b32 s61, s3, 2"); g("s_and_b32 s62, s3, 3")
        g.lab("L_nra")
    if o["ffnlate"]:
        if RS == 1: g("s_waitcnt vmcnt(0)")
    else:
        g("s_cmp_eq_u32 s60, 0")
        g("s_cbranch_scc1 L_nofl")
        ffn_loads()
        g("s_waitcnt vmcnt(32)")
        g("s_branch L_fl")
        g.lab("L_nofl")
        g("s_waitcnt vmcnt(0)")
        g.lab("L_fl")
    if RS == 1:
        XA, WA, Dq = 24, 25, 28
        FB = 32
        g("v_lshlrev_b32 %s, 4, v1" % v(XA)); g("v_add_u32 %s, %d, %s" % (v(XA), XN, v(XA)))
        g("v_lshrrev_b32 %s, 2, v2" % v(a))
        g("v_lshl_add_u32 %s, v1, 3, %s" % (v(a), v(a)))
        g("v_and_b32 %s, 3, v0" % v(b))
        g("v_lshlrev_b32 %s, 5, %s" % (v(WA), v(a)))
        g("v_lshl_or_b32 %s, %s, 3, %s" % (v(WA), v(b), v(WA)))
        g("v_add_u32 %s, %d, %s" % (v(WA), STAGE, v(WA)))
        def rd(grp):
            for k in range(4):
                t = 4 * grp + k; r0 = FB + 32 * (grp & 1) + 8 * k
                g("ds_read_b128 %s, %s offset:%d" % (v(r0, 4), v(XA), 64 * t))
                g("ds_read_b64_tr_b16 %s, %s offset:%d" % (v(r0 + 4, 2), v(WA), 1024 * t))
                g("ds_read_b64_tr_b16 %s, %s offset:%d" % (v(r0 + 6, 2), v(WA), 1024 * t + 128))
        g("s_waitcnt lgkmcnt(0)")
        g.stamp(8)
        rd(0)
        for grp in range(4):
            g("s_waitcnt lgkmcnt(0)")
            if grp < 3: rd(grp + 1)
            for k in range(4):
                r0 = FB + 32 * (grp & 1) + 8 * k
                g("v_mfma_f32_16x16x32_bf16 %s, %s, %s, %s" % (v(Dq, 4), v(r0 + 4, 4), v(r0, 4), "0" if grp == 0 and k == 0 else v(Dq, 4)))
        g("s_lshl_b32 s3, s25, 11"); g("s_add_u32 s4, s3, %d" % WS_Q)
        g("s_lshl_b32 s3, s27, 2"); g("s_add_u32 s3, s3, s4")
        g("v_lshlrev_b32 %s, 4, v1" % v(a))
        g("v_mov_b32 %s, s30" % v(FB + 1)); g("v_mov_b32 %s, s30" % v(FB + 3))
        g.nop(2)
        g("v_cvt_pk_bf16_f32 %s, %s, %s" % (v(FB), v(Dq), v(Dq + 1)))
        g("v_cvt_pk_bf16_f32 %s, %s, %s" % (v(FB + 2), v(Dq + 2), v(Dq + 3)))
        g("s_mov_b32 exec_lo, 0x00010001"); g("s_mov_b32 exec_hi, 0x00010001")
        g("buffer_store_dwordx4 %s, %s, s[20:23], s3 offen sc1" % (v(FB, 4), v(a)))
        g("s_mov_b64 exec, -1")
        g.stamp(9)
        QB = 40
        g.poll("L_pq", ["buffer_load_dwordx4 %s, v3, s[20:23], s4 offen offset:%d sc1" % (v(QB + 4 * u, 4), 1024 * u) for u in range(2)],
               [QB + 1, QB + 3, QB + 5, QB + 7])
        g.stamp(10)
        g("v_lshlrev_b32 %s, 3, v0" % v(a)); g("v_add_u32 %s, %d, %s" % (v(a), QA, v(a)))
        g("v_mov_b32 %s, %s" % (v(QB + 1), v(QB + 2))); g("v_mov_b32 %s, %s" % (v(QB + 5), v(QB + 6)))
        g("v_mov_b32 %s, %d" % (v(b), TAGA))
        g("ds_write_b64 %s, %s" % (v(a), v(QB, 2)))
        g("ds_write_b64 %s, %s offset:512" % (v(a), v(QB + 4, 2)))
        g("v_mov_b32 %s, s30" % v(QB + 2)); g("v_mov_b32 %s, 1" % v(QB + 3))
        g("ds_write_b64 %s, %s" % (v(b), v(QB + 2, 2)))
    else:
        XA, WA, Dq, XF_, WF = 24, 25, 32, 48, 96
        KS_ = 16 // RS; pitch = 32 * RS
        g("s_lshl_b32 s3, s63, %d" % (10 - lg)); g("s_add_u32 s3, s3, %d" % XN)
        g("v_lshl_add_u32 %s, v1, 4, s3" % v(XA))
        g("v_lshrrev_b32 %s, 2, v2" % v(a))
        g("v_lshl_add_u32 %s, v1, 3, %s" % (v(c_), v(a)))
        g("v_and_b32 %s, 3, v0" % v(b))
        g("v_lshlrev_b32 %s, %d, %s" % (v(WA), 5 + lg, v(c_)))
        g("v_lshl_or_b32 %s, %s, 3, %s" % (v(WA), v(b), v(WA)))
        g("v_and_b32 %s, 1, v1" % v(b))
        if RS == 4: g("v_lshrrev_b32 %s, 1, %s" % (v(a), v(a))); g("v_lshl_or_b32 %s, %s, 1, %s" % (v(b), v(b), v(a)))
        g("v_lshl_or_b32 %s, %s, 5, %s" % (v(WA), v(b), v(WA)))
        g("v_add_u32 %s, %d, %s" % (v(WA), STAGE, v(WA)))
        for ct in range(1, RS): g("v_xor_b32 %s, %d, %s" % (v(WA + ct), 32 * ct, v(WA)))
        g("s_waitcnt lgkmcnt(0)")
        for k in range(KS_): g("ds_read_b128 %s, %s offset:%d" % (v(XF_ + 4 * k, 4), v(XA), 64 * k))
        QF_ = o["qfull"]
        g("s_mul_i32 s4, s25, %d" % ((2048 << QF_) * RS)); g("s_add_u32 s4, s4, %d" % WS_Q)
        g("s_lshl_b32 s3, s63, %d" % (11 + QF_)); g("s_add_u32 s3, s3, s4"); g("s_lshl_b32 s7, s27, %d" % (2 + QF_)); g("s_add_u32 s3, s3, s7")
        MK = [40, 34, 36, 42]
        if QF_:
            g("v_lshrrev_b32 %s, 1, v2" % v(b)); g("v_and_b32 %s, 1, v2" % v(c_))
            g("v_lshlrev_b32 %s, 5, v1" % v(a)); g("v_lshl_or_b32 %s, %s, 7, %s" % (v(a), v(b), v(a))); g("v_lshl_or_b32 %s, %s, 4, %s" % (v(a), v(c_), v(a)))
            for ct in range(1, RS): g("v_cmp_eq_u32 %s, %d, %s" % (s(MK[ct], 2), ct, v(b)))
            g("v_cmp_eq_u32 %s, 1, %s" % (s(MK[0], 2), v(c_)))
        else:
            if not o["nib"]:
                g("v_lshlrev_b32 %s, 4, v1" % v(a)); g("v_lshl_or_b32 %s, v2, 6, %s" % (v(a), v(a)))
                g("s_mov_b32 s56, 0x07060503"); g("s_mov_b32 s57, 0x07060502"); g("s_mov_b32 s58, 0x07060501")
            for ct in range(1, RS): g("v_cmp_eq_u32 %s, %d, v2" % (s(MK[ct], 2), ct))
            NP_ = NC_ = 80
            if o["nib"]:
                assert RS == 4
                g("v_lshlrev_b32 %s, 6, v1" % v(a)); g("v_lshl_or_b32 %s, v2, 4, %s" % (v(a), v(a)))
                g("s_mul_i32 s59, s30, 0x85ebca6b"); g("s_xor_b32 s59, s59, 0x5a5aa5a5"); g("s_mov_b32 s56, -16")
                g("v_and_b32 %s, 2, v0" % v(NC_ + 2)); g("v_and_b32 %s, 1, v0" % v(NC_ + 1))
                g("v_cmp_eq_u32 vcc, 2, %s" % v(NC_ + 2))
                g("v_mov_b32 %s, s30" % v(c_)); g("v_mov_b32 %s, s59" % v(b))
                g("v_lshlrev_b32 %s, 4, %s" % (v(NC_ + 1), v(NC_ + 1)))
                g("v_cndmask_b32 %s, %s, %s, vcc" % (v(NC_), v(c_), v(b)))
                g("v_lshrrev_b32 %s, %s, %s" % (v(NC_), v(NC_ + 1), v(NC_)))
                for e in (3, 2, 1, 0): g("v_bfe_u32 %s, %s, %d, 4" % (v(NC_ + e), v(NC_), 4 * e))
        g("s_waitcnt vmcnt(0) lgkmcnt(0)")
        g.stamp(8)
        seq = [(k, ct) for k in range(KS_) for ct in range(RS)]
        def rd2(j):
            k, ct = seq[j]
            g("ds_read_b64_tr_b16 %s, %s offset:%d" % (v(WF + 4 * j, 2), v(WA + ct), 32 * pitch * k))
            g("ds_read_b64_tr_b16 %s, %s offset:%d" % (v(WF + 4 * j + 2, 2), v(WA + ct), 32 * pitch * k + 4 * pitch))
        AH = 6
        for j in range(AH): rd2(j)
        for j in range(16):
            if j + AH < 16: rd2(j + AH)
            g("s_waitcnt lgkmcnt(%d)" % (2 * min(AH, 15 - j)))
            k, ct = seq[j]
            g("v_mfma_f32_16x16x32_bf16 %s, %s, %s, %s" % (v(Dq + 4 * ct, 4), v(WF + 4 * j, 4), v(XF_ + 4 * k, 4), "0" if k == 0 else v(Dq + 4 * ct, 4)))
        g.nop(8 if RS == 2 else 5)
        for ct in range(1, RS):
            for e in range(4): g("v_cndmask_b32 %s, %s, %s, %s" % (v(Dq + e), v(Dq + e), v(Dq + 4 * ct + e), s(MK[ct], 2)))
        if QF_:
            for e in range(2): g("v_cndmask_b32 %s, %s, %s, %s" % (v(Dq + e), v(Dq + e), v(Dq + 2 + e), s(MK[0], 2)))
        elif o["nib"]:
            for e in range(4): g("v_add_u32 %s, 8, %s" % (v(Dq + e), v(Dq + e)))
            for e in range(4): g("v_and_or_b32 %s, %s, s56, %s" % (v(Dq + e), v(Dq + e), v(NP_ + e)))
        else:
            for e in range(4): g("v_add_u32 %s, 0x80, %s" % (v(Dq + e), v(Dq + e)))
            for e in range(3): g("v_perm_b32 %s, %s, %s, %s" % (v(Dq + e), v(Dq + e), v(Dq + 3), s(56 + e)))
        if QF_ or not o["nib"]: g("v_mov_b32 %s, s30" % v(Dq + 3))
        m16 = (1 << (RS << QF_)) - 1
        g("s_mov_b32 exec_lo, %s" % hx(m16 | m16 << 16)); g("s_mov_b32 exec_hi, %s" % hx(m16 | m16 << 16))
        g("buffer_store_dwordx4 %s, %s, s[20:23], s3 offen sc1" % (v(Dq, 4), v(a)))
        g("s_mov_b64 exec, -1")
        g.stamp(9)
        if QF_:
            QB = 48; NL = 4 * RS
            sb = ["s4", "s5", "s7", "s63"]
            for h in range(1, RS): g("s_add_u32 %s, s4, %d" % (sb[h], 4096 * h))
            g("v_lshlrev_b32 %s, 2, v0" % v(a)); g("v_add_u32 %s, %d, %s" % (v(a), QA, v(a)))
            g("v_mov_b32 %s, %d" % (v(b), TAGA))
            g("v_mov_b32 %s, s30" % v(Dq)); g("v_mov_b32 %s, 1" % v(Dq + 1))
            g.poll("L_pq", ["buffer_load_dwordx4 %s, v3, s[20:23], %s offen offset:%d sc1" % (v(QB + 4 * u, 4), sb[u >> 2], 1024 * (u & 3)) for u in range(NL)],
                   [QB + 4 * u + 3 for u in range(NL)], o["pqs"])
            g.stamp(10)
            st = 16
            while st < 16 * RS:
                for r0 in range(QB, QB + 16 * RS, 2 * st):
                    for j in range(4):
                        for e in range(2): g("v_add_f32 %s, %s, %s" % (v(r0 + 4 * j + e), v(r0 + 4 * j + e), v(r0 + st + 4 * j + e)))
                st *= 2
            for j in range(4): g("v_cvt_pk_bf16_f32 %s, %s, %s" % (v(QB + 4 * j), v(QB + 4 * j), v(QB + 4 * j + 1)))
            g("ds_write2st64_b32 %s, %s, %s offset0:0 offset1:1" % (v(a), v(QB), v(QB + 4)))
            g("ds_write2st64_b32 %s, %s, %s offset0:2 offset1:3" % (v(a), v(QB + 8), v(QB + 12)))
        else:
            QB = 48
            g("s_add_u32 s5, s4, 4096")
            if o["nib"]:
                g("v_and_b32 %s, 3, v0" % v(b)); g("v_lshlrev_b32 %s, 5, %s" % (v(b), v(b))); g("v_lshl_or_b32 %s, v1, 7, %s" % (v(b), v(b)))
                g("v_bfe_u32 %s, v0, 2, 2" % v(a)); g("v_lshl_or_b32 %s, %s, 3, %s" % (v(a), v(a), v(b))); g("v_add_u32 %s, %d, %s" % (v(a), QA, v(a)))
            else:
                g("s_mov_b32 s56, 0x04000c0c"); g("s_mov_b32 s57, 0x0706000c"); g("s_mov_b32 s58, 0xffffff00")
                g("v_lshlrev_b32 %s, 3, v0" % v(a)); g("v_add_u32 %s, %d, %s" % (v(a), QA, v(a)))
            g("v_mov_b32 %s, %d" % (v(b), TAGA))
            g("v_mov_b32 %s, s30" % v(Dq)); g("v_mov_b32 %s, 1" % v(Dq + 1))
            lds_ = ["buffer_load_dwordx4 %s, v3, s[20:23], %s offen offset:%d sc1" % (v(QB + 4 * u, 4), "s4" if u < 4 else "s5", 1024 * (u & 3)) for u in range(2 * RS)]
            if o["nib"]:
                g("s_mov_b32 s31, 0x40000")
                g("s_waitcnt vmcnt(0)")
                g.lab("L_pq")
                for l_ in lds_: g(l_)
                for u in range(2 * RS):
                    g("s_waitcnt vmcnt(%d)" % (2 * RS - 1 - u))
                    for e in range(4): g("v_xor_b32 %s, %s, %s" % (v(QB + 4 * u + e), v(NC_ + e), v(QB + 4 * u + e)))
                    if u == 0: g("v_or_b32 %s, %s, %s" % (v(c_), v(QB), v(QB + 1)))
                    else: g("v_or3_b32 %s, %s, %s, %s" % (v(c_), v(QB + 4 * u), v(QB + 4 * u + 1), v(c_)))
                    g("v_or3_b32 %s, %s, %s, %s" % (v(c_), v(QB + 4 * u + 2), v(QB + 4 * u + 3), v(c_)))
                g("v_and_b32 %s, 15, %s" % (v(c_), v(c_)))
                g("v_cmp_ne_u32 vcc, 0, %s" % v(c_))
                g("s_cbranch_vccz L_pq_done")
                if o["pqs"]: g("s_sleep %d" % o["pqs"])
                g("s_sub_u32 s31, s31, 1")
                g("s_cbranch_scc0 L_pq")
                g.lab("L_pq_done")
            else: g.poll("L_pq", lds_, [QB + 4 * u + 3 for u in range(2 * RS)], o["pqs"])
            g.stamp(10)
            for u in range(0 if o["nib"] else 2 * RS):
                r = QB + 4 * u
                g("v_perm_b32 %s, %s, %s, s56" % (v(r + 3), v(r), v(r + 1)))
                g("v_perm_b32 %s, %s, %s, s57" % (v(r + 3), v(r + 3), v(r + 2)))
                for e in range(3): g("v_and_b32 %s, s58, %s" % (v(r + e), v(r + e)))
            st = 8
            while st < 8 * RS:
                for r0 in range(QB, QB + 8 * RS, 2 * st):
                    for e in range(8): g("v_add_f32 %s, %s, %s" % (v(r0 + e), v(r0 + e), v(r0 + st + e)))
                st *= 2
            for e in range(4): g("v_cvt_pk_bf16_f32 %s, %s, %s" % (v(QB + e), v(QB + 2 * e), v(QB + 2 * e + 1)))
            g("ds_write_b64 %s, %s" % (v(a), v(QB, 2)))
            g("ds_write_b64 %s, %s offset:512" % (v(a), v(QB + 2, 2)))
        g("ds_write_b64 %s, %s" % (v(b), v(Dq, 2)))
    def ffn_mfma():
        D1, D2, X1, X2, MB, GT_ = 32, 64, 48, 64, 84, 32
        LB = (16384, 49152)
        S1, S2 = 16, 17
        k1 = -2.0 * math.sqrt(2.0 / math.pi) * LOG2E
        def frag(bk, k):
            for ct in range(4):
                j = 16 * bk + 4 * k + ct
                g("ds_read_b64_tr_b16 %s, %s offset:%d" % (v(WF + 4 * j, 2), v(WA + ct), LB[bk] + 4096 * k))
                g("ds_read_b64_tr_b16 %s, %s offset:%d" % (v(WF + 4 * j + 2, 2), v(WA + ct), LB[bk] + 4096 * k + 512))
        def mm(D, bk, k, X, first):
            for ct in range(4):
                j = 16 * bk + 4 * k + ct
                g("v_mfma_f32_16x16x32_bf16 %s, %s, %s, %s" % (v(D + 4 * ct, 4), v(WF + 4 * j, 4), v(X + 4 * k, 4), "0" if first else v(D + 4 * ct, 4)))
        def send(D, mk, off):
            g.nop(6)
            for ct in range(1, 4):
                for e in range(4): g("v_cndmask_b32 %s, %s, %s, %s" % (v(D + e), v(D + e), v(D + 4 * ct + e), s(MK[ct], 2)))
            for e in range(4): g("v_bfi_b32 %s, 15, %s, %s" % (v(D + e), v(mk + e), v(D + e)))
            g("s_mov_b32 exec_lo, 0x000f000f"); g("s_mov_b32 exec_hi, 0x000f000f")
            g("buffer_store_dwordx4 %s, %s, s[20:23], s5 offen offset:%d sc1" % (v(D, 4), v(b), off))
            g("s_mov_b64 exec, -1")
        def gather(name, r0, n, sb, slp):
            g("s_mov_b32 s31, 0x40000")
            g.lab(name)
            for u in range(n): g("buffer_load_dwordx4 %s, v3, s[20:23], %s offen offset:%d sc1" % (v(r0 + 4 * u, 4), sb[u >> 2], 1024 * (u & 3)))
            for u in range(n):
                g("s_waitcnt vmcnt(%d)" % (n - 1 - u))
                for e in range(4): g("v_xor_b32 %s, %s, %s" % (v(r0 + 4 * u + e), v(NC_ + e), v(r0 + 4 * u + e)))
                if u == 0: g("v_or_b32 %s, %s, %s" % (v(c_), v(r0), v(r0 + 1)))
                else: g("v_or3_b32 %s, %s, %s, %s" % (v(c_), v(r0 + 4 * u), v(r0 + 4 * u + 1), v(c_)))
                g("v_or3_b32 %s, %s, %s, %s" % (v(c_), v(r0 + 4 * u + 2), v(r0 + 4 * u + 3), v(c_)))
                if u >= 2:
                    for e in (0, 2): g("v_pk_add_f32 %s, %s, %s" % (v(r0 + 4 * (u & 1) + e, 2), v(r0 + 4 * (u & 1) + e, 2), v(r0 + 4 * u + e, 2)))
            g("v_and_b32 %s, 15, %s" % (v(c_), v(c_)))
            g("v_cmp_ne_u32 vcc, 0, %s" % v(c_))
            g("s_cbranch_vccz %s_done" % name)
            if slp: g("s_sleep %d" % slp)
            g("s_sub_u32 s31, s31, 1")
            g("s_cbranch_scc0 %s" % name)
            g.lab(name + "_done")
        g("s_setprio 0")
        g("s_cmp_eq_u32 s60, 0")
        g("s_cbranch_scc1 L_nofp")
        for ct in range(4): g("v_subrev_u32 %s, %d, %s" % (v(WA + ct), STAGE, v(WA + ct)))
        g("s_cmp_eq_u32 s60, 2")
        g("s_cbranch_scc1 L_rb")
        g.srd(8, 44, 512 * 3584)
        g.srd(16, 46, 512 * 3584)
        g("s_mul_i32 s4, s62, %d" % (128 * 3584)); g("s_lshl_b32 s7, s61, 7"); g("s_add_u32 s4, s4, s7")
        g("s_movk_i32 s56, 3584"); g("s_mov_b32 s57, %d" % ((o["ka"] - 1) % 4 + 1)); g("s_mov_b32 s58, %d" % (TAGA + (TRG if o["ka"] < 5 else CN2)))
        g("s_lshr_b32 s5, s61, 2"); g("s_mul_i32 s5, s5, %d" % CSA); g("s_and_b32 s7, s61, 3"); g("s_lshl_b32 s7, s7, 8"); g("s_add_u32 s5, s5, s7")
        g("s_lshl_b32 s7, s62, 11"); g("s_add_u32 s5, s5, s7"); g("s_add_u32 s5, s5, %d" % WS_FA)
        g("v_lshlrev_b32 %s, 6, v1" % v(b)); g("v_lshl_or_b32 %s, v2, 4, %s" % (v(b), v(b)))
        g("s_lshl_b32 s3, s62, 8"); g("s_add_u32 s3, s3, %d" % XN); g("v_lshl_add_u32 %s, v1, 4, s3" % v(XA))
        for k in range(4): g("ds_read_b128 %s, %s offset:%d" % (v(X1 + 4 * k, 4), v(XA), 64 * k))
        g("s_branch L_rj")
        g.lab("L_rb")
        g.srd(8, 48, 1792 * 1024)
        g.srd(16, 48, 1792 * 1024 - 128 * 1024, "0x20000")
        g("s_lshl_b32 s4, s61, 18"); g("s_lshl_b32 s7, s25, 7"); g("s_add_u32 s4, s4, s7")
        g("s_movk_i32 s56, 1024"); g("s_mov_b32 s57, %d" % ((o["kb"] - 1) % 4 + 1)); g("s_mov_b32 s58, %d" % (TAGA + (TRG if o["kb"] < 5 else CN2)))
        g("s_mul_i32 s5, s25, %d" % (2 * CSB)); g("s_lshl_b32 s7, s61, 7"); g("s_add_u32 s5, s5, s7"); g("s_add_u32 s5, s5, %d" % WS_FB)
        g("v_lshrrev_b32 %s, 1, v2" % v(b)); g("v_mul_u32_u24 %s, %d, %s" % (v(b), CSB, v(b)))
        g("v_and_b32 %s, 1, v0" % v(a)); g("v_lshl_add_u32 %s, %s, 4, %s" % (v(b), v(a), v(b))); g("v_lshl_add_u32 %s, v1, 5, %s" % (v(b), v(b)))
        g("v_and_b32 %s, 1, v1" % v(c_)); g("v_cmp_eq_u32 vcc, 1, %s" % v(c_))
        g("v_mov_b32 %s, s30" % v(MB)); g("v_mov_b32 %s, s59" % v(MB + 1))
        g("v_lshlrev_b32 %s, 4, %s" % (v(a), v(a)))
        g("v_cndmask_b32 %s, %s, %s, vcc" % (v(MB), v(MB), v(MB + 1)))
        g("v_lshrrev_b32 %s, %s, %s" % (v(MB), v(a), v(MB)))
        for e in (1, 2, 3): g("v_lshrrev_b32 %s, %d, %s" % (v(MB + e), 4 * e, v(MB)))
        g("v_lshlrev_b32 %s, 4, v1" % v(XA)); g("v_add_u32 %s, %d, %s" % (v(XA), HA, v(XA)))
        g.lab("L_rj")
        g("v_lshrrev_b32 %s, 3, v0" % v(S1)); g("v_and_b32 %s, 2, %s" % (v(S2), v(S1))); g("v_mul_u32_u24 %s, s56, %s" % (v(S1), v(S1)))
        g("v_and_b32 %s, 7, v0" % v(a)); g("v_xor_b32 %s, %s, %s" % (v(S2), v(S2), v(a)))
        g("v_lshl_or_b32 %s, %s, 4, %s" % (v(S1), v(S2), v(S1))); g("v_xor_b32 %s, 64, %s" % (v(S2), v(S1)))
        g("s_lshl_b32 s56, s56, 3")
        g("v_mov_b32 %s, %d" % (v(a), TAGA))
        await_("L_uw", UPF, 4, [], 32, a, c_, 0x10000)
        if LATE:
            g("v_mov_b32 %s, s58" % v(a))
            await_("L_tw", 0, "s57", [], o["tsl"], a, c_, 0x80000)
        if o["ts"] == 5: g.stamp(8)
        if o["mprio"]: g("s_setprio %d" % o["mprio"])
        for bk in range(2):
            g("s_mov_b32 s7, s4")
            for u in range(16):
                g("s_mov_b32 m0, %d" % (LB[bk] + u * 1024))
                if u: g("s_add_u32 s7, s7, s56")
                else: g("s_nop 0")
                g("buffer_load_dwordx4 %s, %s, s7 offen nt lds" % (v(S2 if u & 1 else S1), "s[16:19]" if bk else "s[8:11]"))
        g("s_cmp_eq_u32 s60, 2")
        g("s_cbranch_scc1 L_fb")
        for bk in range(2):
            for k in range(4):
                g("s_waitcnt vmcnt(%d)" % (28 - 16 * bk - 4 * k + bk))
                if o["ts"] == 5 and bk == 1 and k == 3: g.stamp(9)
                if o["ts"] == 5 and bk == 0 and k == 3: g.stamp(11)
                if o["ts"] == 5 and bk == 0 and k == 0: g.stamp(13)
                frag(bk, k)
                if k:
                    g("s_waitcnt lgkmcnt(8)")
                    mm((D1, D2)[bk], bk, k - 1, X1, k == 1)
            g("s_waitcnt lgkmcnt(0)")
            mm((D1, D2)[bk], bk, 3, X1, False)
            send((D1, D2)[bk], NC_, 1024 * bk)
        if o["ts"] == 5: g.stamp(10)
        g("s_branch L_nofp")
        g.lab("L_fb")
        g("v_and_b32 %s, 3, v0" % v(a)); g("v_lshlrev_b32 %s, 5, %s" % (v(a), v(a))); g("v_lshl_or_b32 %s, v1, 7, %s" % (v(a), v(a)))
        g("v_bfe_u32 %s, v0, 2, 2" % v(c_)); g("v_lshl_or_b32 %s, %s, 3, %s" % (v(a), v(c_), v(a))); g("v_add_u32 %s, %d, %s" % (v(a), HA, v(a)))
        g("s_mul_i32 s4, s61, %d" % CSA); g("s_add_u32 s4, s4, %d" % WS_FA); g("s_add_u32 s56, s4, 4096")
        for bk in range(2):
            for k in range(4):
                g("s_waitcnt vmcnt(%d)" % (28 - 16 * bk - 4 * k))
                frag(bk, k)
        if o["ts"] == 5: g.stamp(9)
        gather("L_pa", GT_, 8, ["s4", "s56"], o["fsleep"])
        if o["ts"] == 5: g.stamp(11)
        G_ = [GT_ + j for j in range(4)]; U_ = [GT_ + 4 + j for j in range(4)]; E_ = [GT_ + 8 + j for j in range(4)]
        g.rbf([(G_[0], G_[1]), (G_[2], G_[3]), (U_[0], U_[1]), (U_[2], U_[3])], c_)
        g("s_mov_b32 s56, %s" % hx(f2u(0.044715))); g("s_mov_b32 s57, %s" % hx(f2u(k1)))
        for j in range(4): g("v_mul_f32 %s, %s, %s" % (v(E_[j]), v(G_[j]), v(G_[j])))
        for j in range(4): g("v_fma_f32 %s, %s, s56, 1.0" % (v(E_[j]), v(E_[j])))
        for j in range(4): g("v_mul_f32 %s, %s, %s" % (v(E_[j]), v(E_[j]), v(G_[j])))
        for j in range(4): g("v_mul_f32 %s, s57, %s" % (v(E_[j]), v(E_[j])))
        for j in range(4): g("v_exp_f32 %s, %s" % (v(E_[j]), v(E_[j])))
        for j in range(4): g("v_add_f32 %s, 1.0, %s" % (v(E_[j]), v(E_[j])))
        for j in range(4): g("v_rcp_f32 %s, %s" % (v(E_[j]), v(E_[j])))
        for j in range(4): g("v_mul_f32 %s, %s, %s" % (v(E_[j]), v(E_[j]), v(G_[j])))
        g.rbf([(E_[0], E_[1]), (E_[2], E_[3])], c_)
        for j in range(4): g("v_mul_f32 %s, %s, %s" % (v(E_[j]), v(E_[j]), v(U_[j])))
        g("v_cvt_pk_bf16_f32 %s, %s, %s" % (v(E_[0]), v(E_[0]), v(E_[1])))
        g("v_cvt_pk_bf16_f32 %s, %s, %s" % (v(E_[1]), v(E_[2]), v(E_[3])))
        g("ds_write_b64 %s, %s" % (v(a), v(E_[0], 2)))
        for k in range(8): g("ds_read_b128 %s, %s offset:%d" % (v(X1 + 4 * k, 4), v(XA), 64 * k))
        for k in range(8):
            g("s_waitcnt lgkmcnt(%d)" % (7 - k))
            mm(D1, k >> 2, k & 3, X1 + 16 * (k >> 2), k == 0)
        send(D1, MB, 0)
        if o["ts"] == 5: g.stamp(10)
        g.lab("L_nofp")
        g("s_cmp_ge_u32 s93, 64")
        g("s_cbranch_scc1 L_nofc")
        E = 56
        g("v_lshlrev_b32 %s, 16, %s" % (v(E), v(TT + 2))); g("v_and_b32 %s, 0xffff0000, %s" % (v(E + 1), v(TT + 2)))
        g("v_lshlrev_b32 %s, 3, v0" % v(a)); g("v_add_u32 %s, %d, %s" % (v(a), GX + 128, v(a)))
        g("s_mov_b64 exec, 0xffff")
        g("ds_write_b64 %s, %s" % (v(a), v(E, 2)))
        g("s_mov_b64 exec, -1")
        g("v_and_b32 %s, 1, v0" % v(b)); g("v_lshlrev_b32 %s, 6, %s" % (v(b), v(b))); g("v_lshl_or_b32 %s, v1, 2, %s" % (v(b), v(b)))
        g("v_bfe_u32 %s, v0, 1, 2" % v(a)); g("v_lshl_or_b32 %s, %s, 4, %s" % (v(b), v(a), v(b))); g("v_add_u32 %s, %d, %s" % (v(b), GX, v(b)))
        for e in range(4): g("v_mov_b32 %s, 0" % v(E + e))
        g("v_mov_b32 %s, %d" % (v(a), TAGA))
        if LATE: await_("L_fw", CN2, o["kf"], [], o["tsl"], a, c_, 0x80000)
        if o["pre2"]:
            g("s_mul_i32 s4, s93, %d" % CS2); g("s_add_u32 s4, s4, %d" % WS_B2); g("s_add_u32 s5, s4, 4096")
            for u in range(8): g("buffer_load_dwordx4 %s, v3, s[20:23], %s offen offset:%d sc1" % (v(64, 4), "s4" if u < 4 else "s5", 1024 * (u & 3)))
        g("s_mul_i32 s4, s93, %d" % CSB); g("s_add_u32 s4, s4, %d" % WS_FB)
        g("s_mov_b32 s7, %s" % hx(f2u(-LOG2E)))
        g("s_mov_b32 exec_hi, 0xffffff")
        gather("L_pb", E, 1, ["s4"], o["gsleep"])
        g("s_mov_b64 exec, -1")
        if o["ts"] == 5: g.stamp(11)
        g.tswap("v_permlane32_swap_b32", [(E, E + 2), (E + 1, E + 3)])
        g.tswap("v_permlane16_swap_b32", [(E, E + 1)])
        g.red_dpp("v_add_f32", [E], ["row_ror:8"])
        g.rbf([(E, E)], c_)
        g("v_mul_f32 %s, s7, %s" % (v(E + 1), v(E)))
        g("v_exp_f32 %s, %s" % (v(E + 1), v(E + 1)))
        g("v_mov_b32 %s, 1" % v(E + 2))
        g("v_add_f32 %s, 1.0, %s" % (v(E + 1), v(E + 1)))
        g("v_rcp_f32 %s, %s" % (v(E + 1), v(E + 1)))
        g("v_mov_b32 %s, s30" % v(E + 3))
        g("v_mul_f32 %s, %s, %s" % (v(E), v(E), v(E + 1)))
        g.rbf([(E, E)], c_)
        g("ds_write_b32 %s, %s" % (v(b), v(E)))
        g("ds_write_b32 %s, %s offset:%d" % (v(a), v(E + 2), GF))
        g("s_cmp_lg_u32 s2, 0")
        g("s_cbranch_scc1 L_nofc")
        g("s_mov_b64 exec, 1")
        g("buffer_store_dword %s, off, s[20:23], 0 offset:%d sc1" % (v(E + 3), WS_EPOCH))
        g("s_mov_b64 exec, -1")
    def ffn_valu():
        if o["fprio"] >= 0: g("s_setprio %d" % o["fprio"])
        g("s_cmp_eq_u32 s60, 0")
        g("s_cbranch_scc1 L_nofp")
        if fm == 2: g("s_branch L_nofp")
        XP, XQ, AG, AU, PT = 24, 32, 40, 48, 56
        if LATE:
            g("s_cmp_eq_u32 s60, 2")
            g("s_cselect_b32 s3, %d, %d" % (CN2 if o["bt"] else TRG, TRG)); g("s_add_u32 s3, s3, %d" % TAGA)
            g("v_mov_b32 %s, s3" % v(XP))
            await_("L_tw", 0, 1, [], o["tsl"], XP, XQ)
            if o["ts"] == 5: g.stamp(8)
        if o["ffnlate"]: ffn_loads()
        g("v_lshrrev_b32 %s, 3, v0" % v(a)); g("v_lshlrev_b32 %s, 2, %s" % (v(a), v(a)))
        g("s_lshl_b32 s3, s62, 8"); g("s_add_u32 s3, s3, %d" % XN); g("s_mov_b32 s7, s3")
        g("s_cmp_eq_u32 s60, 1")
        g("s_cbranch_scc1 L_fc")
        g("s_mul_i32 s4, s61, %d" % CSA); g("s_add_u32 s4, s4, %d" % WS_FA)
        g("s_add_u32 s5, s4, 4096")
        FA_ = 56
        plim = {4: -1, 5: 2, 6: -1, 7: -1, 8: -1, 10: -1}.get(fm, 0x40000)
        if o["cpoll"]:
            g("v_lshlrev_b32 %s, 9, v0" % v(b))
            g("s_mov_b64 exec, 0xffff")
            g.poll("L_pc", ["buffer_load_dwordx4 %s, %s, s[20:23], s4 offen offset:496 sc1" % (v(FA_, 4), v(b))], [FA_ + 3], o["cpoll"], lim=plim)
            g("s_mov_b64 exec, -1")
        g.poll("L_pa", ["buffer_load_dwordx4 %s, v3, s[20:23], %s offen offset:%d sc1" % (v(FA_ + 4 * u, 4), "s4" if u < 4 else "s5", 1024 * (u & 3)) for u in range(8)],
               [FA_ + 4 * u + 3 for u in range(8)], o["fsleep"], lim=plim)
        if o["ts"] != 3: g.stamp(11)
        g("s_mov_b32 s3, 0x04000c0c"); g("s_mov_b32 s7, 0x0706000c")
        for u in range(8):
            r = FA_ + 4 * u
            g("v_perm_b32 %s, %s, %s, s3" % (v(r + 3), v(r), v(r + 1)))
            g("v_perm_b32 %s, %s, %s, s7" % (v(r + 3), v(r + 3), v(r + 2)))
            for e in range(3): g("v_and_b32 %s, 0xffffff00, %s" % (v(r + e), v(r + e)))
        for cb in range(4):
            for e in range(4): g("v_add_f32 %s, %s, %s" % (v(FA_ + 8 * cb + e), v(FA_ + 8 * cb + e), v(FA_ + 8 * cb + 4 + e)))
        g.tswap("v_permlane32_swap_b32", [(FA_ + 8 * cb + e, FA_ + 8 * cb + 16 + e) for cb in range(2) for e in range(4)])
        GT = [FA_, FA_ + 2, FA_ + 8, FA_ + 10]; UP = [x + 1 for x in GT]; E = [FA_ + 4, FA_ + 5, FA_ + 6, FA_ + 7]
        g.rbf(list(zip(GT, UP)), c_)
        k1 = -2.0 * math.sqrt(2.0 / math.pi) * LOG2E
        for j in range(4): g("v_mul_f32 %s, %s, %s" % (v(E[j]), v(GT[j]), v(GT[j])))
        for j in range(4): g("v_mul_f32 %s, %s, %s" % (v(E[j]), hx(f2u(0.044715)), v(E[j])))
        for j in range(4): g("v_add_f32 %s, 1.0, %s" % (v(E[j]), v(E[j])))
        for j in range(4): g("v_mul_f32 %s, %s, %s" % (v(E[j]), v(E[j]), v(GT[j])))
        for j in range(4): g("v_mul_f32 %s, %s, %s" % (v(E[j]), hx(f2u(k1)), v(E[j])))
        for j in range(4): g("v_exp_f32 %s, %s" % (v(E[j]), v(E[j])))
        for j in range(4): g("v_add_f32 %s, 1.0, %s" % (v(E[j]), v(E[j])))
        for j in range(4): g("v_rcp_f32 %s, %s" % (v(E[j]), v(E[j])))
        for j in range(4): g("v_mul_f32 %s, %s, %s" % (v(E[j]), v(E[j]), v(GT[j])))
        g.rbf([(E[0], E[1]), (E[2], E[3])], c_)
        for j in range(4): g("v_mul_f32 %s, %s, %s" % (v(E[j]), v(E[j]), v(UP[j])))
        g("v_cvt_pk_bf16_f32 %s, %s, %s" % (v(E[0]), v(E[0]), v(E[1])))
        g("v_cvt_pk_bf16_f32 %s, %s, %s" % (v(E[2]), v(E[2]), v(E[3])))
        g("v_lshrrev_b32 %s, 5, v0" % v(c_)); g("v_and_b32 %s, 31, v0" % v(b)); g("v_lshlrev_b32 %s, 2, %s" % (v(b), v(b)))
        g("v_lshl_add_u32 %s, %s, 8, %s" % (v(c_), v(c_), v(b))); g("v_add_u32 %s, %d, %s" % (v(c_), HA, v(c_)))
        g("ds_write2_b32 %s, %s, %s offset0:0 offset1:32" % (v(c_), v(E[0]), v(E[2])))
        g("s_mov_b32 s3, %d" % HA); g("s_mov_b32 s7, %d" % (HA + 256))
        g.lab("L_fc")
        g("v_add_u32 %s, s3, %s" % (v(b), v(a))); g("v_add_u32 %s, s7, %s" % (v(c_), v(a)))
        for k in range(8): g("ds_read_b32 %s, %s offset:%d" % (v(XP + k), v(b), 32 * k))
        for k in range(8): g("ds_read_b32 %s, %s offset:%d" % (v(XQ + k), v(c_), 32 * k))
        for e in range(16): g("v_mov_b32 %s, 0" % v(AG + e))
        g("s_mov_b32 s3, 0x05040100"); g("s_mov_b32 s7, 0x07060302")
        def pairs(W, ACC, XPr):
            for k in range(8):
                for e in range(4):
                    ra, rb_ = W + 8 * k + e, W + 8 * k + 4 + e
                    g("v_perm_b32 %s, %s, %s, s3" % (v(PT + 2 * (e & 1)), v(rb_), v(ra)))
                    g("v_perm_b32 %s, %s, %s, s7" % (v(PT + 2 * (e & 1) + 1), v(rb_), v(ra)))
                    g("v_dot2_f32_bf16 %s, %s, %s, %s" % (v(ACC + 2 * e), v(PT + 2 * (e & 1)), v(XPr + k), v(ACC + 2 * e)))
                    g("v_dot2_f32_bf16 %s, %s, %s, %s" % (v(ACC + 2 * e + 1), v(PT + 2 * (e & 1) + 1), v(XPr + k), v(ACC + 2 * e + 1)))
        g("s_waitcnt vmcnt(0) lgkmcnt(0)")
        if o["ts"] == 5: g.stamp(9)
        pairs(W1, AG, XP)
        pairs(W2, AU, XQ)
        g.nop(1)
        g.tswap("v_permlane32_swap_b32", [(AG + c, AG + c + 4) for c in range(4)] + [(AU + c, AU + c + 4) for c in range(4)])
        g.tswap("v_permlane16_swap_b32", [(AG + c, AG + c + 2) for c in range(2)] + [(AU + c, AU + c + 2) for c in range(2)])
        g.red_dpp("v_add_f32", [AG, AG + 1, AU, AU + 1], ["row_ror:8"])
        g("v_and_b32 %s, 7, v0" % v(b))
        g("v_mov_b32 %s, s30" % v(AG + 3))
        g("s_cmp_eq_u32 s60, 2")
        g("s_cbranch_scc1 L_fb")
        g("s_mov_b32 s3, 0x07060503"); g("s_mov_b32 s4, 0x07060502"); g("s_mov_b32 s7, 0x07060501")
        for r in (AG, AG + 1, AU, AU + 1): g("v_add_u32 %s, 0x80, %s" % (v(r), v(r)))
        g("v_perm_b32 %s, %s, %s, s7" % (v(AG + 2), v(AG + 1), v(AU + 1)))
        g("v_perm_b32 %s, %s, %s, s4" % (v(AG + 1), v(AU), v(AU + 1)))
        g("v_perm_b32 %s, %s, %s, s3" % (v(AG), v(AG), v(AU + 1)))
        g("v_lshlrev_b32 %s, 6, %s" % (v(b), v(b)))
        g("s_lshr_b32 s4, s61, 2"); g("s_mul_i32 s4, s4, %d" % CSA); g("s_and_b32 s5, s61, 3"); g("s_lshl_b32 s5, s5, 11"); g("s_add_u32 s4, s4, s5")
        g("s_lshl_b32 s5, s62, 9"); g("s_add_u32 s4, s4, s5"); g("s_add_u32 s4, s4, %d" % WS_FA)
        if fm in (5, 6, 8): g("s_branch L_nofp")
        g("s_branch L_fs")
        g.lab("L_fb")
        g("v_add_f32 %s, %s, %s" % (v(AG), v(AG), v(AU))); g("v_add_f32 %s, %s, %s" % (v(AG + 1), v(AG + 1), v(AU + 1)))
        g("v_mov_b32 %s, 0" % v(AG + 2))
        if HK:
            g("v_and_b32 %s, %d, %s" % (v(c_), HK - 1, v(b))); g("v_lshrrev_b32 %s, %d, %s" % (v(b), LK, v(b)))
            g("v_mul_u32_u24 %s, %d, %s" % (v(b), CSB, v(b))); g("v_lshl_add_u32 %s, %s, 6, %s" % (v(b), v(c_), v(b)))
            g("s_mul_i32 s4, s25, %d" % (8 // HK * CSB)); g("s_lshl_b32 s5, s61, %d" % (6 + LK)); g("s_add_u32 s4, s4, s5"); g("s_add_u32 s4, s4, %d" % WS_FB)
        else:
            g("v_mul_u32_u24 %s, %d, %s" % (v(b), CSB, v(b)))
            g("s_mul_i32 s4, s25, %d" % (8 * CSB)); g("s_lshl_b32 s5, s61, 6"); g("s_add_u32 s4, s4, s5"); g("s_add_u32 s4, s4, %d" % WS_FB)
        if fm in (5, 6, 7): g("s_branch L_nofp")
        g.lab("L_fs")
        g("v_lshl_add_u32 %s, v1, 4, %s" % (v(b), v(b)))
        g("s_mov_b32 exec_lo, 0x00ff00ff"); g("s_mov_b32 exec_hi, 0x00ff00ff")
        g("buffer_store_dwordx4 %s, %s, s[20:23], s4 offen sc1" % (v(AG, 4), v(b)))
        g("s_mov_b64 exec, -1")
        if o["ts"] == 5: g.stamp(10)
        g.lab("L_nofp")
        if o["dn"]:
            g.srd(8, 54, 32 << 20, hx(o["dbase"] << 20))
            g("s_mul_i32 s4, s2, %d" % (o["dn"] * 1024 + 128))
            for j in range(o["dn"]):
                g("buffer_load_dwordx4 v[56:59], v3, s[8:11], s4 offen %s" % ["sc1", "", "sc0 sc1", "sc1 nt", "sc0", "nt"][o["dmod"]])
                g("s_add_u32 s4, s4, 1024")
            g("s_waitcnt vmcnt(0)")
        if o["dpoll"]:
            if not o["dwho"]: g("s_cmp_ge_u32 s26, 8"); g("s_cbranch_scc1 L_dp")
            g("s_mul_i32 s4, s2, %d" % o["dstr"]); g("s_add_u32 s4, s4, %d" % o["doff"])
            if o["dst"]:
                g("v_mov_b32 v59, 0")
                g("buffer_store_dwordx4 v[56:59], v3, s[20:23], s4 offen sc1")
            g.poll("L_dq", ["buffer_load_dwordx4 v[56:59], v3, s[20:23], s4 offen %s" % ["sc1", "", "sc0 sc1", "sc1 nt", "sc0"][o["dmod"]]], [59], o["gsleep"], lim=o["dpoll"] - 1)
            g.lab("L_dp")
        if HK: g("s_cmp_ge_u32 s93, 64")
        else: g("s_cmp_ge_u32 s26, 8")
        g("s_cbranch_scc1 L_nofc")
        E = 56
        if LATE:
            g("v_mov_b32 %s, %d" % (v(E), TAGA))
            await_("L_fw", CN2 if o["ft"] else TRG, max(o["ft"], 1), [], o["tsl"], E, E + 1)
        if o["pre2"]:
            g("s_mul_i32 s4, s93, %d" % CS2); g("s_add_u32 s4, s4, %d" % WS_B2)
            g("s_add_u32 s5, s4, 4096")
            for u in range(2 * HK or 4): g("buffer_load_dwordx4 %s, v3, s[20:23], %s offen offset:%d sc1" % (v(64, 4), "s4" if u < 4 else "s5", 1024 * (u & 3)))
        if o["pre1"]:
            g("s_mul_i32 s4, s28, %d" % CS1); g("s_add_u32 s4, s4, %d" % WS_B1); g("s_add_u32 s5, s4, 4096")
            for u in range(8): g("buffer_load_dwordx4 %s, v3, s[20:23], %s offen offset:%d sc1" % (v(64, 4), "s4" if u < 4 else "s5", 1024 * (u & 3)))
        if o["pret"]:
            g.srd(16, 50, 1024)
            g("s_lshl_b32 s3, s93, 4"); g("v_mov_b32 %s, s3" % v(E))
            g("buffer_load_dword %s, %s, s[16:19], 0 offen%s" % (v(E + 2), v(E), ["", "", " sc1"][o["pret"]]))
            g("s_waitcnt vmcnt(0)")
        g("v_mov_b32 %s, 0" % v(E)); g("v_mov_b32 %s, 0" % v(E + 1)); g("v_mov_b32 %s, s30" % v(E + 3))
        if not (o["noffn"] or fm == 2):
            g("s_mul_i32 s4, s93, %d" % CSB); g("s_add_u32 s4, s4, %d" % WS_FB)
            if HK == 4:
                g("v_min_u32 %s, 47, v0" % v(a)); g("v_lshlrev_b32 %s, 4, %s" % (v(a), v(a)))
                g.poll("L_pb", ["buffer_load_dwordx4 %s, v3, s[20:23], s4 offen sc1" % v(E, 4), "buffer_load_dwordx4 %s, %s, s[20:23], s4 offen offset:1024 sc1" % (v(E + 4, 4), v(a))],
                       [E + 3, E + 7], o["gsleep"])
                g("s_mov_b32 exec_hi, 0xffff")
                for e in range(2): g("v_add_f32 %s, %s, %s" % (v(E + e), v(E + e), v(E + 4 + e)))
            else:
                if HK == 2: g("s_mov_b32 exec_hi, 0xffffff")
                else: g("s_mov_b64 exec, 0x0fffffff")
                g.poll("L_pb", ["buffer_load_dwordx4 %s, v3, s[20:23], s4 offen sc1" % v(E, 4)], [E + 3], o["gsleep"], lim={9: -1, 10: 0x40000}.get(fm, plim))
            if o["epearly"]:
                g("s_cmp_lg_u32 s2, 0")
                g("s_cbranch_scc1 L_noep")
                g("s_mov_b64 exec, 1")
                g("buffer_store_dword %s, off, s[20:23], 0 offset:%d sc1" % (v(E + 3), WS_EPOCH))
                g.lab("L_noep")
            g("s_mov_b64 exec, -1")
        g.red_dpp("v_add_f32", [E, E + 1], ["row_ror:8", "row_ror:4"][:2 - LK])
        g.red_swap("v_add_f32", [E, E + 1], [a, b])
        g.rbf([(E, E + 1)], c_)
        g("s_mov_b32 s7, %s" % hx(f2u(-LOG2E)))
        g("v_mul_f32 %s, s7, %s" % (v(a), v(E))); g("v_mul_f32 %s, s7, %s" % (v(b), v(E + 1)))
        g("v_exp_f32 %s, %s" % (v(a), v(a))); g("v_exp_f32 %s, %s" % (v(b), v(b)))
        g("v_lshlrev_b32 %s, 16, %s" % (v(E + 2), v(TT + 2)))
        g("v_add_f32 %s, 1.0, %s" % (v(a), v(a))); g("v_add_f32 %s, 1.0, %s" % (v(b), v(b)))
        g("v_rcp_f32 %s, %s" % (v(a), v(a))); g("v_rcp_f32 %s, %s" % (v(b), v(b)))
        g("v_and_b32 %s, 0xffff0000, %s" % (v(E + 3), v(TT + 2)))
        g("v_mul_f32 %s, %s, %s" % (v(E), v(E), v(a))); g("v_mul_f32 %s, %s, %s" % (v(E + 1), v(E + 1), v(b)))
        g.rbf([(E, E + 1)], c_)
        if HK:
            g("v_lshlrev_b32 %s, 3, v0" % v(a)); g("v_add_u32 %s, %d, %s" % (v(a), GX, v(a)))
            g("s_mov_b64 exec, %d" % ((1 << (4 * HK)) - 1))
            g("ds_write2_b64 %s, %s, %s offset0:0 offset1:16" % (v(a), v(E, 2), v(E + 2, 2)))
            if CS:
                g("v_mov_b32 %s, %d" % (v(a), TAGA)); g("v_mov_b32 %s, 1" % v(b))
                g("ds_write_b32 %s, %s offset:%d" % (v(a), v(b), GF))
        else:
            g("v_add_u32 %s, %d, v3" % (v(a), GA))
            g("s_mov_b64 exec, 15")
            g("ds_write_b128 %s, %s" % (v(a), v(E, 4)))
        g("s_mov_b64 exec, -1")
    if MF: ffn_mfma()
    else: ffn_valu()
    g.lab("L_nofc")
    g.stamp(12)
    if o["stamps"] == 2: g.write_stamps([0])
    elif o["ts"] in (0, 3, 5): g.write_stamps([8, 9, 10, 11, 12, 13])
    g("s_waitcnt vmcnt(0) lgkmcnt(0)")
    if o["reh"]:
        g("v_lshrrev_b32 v1, 4, v0"); g("v_and_b32 v2, 15, v0")
        tail_addr()
        g.srd(16, 50, 0)
        g.srd(20, 54, 0)
        g("s_mov_b32 s30, 0")
        if HK:
            for e in range(4): g("v_mov_b32 %s, 0" % v(MKR + e))
        g("s_branch L_tail")
    g.lab("L_end")
    g("s_endpgm")

    out = HEADER + "; @launch grid=(256,1,1) block=(320,1,1) lds=%d\n" % LDS_BYTES
    out += '.amdgcn_target "amdgcn-amd-amdhsa--gfx950"\n.text\n.globl %s_kernel\n.p2align 8\n.type %s_kernel,@function\n%s_kernel:\n' % (KNAME, KNAME, KNAME)
    MODS = ["nt", "", "sc1 nt", "sc0 nt", "sc0 sc1 nt", "sc1", "sc0"]
    for i_, l_ in enumerate(g.L):
        if l_.endswith(" nt lds") and ("s[8:11]" in l_ or ("s[12:15]" in l_ and "offset:" in l_)): g.L[i_] = l_[:-6] + MODS[o["smod"]] + " lds"
        elif l_.endswith(" nt lds") and "s[44:47]" in l_: g.L[i_] = l_[:-6] + MODS[o["womod"]] + " lds"
        elif l_.endswith("s4 offen nt") and "v[56:59]" not in l_: g.L[i_] = l_[:-2] + MODS[o["fmod"]]
    out += "\n".join(g.L) + "\n"
    out += """.section .rodata,"a"
.p2align 6
.amdhsa_kernel %s_kernel
  .amdhsa_next_free_vgpr %d
  .amdhsa_next_free_sgpr 100
  .amdhsa_accum_offset %d
  .amdhsa_group_segment_fixed_size 0
  .amdhsa_kernarg_size 96
  .amdhsa_user_sgpr_count 2
  .amdhsa_user_sgpr_kernarg_segment_ptr 1
  .amdhsa_system_sgpr_workgroup_id_x 1
.end_amdhsa_kernel
""" % (KNAME, NV, NV)
    return out

if __name__ == "__main__":
    import hazcheck
    names = []
    for spec in sys.argv[1:]:
        parts = spec.split(",")
        fn = parts[0]
        opts = {}
        for p in parts[1:]:
            k, x = p.split("=")
            opts[k] = int(x)
        txt = gen(**opts)
        nb = hazcheck.check(txt)
        assert nb == 0, "hazards found"
        open(fn, "w").write(txt)
        names.append(fn)
    print(" ".join(names))
```
